```python
import torch

def _softmax(x, axis=-1):
    return torch.softmax(x, dim=axis)

def _gelu(x):
    return torch.nn.functional.gelu(x, approximate='tanh')

def _silu(x):
    return torch.nn.functional.silu(x)

def _sigmoid(x):
    return torch.sigmoid(x)

def _layernorm(x, axis=-1, eps=1e-05):
    m = x.mean(dim=axis, keepdim=True)
    v = x.var(dim=axis, keepdim=True, unbiased=False)
    return (x - m) / torch.sqrt(v + eps)

def _scatter_add(tgt, idx, src, axis=0):
    return tgt.clone().index_add_(axis, idx, src)

def _segment_sum(src, seg, n):
    out = torch.zeros((n,) + src.shape[1:], dtype=src.dtype)
    return out.index_add_(0, seg, src)

def _pad(x, pw):
    flat = tuple((v for pair in reversed(pw) for v in pair))
    return torch.nn.functional.pad(x, flat)
kernel_name = 'adaLN_cond__gqa_block_cached__swiglu_ffn__decode'

def setup_inputs():

    _w = lambda a: (lambda t: t.to(torch.bfloat16) if t.is_floating_point() else t)(torch.as_tensor(a))

    def _A_setup():
        B, Sq, D = (2, 1, 640)
        Hq, Hkv, Sk, Dh = (32, 32, 8192, 192)
        assert Hq % Hkv == 0, (Hq, Hkv)
        return {'x': _w((lambda *s: torch.randn(*s, dtype=torch.bfloat16) * 0.05)(B, Sq, D)), 'k_cache': _w((lambda *s: torch.randn(*s, dtype=torch.bfloat16) * 0.8)(B, Hkv, Sk, Dh)), 'v_cache': _w((lambda *s: torch.randn(*s, dtype=torch.bfloat16) * 1.6)(B, Hkv, Sk, Dh)), 'wq': _w((lambda *s: torch.randn(*s, dtype=torch.bfloat16) * 0.8)(D, Hq * Dh) * D ** (-0.5)), 'wo': _w((lambda *s: torch.randn(*s, dtype=torch.bfloat16) * 1.6)(Hq * Dh, D) * (Hq * Dh) ** (-0.5))}
    _A_in = _A_setup()

    def _B_setup():
        B, S, D, F = (2, 1, 640, 1536)
        return {'x': _w((lambda *s: torch.randn(*s, dtype=torch.bfloat16) * 0.05)(B, S, D)), 'w_gate': _w((lambda *s: torch.randn(*s, dtype=torch.bfloat16) * 0.1)(D, F)), 'w_up': _w((lambda *s: torch.randn(*s, dtype=torch.bfloat16) * 0.1)(D, F)), 'w_down': _w((lambda *s: torch.randn(*s, dtype=torch.bfloat16) * 0.1)(F, D))}
    _B_in = _B_setup()
    return {'A_x': _A_in['x'], 'A_k_cache': _A_in['k_cache'], 'A_v_cache': _A_in['v_cache'], 'A_wq': _A_in['wq'], 'A_wo': _A_in['wo'], 'B_x': _B_in['x'], 'B_w_gate': _B_in['w_gate'], 'B_w_up': _B_in['w_up'], 'B_w_down': _B_in['w_down'], 'c': _w((lambda *s: torch.randn(*s, dtype=torch.bfloat16) * 0.4)(2, 640) * 8.0), 'w_mod': _w((lambda *s: torch.randn(*s, dtype=torch.bfloat16) * 0.4)(640, 6 * 640) * 640 ** (-0.5) * 8.0)}

def reference(A_x, A_k_cache, A_v_cache, A_wq, A_wo, B_x, B_w_gate, B_w_up, B_w_down, c, w_mod):

    def _A_ref(x, k_cache, v_cache, wq, wo):
        B, Sq, D = x.shape
        Hq, Dh = (32, 192)
        Hkv = k_cache.shape[1]
        rep = Hq // Hkv
        q = (lambda x, *d: x.permute(*d))((x @ wq).reshape(B, Sq, Hq, Dh), 0, 2, 1, 3)
        k = (lambda x, n, axis: torch.repeat_interleave(x, n, dim=axis))(k_cache, rep, axis=1)
        v = (lambda x, n, axis: torch.repeat_interleave(x, n, dim=axis))(v_cache, rep, axis=1)
        scores = torch.einsum('bhqd,bhkd->bhqk', q, k) * Dh ** (-0.5)
        p = _softmax(scores, axis=-1)
        o = torch.einsum('bhqk,bhkd->bhqd', p, v)
        return (lambda x, *d: x.permute(*d))(o, 0, 2, 1, 3).reshape(B, Sq, Hq * Dh) @ wo

    def _B_ref(x, w_gate, w_up, w_down):
        g = _silu(x @ w_gate)
        u = x @ w_up
        return g * u @ w_down
    x = A_x
    mod = (_silu(c) @ w_mod).reshape(c.shape[0], 6, 1, -1)
    sa, ca, ga, sb, cb, gb = (mod[:, 0].clone(), mod[:, 1].clone(), mod[:, 2].clone(), mod[:, 3].clone(), mod[:, 4].clone(), mod[:, 5].clone())
    h = _layernorm(x, axis=-1) * (1 + ca) + sa
    x = x + ga * _A_ref(h, A_k_cache, A_v_cache, A_wq, A_wo)
    h = _layernorm(x, axis=-1) * (1 + cb) + sb
    x = x + gb * _B_ref(h, B_w_gate, B_w_up, B_w_down)
    return x
```

```python
import re

TRANS = ('v_exp_f32', 'v_log_f32', 'v_rcp_f32', 'v_rsq_f32', 'v_sqrt_f32', 'v_sin_f32', 'v_cos_f32', 'v_rcp_iflag_f32')


def regs_of(op):
    op = op.strip()
    op = op.replace('abs(', '').replace(')', '').replace('|', '')
    if op.startswith('-'):
        op = op[1:]
    m = re.fullmatch(r'([vsa])\[(\d+):(\d+)\]', op)
    if m:
        return {m.group(1) + str(i) for i in range(int(m.group(2)), int(m.group(3)) + 1)}
    if re.fullmatch(r'[vsa]\d+', op):
        return {op}
    if op in ('vcc', 'vcc_lo', 'vcc_hi'):
        return {'vcc'}
    if op in ('exec', 'exec_lo', 'exec_hi'):
        return {'exec'}
    if op == 'm0':
        return {'m0'}
    return set()


class Ins:
    def __init__(self, text):
        self.text = text
        t = text.split(';')[0].strip()
        self.label = None
        self.mn = ''
        self.ops = []
        self.mods = ''
        self.kind = 'other'
        self.w = set()
        self.r = set()
        if t.endswith(':'):
            self.label = t[:-1]
            self.kind = 'label'
            return
        if not t or t.startswith('.'):
            self.kind = 'dir'
            return
        p = t.split(None, 1)
        self.mn = mn = p[0]
        rest = p[1] if len(p) > 1 else ''
        ops, cur, d = [], '', 0
        for ch in rest:
            if ch in '[(':
                d += 1
            if ch in '])':
                d -= 1
            if ch == ',' and d == 0:
                ops.append(cur.strip()); cur = ''
            else:
                cur += ch
        if cur.strip():
            last = cur.strip().split(None, 1)
            ops.append(last[0])
            self.mods = last[1] if len(last) > 1 else ''
        self.ops = ops
        R = [regs_of(o) for o in ops]
        U = lambda l: set().union(*l) if l else set()
        self.dpp = '_dpp' in mn or 'row_' in self.mods or 'quad_perm' in self.mods or 'wave_' in self.mods
        self.sdwa = '_sdwa' in mn or ('op_sel' in self.mods and not mn.startswith('v_pk_'))
        if mn.startswith('v_mfma'):
            self.kind = 'mfma'
            self.w = R[0]; self.a = R[1]; self.b = R[2]; self.c = R[3]
            self.r = self.a | self.b | self.c
            self.passes = 8 if '32x32' in mn else 4
            assert 'bf16' in mn and ('16x16x32' in mn or '32x32x16' in mn), mn
        elif mn.startswith('v_'):
            self.kind = 'valu'
            if mn.startswith('v_cmpx'):
                raise Exception('no cmpx')
            if 'permlane' in mn and 'swap' in mn:
                self.w = R[0] | R[1]; self.r = R[0] | R[1]
            elif mn.startswith('v_swap'):
                self.w = R[0] | R[1]; self.r = R[0] | R[1]
            elif '_co_' in mn or mn.startswith('v_div_scale') or mn.startswith('v_mad_u64'):
                self.w = R[0] | R[1]; self.r = U(R[2:])
            elif mn == 'v_nop':
                pass
            else:
                self.w = R[0]; self.r = U(R[1:])
                if mn.startswith(('v_fmac', 'v_dot2c', 'v_writelane', 'v_pk_fmac')) or self.dpp or self.sdwa:
                    self.r |= R[0]
                if mn.startswith('v_div_fmas'):
                    self.r |= {'vcc'}
                if mn.startswith('v_cndmask') and len(ops) == 3:
                    self.r |= {'vcc'}
        elif mn.startswith(('buffer_', 'global_')):
            self.kind = 'vmem'
            self.lds = ' lds' in (' ' + self.mods) or '_lds_' in mn
            self.store = 'store' in mn or 'atomic' in mn
            if mn.startswith(('buffer_wbl2', 'buffer_inv')):
                pass
            elif self.lds:
                self.r = U(R) | {'m0'}
            elif 'load' in mn:
                self.w = R[0]; self.r = U(R[1:])
                if 'd16' in mn:
                    self.r |= R[0]
            elif 'atomic' in mn and 'sc0' in self.mods:
                if mn.startswith('global_'):
                    self.w = R[0]; self.r = U(R[1:])
                else:
                    self.w = R[0]; self.r = U(R)
            else:
                self.r = U(R)
            self.wide = set()
            if 'store' in mn and ('x3' in mn or 'x4' in mn):
                self.wide = R[0] if mn.startswith('buffer_') else R[1]
        elif mn.startswith('ds_'):
            self.kind = 'ds'
            if 'read' in mn or 'rtn' in mn or 'permute' in mn or 'swizzle' in mn:
                self.w = R[0]; self.r = U(R[1:])
            else:
                self.r = U(R)
        elif mn.startswith('s_'):
            self.kind = 'salu'
            if mn.startswith(('s_cmp', 's_cbranch', 's_branch', 's_waitcnt', 's_barrier', 's_nop', 's_endpgm', 's_sleep',
                              's_setprio', 's_bitcmp', 's_setpc')):
                self.r = U(R)
            else:
                self.w = R[0] if R else set(); self.r = U(R[1:])
                if 'saveexec' in mn:
                    self.w = self.w | {'exec'}
        else:
            raise Exception('unknown instruction ' + text)

    def states(self):
        if self.kind in ('label', 'dir'):
            return 0
        if self.mn == 's_nop':
            return int(self.ops[0], 0) + 1
        return 1


def isv(s):
    return {x for x in s if x[0] in 'va' and x != 'vcc'}


def iss(s):
    return {x for x in s if (x[0] == 's') or x == 'vcc'}


def need(p, c):
    n = 0
    if p.kind == 'valu':
        wv, ws = isv(p.w), iss(p.w)
        if c.kind == 'valu':
            if c.dpp and wv & c.r:
                n = max(n, 2)
            if c.mn.startswith(('v_readlane', 'v_readfirstlane')) and wv & c.r:
                n = max(n, 1)
            if 'permlane' in c.mn and wv & c.r:
                n = max(n, 2)
            if ws & c.r:
                n = max(n, 2)
                if c.mn.startswith(('v_readlane', 'v_writelane', 'v_div_fmas')):
                    n = max(n, 4)
            if p.mn.replace('_e32', '').replace('_e64', '') in TRANS and wv & c.r:
                n = max(n, 1)
            if p.sdwa and wv & (c.r | c.w):
                n = max(n, 1)
            if p.mn.startswith('v_dot') and wv & (c.r | c.w):
                n = max(n, 3)
        if c.kind == 'mfma' and wv & c.r:
            n = max(n, 2)
        if c.kind == 'vmem' and ws & c.r:
            n = max(n, 5)
        if c.kind == 'salu' and ws & c.r:
            n = max(n, 1)
        if c.kind == 'salu' and 'vcc' in ws and c.mn.startswith('s_cbranch_vcc'):
            n = max(n, 1)
    elif p.kind == 'mfma':
        big = 8 if p.passes == 4 else 12
        if c.kind == 'mfma':
            if p.w & (c.a | c.b):
                n = max(n, big)
            if p.w & c.c and not (p.w == c.c and p.passes == c.passes):
                n = max(n, big - 2)
            if p.w & c.w and not (p.w == c.c):
                n = max(n, big)
        elif c.kind in ('valu', 'vmem', 'ds'):
            if p.w & (c.r | c.w):
                n = max(n, big)
            if c.kind == 'valu' and p.c & c.w:
                n = max(n, 3 if p.passes == 4 else 7)
    elif p.kind == 'vmem':
        if getattr(p, 'wide', None) and p.wide & c.w and c.kind in ('valu', 'mfma', 'ds', 'vmem'):
            n = max(n, 2)
    elif p.kind == 'salu':
        if 'm0' in p.w and c.kind == 'vmem' and getattr(c, 'lds', False):
            n = max(n, 1)
    elif p.kind == 'ds':
        pass
    return n


def fix_hazards(lines):
    ins = [Ins(l) for l in lines]
    MAXD = 12
    lab = {x.label: i for i, x in enumerate(ins) if x.label}
    srcs = {}
    for i, x in enumerate(ins):
        if x.mn.startswith(('s_cbranch', 's_branch')):
            srcs.setdefault(lab[x.ops[0]], []).append(i)
    pad = [0] * len(ins)
    for i, c in enumerate(ins):
        if c.kind in ('label', 'dir'):
            continue
        req = 0
        stack = [(i - 1, 0)]
        seen = set()
        while stack:
            j, d = stack.pop()
            if j < 0 or d >= MAXD or (j, d) in seen:
                continue
            seen.add((j, d))
            p = ins[j]
            if p.kind == 'label':
                for s in srcs.get(j, []):
                    stack.append((s, d))
                k = j - 1
                while k >= 0 and ins[k].kind == 'dir':
                    k -= 1
                if k >= 0 and ins[k].mn not in ('s_branch', 's_endpgm', 's_setpc_b64'):
                    stack.append((k, d))
                continue
            if p.kind == 'dir':
                stack.append((j - 1, d)); continue
            n = need(p, c)
            if n - d > req:
                req = n - d
            stack.append((j - 1, d + p.states() + pad[j]))
        pad[i] = req
    out = []
    for i, x in enumerate(ins):
        if pad[i]:
            out.append(f'  s_nop {pad[i]-1}')
        out.append(x.text)
    return out


class Asm:
    def __init__(self):
        self.L = []

    def __call__(self, s):
        for l in s.split('\n'):
            l = l.rstrip()
            if not l.strip():
                continue
            t = l.strip()
            if t.endswith(':') or t.startswith('.') or t.startswith(';'):
                self.L.append(t)
            else:
                self.L.append('  ' + t)

    def text(self):
        code = []
        for l in self.L:
            code.append(l)
        return '\n'.join(fix_hazards([l for l in code if not l.startswith(';')])) + '\n'


def kd(name, vgpr, sgpr=96, accum=None):
    if accum is None:
        accum = min(256, (vgpr + 3) // 4 * 4)
    return f'''.amdhsa_kernel {name}
  .amdhsa_next_free_vgpr {vgpr}
  .amdhsa_next_free_sgpr {sgpr}
  .amdhsa_accum_offset {accum}
  .amdhsa_group_segment_fixed_size 0
  .amdhsa_kernarg_size 112
  .amdhsa_user_sgpr_count 2
  .amdhsa_user_sgpr_kernarg_segment_ptr 1
  .amdhsa_system_sgpr_workgroup_id_x 1
  .amdhsa_float_denorm_mode_32 3
.end_amdhsa_kernel
'''
```

```python
import sys, struct
sys.path.insert(0, 'work')
from asmlib import Asm, kd

KN = 'adaLN_cond__gqa_block_cached__swiglu_ffn__decode'
f2u = lambda x: '0x%08x' % struct.unpack('<I', struct.pack('<f', x))[0]
LOG2E = f2u(1.4426950408889634)
SCALE = f2u(192 ** -0.5)
PER = 196608
sX, sK, sV, sWQ, sWO, sWG, sWU, sWD, sC, sWM, sOUT, sDBG, sWS = 64, 66, 68, 70, 72, 76, 78, 80, 82, 84, 86, 88, 90
H_MOD, H_Q, H_TS, H_FLG, H_ML = 0, 0x4000, 0xA000, 0x12000, 0x14000
H_X2, H_ACT, H_Y, H_OP, H_CLR, H_END, H_PRB = 0x1C000, 0x20000, 0x24000, 0x34000, 0x64000, 0xF4000, 0xF4000
VORD = (7, 6, 5, 3, 2, 1, 4, 0)
OPI = 98304
L_STG, L_PART, L_RED, L_ST, L_CNT, L_MLL, L_GL, L_FL, L_END = 0, 98304, 147456, 153600, 153728, 153792, 154048, 154112, 154240
C_MRG, C_HBAR, C_SEL, C_HB, C_WK, C_KC, C_IC, C_RDY = 0, 12, 16, 24, 28, 32, 36, 40
SPIN = 1 << 15
DPPM = 'row_mask:0xf bank_mask:0xf'
T_M, T_Q, T_W, T_F, T_D = 1, 2, 3, 4, 5
STAMP0 = 0x2ff00000


def sp(n):
    return f's[{n}:{n+1}]'


def vr(n, c):
    return f'v[{n}:{n+c-1}]' if c > 1 else f'v{n}'


JT = 5
RN = 1


def job_table():
    J = {i: [] for i in range(256)}
    free = {x: [8 * r + x for r in range(32)] for x in range(8)}
    if JT in (1, 4, 5):
        fx = [f // 6 for f in range(48)]
        dx = [[0, 1, 2, 3, 4, 5, 6, 7, 2, 5][d // 4] for d in range(40)]
    elif JT == 2:
        fx = [[0, 3, 6][f // 16] for f in range(48)]
        dx = [[2, 5][d // 20] for d in range(40)]
    elif JT == 3:
        fx = [[0, 1, 2, 3][f // 12] for f in range(48)]
        dx = [[0, 1, 2, 3, 0, 1, 2, 3, 4, 4][d // 4] for d in range(40)]
    for f in range(48):
        J[free[fx[f]].pop(0)] = [(T_F, f)]
    for d in range(40):
        J[free[dx[d]].pop(0)] = [(T_D, d)]
    wl = []
    for w in range(80):
        i = free[w & 7].pop(0)
        J[i] = [(T_W, w)]
        wl.append(i)
    rest = sorted(i for x in free for i in free[x])
    m2 = list(range(20, 60)); q = list(range(96))
    k = 0
    if JT < 4:
        for m in range(20):
            J[rest[k]] = [(T_M, m), (T_M, m2.pop())]; k += 1
        for _ in range(20):
            J[rest[k]] = [(T_Q, q.pop()), (T_M, m2.pop())]; k += 1
    while k < len(rest):
        J[rest[k]] = [(T_Q, q.pop())]; k += 1
    k = 0
    if JT >= 4:
        for i in range(256):
            if J[i][0][0] == T_D:
                J[i] = [(T_Q, q.pop()) if JT == 5 and q else (T_M, m2.pop())] + J[i]
        while m2:
            J[wl[k]] = [(T_M, m2.pop())] + J[wl[k]]; k += 1
        for m in range(20):
            J[wl[k]] = [(T_M, m)] + J[wl[k]]; k += 1
    while q:
        J[wl[k]] = [(T_Q, q.pop())] + J[wl[k]]; k += 1
    singles = wl[k:]
    if RN:
        cq, c1, c2 = 0, 0, 20
        for i in sorted(range(256), key=lambda i: (i & 7, i)):
            for n, (ty, ix) in enumerate(J[i]):
                if ty == T_Q:
                    J[i][n] = (ty, cq); cq += 1
                elif ty == T_M and ix < 20:
                    J[i][n] = (ty, c1); c1 += 1
                elif ty == T_M:
                    J[i][n] = (ty, c2); c2 += 1
    clr = {singles[n]: n for n in range(10)}
    words = []
    for i in range(256):
        j = J[i] + [(0, 0)]
        v = j[0][0] | j[0][1] << 4 | j[1][0] << 12 | j[1][1] << 16
        if i in clr:
            v |= (16 | clr[i]) << 24
        last = J[i][-1][0]
        v |= (last == T_W) << 30 | (last == T_F) << 31
        words.append(v)
    return words


class G:
    def __init__(self, **kw):
        self.o = dict(D=5, DX=7, BG=20, BO=25, NR=13, BI=0, bal=2, NF=24, NQ=0, stamps=0, clk=0, diag='',
                      prio=3, DQ=24, DF=24, FB=10, DD=1, DB=5, DM2=2, DW2=4, JT=5, RN=1, fast=1,
                      NP=12, sel=-1, slp=32, wks=1, EF=4, ED=1, PB=24, ND=20, U=4, N1=6,
                      WL=64, WLF=64, WLD=128, WF=64, WD=64, fsl=24, fs0=0, gw=0, TH=28, TV=0, NOM=335, kc=-1, ms=90, CL=40, CP=24, RO=12, NSM=16, sm=1, iws=8, hold=20, ptm=3, TB=0, pw=1, BW=45, BF=10, w2=0, t7=0, pf=5, lin=1, dt=0, xf=0, pt=2, ca=0, p2=1, xo=0, xs=0, xg=0, pol='')
        self.o.update(kw)
        global JT, RN
        JT, RN = self.o['JT'], self.o['RN']
        self.A = Asm()
        self.nl = 0

    def lab(self, s):
        self.nl += 1
        return f'L{self.nl}_{s}'

    def stamp(self, i, alt=0):
        m = self.o['stamps']
        if (m in (1, 3) and not alt) or (m == 2 and (alt == 1 or i in (0, 6))) or (m == 3 and alt == 3):
            self.A(f'{"s_memtime" if self.o["clk"] else "s_memrealtime"} {sp(48+2*i)}')

    def dump_stamps(self, area):
        if not self.o['stamps'] or self.o['diag']:
            return
        A = self.A
        A('s_mov_b64 exec, 1')
        A('s_getreg_b32 s62, hwreg(HW_REG_XCC_ID)')
        A('s_mov_b32 s63, s3')
        A('s_waitcnt lgkmcnt(0)')
        A('s_lshl_b32 s8, s2, 7')
        A(f's_add_u32 s8, s8, {STAMP0 + area}')
        A('v_mov_b32 v1, s8')
        for i in range(16):
            A(f'v_mov_b32 v{112+i}, s{48+i}')
        for i in range(4):
            A(f'global_store_dwordx4 v1, {vr(112+4*i,4)}, {sp(sWS)} offset:{16*i}')

    def rbf(self, v):
        self.A(f'v_cvt_pk_bf16_f32 {v}, {v}, {v}')
        self.A(f'v_lshlrev_b32 {v}, 16, {v}')

    def unpack(self, dst, src, n):
        for i in range(n):
            self.A(f'v_and_b32 v{dst+2*i+1}, 0xffff0000, v{src+i}')
            self.A(f'v_lshlrev_b32 v{dst+2*i}, 16, v{src+i}')

    def pack(self, dst, src, n):
        for i in range(n):
            self.A(f'v_cvt_pk_bf16_f32 v{dst+i}, v{src+2*i}, v{src+2*i+1}')

    def rbf8(self, x, t):
        self.pack(t, x, 4)
        self.unpack(x, t, 4)

    def pk(self, op, d, a, b, n=4, bstep=2, mods=''):
        for i in range(n):
            self.A(f'v_pk_{op}_f32 {vr(d+2*i,2)}, {vr(a+2*i,2)}, {vr(b+bstep*i,2)} {mods}')

    def xrow(self, op, v, t):
        for sw in ('v_permlane16_swap_b32', 'v_permlane32_swap_b32'):
            self.A(f'v_mov_b32 {t}, {v}')
            self.A(f'{sw} {v}, {t}')
            self.A(f'{op} {v}, {v}, {t}')

    def rowred(self, op, v, modes):
        for m in modes:
            self.A(f'{op}_dpp {v}, {v}, {v} {m} {DPPM}')

    ROW16 = ('quad_perm:[1,0,3,2]', 'quad_perm:[2,3,0,1]', 'row_half_mirror', 'row_mirror')
    ROWPAR = ('quad_perm:[2,3,0,1]', 'row_ror:4', 'row_ror:8')

    def silu(self, v, t, u):
        A = self.A
        A(f'v_mul_f32 {t}, {LOG2E}, {v}')
        A(f'v_exp_f32 {t}, -{t}')
        A(f'v_add_f32 {t}, 1.0, {t}')
        A(f'v_rcp_f32 {u}, {t}')
        A(f'v_mul_f32 v2, {v}, {u}')
        A(f'v_fma_f32 v3, -v2, {t}, {v}')
        A(f'v_fma_f32 v2, v3, {u}, v2')
        A(f'v_div_fixup_f32 {v}, v2, {t}, {v}')

    def invalid(self, regs, t):
        A = self.A
        regs = list(regs)
        if len(regs) == 1:
            A(f'v_cmp_eq_u32 vcc, -1, v{regs[0]}')
            return
        cur = f'v{regs.pop(0)}'
        while regs:
            if len(regs) >= 2:
                A(f'v_max3_u32 {t}, {cur}, v{regs.pop(0)}, v{regs.pop(0)}')
            else:
                A(f'v_max_u32 {t}, {cur}, v{regs.pop(0)}')
            cur = t
        A(f'v_cmp_eq_u32 vcc, -1, {t}')

    def poll(self, loads, regs, t, sleep=0, cnt='s9', mask=False):
        A = self.A
        top, done = self.lab('poll'), self.lab('pdone')
        A(f's_mov_b32 {cnt}, {SPIN}')
        A(f'{top}:')
        loads()
        A('s_waitcnt vmcnt(0)')
        self.invalid(regs, t)
        A(f's_cbranch_vccz {done}')
        if mask:
            A('s_mov_b64 exec, vcc')
        if sleep:
            A(f's_sleep {sleep}')
        A(f's_sub_u32 {cnt}, {cnt}, 1')
        A(f's_cbranch_scc0 {top}')
        A(f'{done}:')
        if mask:
            A('s_mov_b64 exec, -1')

    def spoll(self, loads, work, lanes=None, one=None):
        A = self.A
        top, done = self.lab('spoll'), self.lab('sdone')
        A(f's_mov_b32 s9, {SPIN}')
        A(f's_mov_b64 vcc, {lanes or -1}')
        A(f'{top}:')
        A('s_sub_u32 s9, s9, 1')
        A(f's_cbranch_scc1 {done}')
        A('s_mov_b64 exec, vcc')
        if one:
            A(one[0])
        for t, r in loads:
            A(t)
        A('s_mov_b64 exec, -1')
        for i, (t, r) in enumerate(loads):
            A(f's_waitcnt vmcnt({len(loads)-1-i})')
            if i == 0 and one:
                chk = [f'v_max3_u32 v1, v{one[1]}, v{r}, v{r+1}', f'v_max3_u32 v1, v1, v{r+2}, v{r+3}']
            elif i == 0:
                chk = [f'v_max3_u32 v1, v{r}, v{r+1}, v{r+2}', f'v_max_u32 v1, v1, v{r+3}']
            else:
                chk = [f'v_max3_u32 v1, v1, v{r}, v{r+1}', f'v_max3_u32 v1, v1, v{r+2}, v{r+3}']
            w = list(work[i])
            A(w.pop(0))
            for c in chk:
                A(c)
            if i + 1 == len(loads):
                A('v_cmp_eq_u32 vcc, -1, v1')
            for x in w:
                A(x)
        if lanes:
            A(f's_and_b64 vcc, vcc, {lanes}')
        A(f's_cbranch_vccnz {top}')
        A(f'{done}:')

    def flags_addr(self, va, both):
        A = self.A
        A(f'v_and_b32 {va}, 7, v0')
        if both:
            A('v_cmp_gt_u32 vcc, 32, v0')
            A(f'v_cndmask_b32 {va}, v0, {va}, vcc')
        A(f'v_lshlrev_b32 {va}, 2, {va}')

    def flags_wait(self, va, vd, cnt='s9'):
        A = self.A
        top, done = self.lab('flag'), self.lab('fdone')
        A(f's_mov_b32 {cnt}, {SPIN}')
        A(f'{top}:')
        A(f'global_load_dword {vd}, {va}, {sp(sDBG)} sc1')
        A('s_waitcnt vmcnt(0)')
        A(f'v_cmp_eq_u32 vcc, 0, {vd}')
        A(f's_cbranch_vccz {done}')
        A('s_sleep 8')
        A(f's_sub_u32 {cnt}, {cnt}, 1')
        A(f's_cbranch_scc0 {top}')
        A(f'{done}:')

    def op_addr(self, dst, rd, rdbase):
        A = self.A
        A('s_and_b32 s44, s2, 7')
        A('s_lshr_b32 s45, s2, 3') if dst == 'v57' else A('s_lshr_b32 s8, s2, 3')
        A('s_lshl_b32 s44, s44, 5')
        A(f's_add_u32 s44, s44, {"s45" if dst == "v57" else "s8"}')
        A('s_mul_i32 s44, s44, 384')
        A(f's_add_u32 s44, s44, {H_OP}')
        A('v_and_b32 v1, 0x31, v0')
        if self.o['lin']:
            A('v_bfe_u32 v2, v0, 2, 2')
            A('v_lshl_add_u32 v1, v2, 1, v1')
            A('v_bfe_u32 v2, v0, 1, 1')
            A('v_lshl_add_u32 v1, v2, 3, v1')
            A(f'v_lshl_add_u32 {dst}, v0, 3, s44')
        else:
            A('v_bfe_u32 v2, v0, 1, 2')
            A('v_lshl_add_u32 v1, v2, 2, v1')
            A('v_bfe_u32 v2, v0, 3, 1')
            A('v_lshl_add_u32 v1, v2, 1, v1')
            A(f'v_lshl_add_u32 {dst}, v1, 3, s44')
            A('v_mov_b32 v1, v0')
        A('v_min_u32 v1, 47, v1')
        A('v_lshlrev_b32 v1, 4, v1')
        A(f'v_add_u32 {rd}, {rdbase}, v1')

    def mode_store(self, text, mode):
        A = self.A
        thru, done = self.lab('thru'), self.lab('stored')
        A(f's_cmp_lg_u32 {mode}, 2')
        A(f's_cbranch_scc1 {thru}')
        A(text + ' ' + self.o['pol'])
        A(f's_branch {done}')
        A(f'{thru}:')
        A(text + ' sc1')
        A(f'{done}:')

    def lwait(self, off, test, sleep):
        A = self.A
        top, done = self.lab('lw'), self.lab('lwd')
        A(f'v_mov_b32 v1, {L_CNT}')
        A(f's_mov_b32 s9, {SPIN*8}')
        A(f'{top}:')
        A(f'ds_read_b32 v2, v1 offset:{off}')
        A('s_waitcnt lgkmcnt(0)')
        A('v_readfirstlane_b32 s8, v2')
        test()
        A(f's_cbranch_scc1 {done}')
        A(f's_sleep {sleep}')
        A('s_sub_u32 s9, s9, 1')
        A(f's_cbranch_scc0 {top}')
        A(f'{done}:')

    def item_wait(self, bit):
        self.lwait(C_IC, lambda: self.A(f's_bitcmp1_b32 s8, {bit}'), self.o['iws'])

    def ws_srd(self):
        A = self.A
        A(f's_mov_b32 s4, s{sWS}')
        A(f's_mov_b32 s5, s{sWS+1}')
        A(f's_mov_b32 s6, {H_END}')
        A('s_mov_b32 s7, 0x20000')

    RING, Q, S = 64, 16, 28

    def entry(self):
        A = self.A
        n = KN + '_kernel'
        A('.amdgcn_target "amdgcn-amd-amdhsa--gfx950"')
        A('.text')
        A(f'.globl {n}')
        A('.p2align 8')
        A(f'.type {n},@function')
        A(f'{n}:')
        A('s_cmp_ge_u32 s2, 256')
        A('s_cbranch_scc1 L_end')
        self.stamp(0)
        A('s_load_dwordx16 s[64:79], s[0:1], 0')
        A('v_lshrrev_b32 v1, 6, v0')
        A('s_load_dwordx8 s[80:87], s[0:1], 64')
        A('v_readfirstlane_b32 s3, v1')
        A('s_load_dwordx4 s[88:91], s[0:1], 96')
        A('v_and_b32 v0, 63, v0')
        A('s_cmp_ge_u32 s3, 4')
        A('s_cbranch_scc1 L_helper')
        A('s_and_b32 s13, s2, 7')
        A('s_lshr_b32 s14, s2, 4')
        A('s_lshl4_add_u32 s34, s13, s14')
        A(f's_mul_i32 s34, s34, {PER}')
        A('s_bfe_u32 s12, s2, 0x10003')
        A('s_lshl2_add_u32 s12, s12, s3')
        A('s_mul_i32 s36, s12, 392')
        A('s_lshr_b32 s36, s36, 10')
        A('s_mul_i32 s36, s36, 22')
        A('s_lshl3_add_u32 s36, s12, s36')
        A('s_mul_i32 s36, s36, 1536')
        A('v_and_b32 v1, 1, v0')
        A('v_lshrrev_b32 v2, 4, v0')
        A('v_lshl_add_u32 v1, v1, 2, v2')
        A('v_lshlrev_b32 v51, 4, v1')
        A('v_bfe_u32 v1, v0, 1, 2')
        A('v_bfe_u32 v2, v0, 3, 1')
        A('v_mul_u32_u24 v2, 84, v2')
        A('v_add_u32 v1, v1, v2')
        A('v_mul_u32_u24 v1, 384, v1')
        A('v_add_u32 v40, v1, v51')
        A(f's_mov_b32 s10, {PER}')
        A('s_mov_b32 s11, 0x20000')
        self.stamp(5, 1)
        A('s_waitcnt lgkmcnt(0)')
        self.stamp(1, 1)
        A(f's_add_u32 s8, s{sK}, s34')
        A(f's_addc_u32 s9, s{sK+1}, 0')
        for n in range(self.o['N1']):
            A(f'buffer_load_dwordx4 {vr(self.RING+4*n,4)}, v40, s[8:11], s36 offen offset:{1536*(n//3) + 128*(n%3)} nt')
        A('s_barrier')
        A('s_branch L_stream')

    def stream(self):
        A = self.A
        o = self.o
        D, bal = o['D'], o['bal']
        DX = o['DX'] if bal else D
        RING, Q, S = self.RING, self.Q, self.S
        A('L_stream:')
        for t in range(1, 8):
            A(f's_lshl3_add_u32 s44, s12, {t}')
            A('s_mul_i32 s45, s44, 49')
            A('s_lshr_b32 s45, s45, 10')
            A('s_mul_i32 s45, s45, 22')
            A('s_add_u32 s45, s45, s44')
            A(f's_mul_i32 s{36+t}, s45, 1536')
        A('s_cmp_eq_u32 s12, 7')
        A(f's_cselect_b32 s43, {42*1536}, s43')
        A(f's_cselect_b32 s44, {22*1536}, 0')
        A('v_bfe_u32 v1, v0, 3, 1')
        A('v_mad_u32_u24 v41, v1, s44, v40')
        A('v_bfe_u32 v1, v0, 3, 2')
        A('v_lshrrev_b32 v2, 5, v0')
        A('v_mul_u32_u24 v3, 84, v2')
        A('v_add_u32 v1, v1, v3')
        A('v_mul_u32_u24 v1, 384, v1')
        A('v_and_b32 v3, 7, v0')
        A('v_lshl_add_u32 v38, v3, 4, v1')
        A('v_mad_u32_u24 v39, v2, s44, v38')

        A('s_mov_b64 s[14:15], s[8:9]')
        A('s_mov_b32 s97, 0x07654321')

        def nxt_slice():
            A('s_and_b32 s46, s97, 7')
            A('s_lshr_b32 s97, s97, 4')
            A(f's_mul_i32 s46, s46, {128*PER}')
            A('s_add_u32 s8, s14, s46')
            A('s_addc_u32 s9, s15, 0')

        def load(n):
            k = n % 24
            t = k // 3
            A(f'buffer_load_dwordx4 {vr(RING+4*n,4)}, v{41 if t == 7 else 40}, s[8:11], s{36+t} offen offset:{128*(k%3)} nt')
            if k == 23:
                nxt_slice()

        def setup():
            self.ws_srd()
            A('s_getpc_b64 s[98:99]')
            A('L_pc2:')
            A('s_add_u32 s98, s98, L_tab-L_pc2')
            A('s_addc_u32 s99, s99, 0')
            A('s_lshl_b32 s44, s2, 2')
            A('s_load_dword s93, s[98:99], s44')
            A('s_mov_b32 s16, 0xff00ff00')
            A('s_mov_b32 s17, 0xff00ff00')
            for t in range(8):
                A(f's_mov_b32 s{18+2*t}, {0x01010101 << t}')
                A(f's_mov_b32 s{19+2*t}, {0x01010101 << t}')
            yield
            A('v_and_b32 v1, 1, v0')
            A('v_lshlrev_b32 v1, 4, v1')
            A('v_mov_b32 v2, 0xffff')
            A('v_lshlrev_b32 v1, v1, v2')
            A('v_bfe_u32 v2, v0, 1, 2')
            for w in range(4):
                A(f'v_cmp_eq_u32 vcc, {w}, v2')
                A(f'v_cndmask_b32 v{42+w}, 0, v1, vcc')
            yield
            A('v_bfe_u32 v1, v0, 3, 2')
            A('v_mul_u32_u24 v1, 6144, v1')
            A('v_lshrrev_b32 v2, 5, v0')
            A('v_lshl_add_u32 v1, v2, 7, v1')
            A('v_and_b32 v2, 7, v0')
            A('v_lshl_add_u32 v1, v2, 4, v1')
            A('s_mul_i32 s44, s13, 768')
            A(f's_add_u32 s44, s44, {H_Q}')
            A('v_add_u32 v50, s44, v1')
            A('s_mul_i32 s35, s3, 12288')
            A(f's_add_u32 s35, s35, {L_PART}')
            A('v_add_u32 v51, s35, v51')
            A('v_lshrrev_b32 v1, 4, v0')
            A('v_lshlrev_b32 v1, 5, v1')
            A(f's_lshl3_add_u32 s44, s3, {L_MLL}')
            A('v_add_u32 v52, s44, v1')
            self.flags_addr('v54', True)
            yield
            if bal:
                sh = 4 if o['NSM'] == 16 else 5
                A(f's_lshr_b32 s45, s2, {sh}')
                A(f's_and_b32 s44, s2, {(1 << sh) - 1}')
                A('s_xor_b32 s44, s44, s45')
                A('s_bfe_u32 s46, s2, 0x20001')
                A('s_xor_b32 s46, s46, s3')
                A('s_or_b32 s92, s44, s46')
                A('s_lshl_b32 s45, s45, 7')
                A(f's_add_u32 s45, s45, {H_TS}')
                A('v_mov_b32 v58, s45')
                A(f's_mov_b32 s100, {o["BI"]}')
                A(f's_add_u32 s64, s{sWS}, {H_TS}')
                A(f's_addc_u32 s65, s{sWS+1}, 0')
            yield
            A('s_waitcnt lgkmcnt(0)')
            b0 = o['BO'] + o['BG'] // 2 if bal == 1 else -o['TH']
            A(f's_mov_b32 s101, {16*b0}')
            A('s_bitcmp1_b32 s93, 30')
            A(f's_cselect_b32 s101, {16*(b0 + o["BW"])}, s101')
            A('s_bitcmp1_b32 s93, 31')
            A(f's_cselect_b32 s101, {16*(b0 + o["BF"])}, s101')
            A('v_lshrrev_b32 v1, 5, v0')
            A('v_mul_u32_u24 v1, 768, v1')
            A('v_bfe_u32 v2, v0, 4, 1')
            A('v_lshl_add_u32 v1, v2, 7, v1')
            A('v_and_b32 v2, 7, v0')
            A('v_lshl_add_u32 v1, v2, 4, v1')
            A('v_add_u32 v62, s35, v1')
            self.op_addr('v57', 'v56', L_PART + 7 * 1536)
            A('s_mov_b32 s94, 0x00ff00ff')
            A('s_mov_b32 s95, 0xff00ff00')
            A('v_mov_b32 v55, 1')
            A('v_mov_b32 v60, 1')
            A(f'v_mov_b32 v63, {L_CNT}')
            yield

        def qloads():
            for j in range(3):
                A(f'buffer_load_dwordx4 {vr(Q+4*j,4)}, v50, s[4:7], 0 offen offset:{256*j} sc1')
        NF, NQ = o['NF'], o['NQ'] or 47 - D
        assert NQ - NF > D + 1
        su = setup()
        for n in range(o['N1'], 48):
            ex = (1 if NF < n <= NF + D else 0) + (3 if NQ < n <= NQ + D else 0)
            A(f's_waitcnt vmcnt({D-1+ex})')
            if n in (6, 10, 16):
                self.stamp({6: 2, 10: 3, 16: 4}[n], 1)
            load(n)
            if n >= 8 and n % 2 == 0:
                next(su, None)
            if n == NF:
                A(f'global_load_dword v53, v54, {sp(sDBG)} sc1')
            if n == NQ:
                ok = self.lab('fok')
                A('v_cmp_eq_u32 vcc, 0, v53')
                A(f's_cbranch_vccz {ok}')
                self.flags_wait('v54', 'v53', 's99')
                A(f'{ok}:')
                qloads()
        self.stamp(1)
        A(f's_waitcnt vmcnt({47-NQ})')
        ok = self.lab('qok')
        self.invalid(range(Q, Q + 12), 'v1')
        A(f's_cbranch_vccz {ok}')
        self.poll(qloads, range(Q, Q + 12), 'v1', cnt='s99')
        A(f'{ok}:')
        A('v_lshl_add_u32 v1, v0, 4, s35')
        for j in range(3):
            A(f'ds_write_b128 v1, {vr(Q+4*j,4)} offset:{1024*j}')
        for j in range(3):
            A(f'ds_read_b128 {vr(Q+4*j,4)}, v51 offset:{1024*j}')
        self.stamp(2)
        NR, PB, ND, U = o['NR'], o['PB'], o['ND'], o['U']
        NB = PB // U
        assert ND % U == 0 and ND <= PB and NR + 3 < ND

        def wait(n, extra=-100):
            ex = lambda d: 1 if extra < n <= extra + d else 0
            if not bal:
                A(f's_waitcnt vmcnt({D-1+ex(D)})')
                return
            if n % U == 0 and bal == 1:
                A(f's_bitcmp1_b32 s100, {((n - ND) // U) % NB}')
                A('s_cselect_b64 vcc, -1, 0')
            l = self.lab('x')
            A(f's_waitcnt vmcnt({DX-1+ex(DX)})')
            A(f's_cbranch_vccnz {l}')
            A(f's_waitcnt vmcnt({D-1+ex(D)})')
            A(f'{l}:')

        CP, RO, NSM = o['CP'], o['RO'], o['NSM']
        back = (U - 1 + RO) // CP
        if bal == 2:
            assert RO % U == 0 and CP % U == 0 and (U - 1 + RO) % CP + U < CP + (CP == 24) * 0 + 1
            assert (336 // CP + back) * NSM * 128 <= H_FLG - H_TS
            A('s_memrealtime s[0:1]')
            A(f's_mov_b32 s87, {16*o["NOM"]*U//24}')
            A('s_mov_b32 s86, 0')
            A(f's_mov_b32 s98, {1 + back}')
            A('s_mov_b64 vcc, 0')
            A(f'v_add_u32 v58, {back*NSM*128}, v58')
            if o['kc'] >= 0:
                A('v_lshl_add_u32 v58, v0, 6, v58')
                A(f's_getreg_b32 s44, hwreg(HW_REG_HW_ID, {o["kc"]}, 1)')
                A('s_lshl_b32 s44, s44, 6')
                A('s_add_u32 s64, s64, s44')
                A('s_addc_u32 s65, s65, 0')
            A('s_waitcnt lgkmcnt(0)')
            A('s_add_u32 s100, s0, 100000')
            A('s_lshl_b32 s100, s100, 4')

        def balance2(n):
            n = n % CP
            if n % U == U - 2:
                A('s_memrealtime s[0:1]')
            if n % U == U - 1:
                A('s_waitcnt lgkmcnt(0)')
                A('s_lshl4_add_u32 s44, s0, s101')
                A('s_sub_u32 s44, s44, s100')
                A('s_add_u32 s100, s100, s87')
                A('s_cmp_gt_i32 s44, 0')
                A('s_cselect_b64 vcc, -1, 0')
            if n == U - 1:
                l = self.lab('nopub')
                A('s_cmp_lg_u32 s92, 0')
                A(f's_cbranch_scc1 {l}')
                A('v_mov_b32 v59, s0')
                A(f's_mov_b64 exec, {3 if o["kc"] >= 0 else 1}')
                A('buffer_store_dword v59, v58, s[4:7], 0 offen sc1')
                A('s_mov_b64 exec, -1')
                A(f'v_add_u32 v58, {NSM*128}, v58')
                A(f'{l}:')
            if n == (U - 1 + RO) % CP:
                for i in range(NSM):
                    A(f's_load_dword s{70+i}, s[64:65], {128*i}')
            if n == (U - 1 + RO) % CP + U:
                A(f's_add_u32 s64, s64, {NSM*128}')
                A('s_addc_u32 s65, s65, 0')
                A('s_mov_b32 s45, 0')
                st = 's0'
                if o['ms']:
                    A('s_sub_u32 s47, s44, s101')
                    A('s_max_i32 s47, s47, 0')
                    A('s_lshr_b32 s47, s47, 4')
                    A(f's_add_u32 s47, s47, {o["ms"]}')
                    A('s_sub_u32 s47, s0, s47')
                    st = 's47'
                for i in range(NSM):
                    A(f's_cmp_eq_u32 s{70+i}, -1')
                    A(f's_cselect_b32 s{70+i}, {st}, s{70+i}')
                    A(f's_add_u32 s45, s45, s{70+i}')
                if NSM == 8:
                    A('s_lshl_b32 s45, s45, 1')
                A('s_sub_u32 s44, s45, s86')
                A('s_mov_b32 s86, s45')
                A(f's_mul_i32 s1, s87, {CP // U}')
                A('s_sub_u32 s44, s44, s1')
                A(f's_min_i32 s44, s44, {16*o["CL"]}')
                A(f's_max_i32 s44, s44, {-16*o["CL"]}')
                A(f's_mul_hi_i32 s44, s44, {(2**32 * U // CP) >> o["sm"]}')
                A('s_add_u32 s44, s44, s87')
                A('s_sub_u32 s98, s98, 1')
                A('s_cselect_b32 s87, s44, s87')
                A('s_cselect_b32 s98, 0, s98')
                A(f's_mul_i32 s44, s87, {RO//U + 2}')
                A('s_add_u32 s100, s45, s44')

        def balance(n, last=False):
            if not bal:
                return
            if bal == 2:
                return balance2(n)
            if last and n - n % PB + ND >= 48:
                return
            n = n % PB
            if n == 0:
                A('s_memrealtime s[0:1]')
            if n == 1:
                l = self.lab('nopub')
                A('s_cmp_lg_u32 s92, 0')
                A(f's_cbranch_scc1 {l}')
                A('s_waitcnt lgkmcnt(0)')
                A('v_mov_b32 v59, s0')
                A('s_mov_b64 exec, 1')
                A('buffer_store_dword v59, v58, s[4:7], 0 offen sc1')
                A('s_mov_b64 exec, -1')
                A('v_add_u32 v58, 2048, v58')
                A(f'{l}:')
            if n == NR:
                for i in range(16):
                    A(f's_load_dword s{70+i}, s[64:65], {128*i}')
            if n == ND - 2:
                A('s_waitcnt lgkmcnt(0)')
                A('s_add_u32 s64, s64, 2048')
                A('s_addc_u32 s65, s65, 0')
                A(f's_add_u32 s1, s0, {int(NR*13.8)+40}')
                A('s_lshl_b32 s86, s0, 4')
            if n in (ND - 2, ND - 1):
                for i in range(8 * (n - ND + 2), 8 * (n - ND + 3)):
                    A(f's_cmp_eq_u32 s{70+i}, -1')
                    A(f's_cselect_b32 s{70+i}, s1, s{70+i}')
                    A(f's_sub_u32 s86, s86, s{70+i}')
            if n == ND - 1:
                A('s_add_i32 s44, s86, s101')
                A('s_max_i32 s44, s44, 0')
                A(f's_mul_hi_u32 s44, s44, {2**32 // (16*o["BG"])}')
                A(f's_lshr_b32 s45, s100, {NB - ND // U}')
                A('s_bcnt1_i32_b32 s45, s45')
                A('s_sub_i32 s44, s44, s45')
                A('s_max_i32 s44, s44, 0')
                A(f's_min_i32 s44, s44, {NB}')
                A('s_bfm_b32 s100, s44, 0')

        def ldsadd(v):
            A(f'v_mov_b32 v7, {v}')
            A('s_mov_b64 exec, 1')
            A(f'ds_add_u32 v63, v7 offset:{C_WK}')
            A('s_mov_b64 exec, -1')
        A('s_mov_b32 s99, 0')
        A('L_kloop:')
        A('s_cmp_lg_u32 s99, 3')
        A('s_cbranch_scc1 L_knosw')
        A(f's_add_u32 s14, s{sV}, s34')
        A(f's_addc_u32 s15, s{sV+1}, 0')
        A(f's_mov_b32 s97, {sum(x << (4*i) for i, x in enumerate(VORD if not o["xo"] else range(8)))}')
        nxt_slice()
        A('v_mov_b32 v40, v38')
        A('v_mov_b32 v41, v39')
        ldsadd(1)
        if o['p2']:
            A('s_setprio 2')
        A('L_knosw:')

        def extract(t):
            d = 8 + 4 * (t & 1)
            A(f'v_cndmask_b32 v2, v{d}, v{d+2}, s[16:17]')
            A(f'v_cndmask_b32 v3, v{d+1}, v{d+3}, s[16:17]')
            if t & 1:
                A(f'v_add_f32_dpp v2, v2, v3 quad_perm:[1,0,3,2] {DPPM}')
            else:
                A(f'v_add_f32_dpp v2, v3, v2 quad_perm:[1,0,3,2] {DPPM}')
            A(f'v_cndmask_b32 v36, v36, v2, {sp(18+2*t)}')

        def score(i):
            self.rbf('v36')
            A(f'v_mul_f32 v36, {SCALE}, v36')
            A('v_cvt_pk_bf16_f32 v36, v36, v36')
            if i == 0:
                for x in range(6):
                    A(f'v_mov_b32 v{S+x}, v{S+x+2}')
            A(f'v_lshlrev_b32 v{S+6+i}, 16, v36')
        for n in range(48):
            k = n % 24
            t, j = k // 3, k % 3
            d = 8 + 4 * (t & 1)
            if k == 0:
                A('s_waitcnt lgkmcnt(0)')
            A(f'v_mfma_f32_16x16x32_bf16 {vr(d,4)}, {vr(RING+4*n,4)}, {vr(Q+4*j,4)}, {"0" if j == 0 else vr(d,4)}')
            if t == 7:
                A(f'ds_read_b128 {vr(Q+4*j,4)}, v51 offset:{1024*j + 128*(n//24 + 1)}')
            wait(n)
            load(n)
            balance(n)
            if o['TB'] and n == 24 + ND - 1:
                A('s_cmp_eq_u32 s99, 3')
                A(f's_cselect_b32 s44, {o["TB"]}, 0')
                A('s_or_b32 s100, s100, s44')
            if j == 0 and n > 0:
                extract((t - 1) & 7)
                if n == 24:
                    score(0)
        extract(7)
        score(1)
        A('v_add_u32 v51, 256, v51')
        A('s_add_u32 s99, s99, 1')
        A('s_cmp_lt_u32 s99, 4')
        A('s_cbranch_scc1 L_kloop')
        self.stamp(3)
        T = 8

        def tree(op, d0, d1):
            for a in (0, 1, 4, 5):
                A(f'v_permlane32_swap_b32 v{T+a}, v{T+a+2}')
            for a in (0, 1, 4, 5):
                A(f'{op} v{T+a}, v{T+a}, v{T+a+2}')
            for a in (0, 4):
                A(f'v_permlane16_swap_b32 v{T+a}, v{T+a+1}')
            A(f'{op} v{d0}, v{T}, v{T+1}')
            A(f'{op} v{d1}, v{T+4}, v{T+5}')
            for m in self.ROW16:
                for d in (d0, d1):
                    A(f'{op}_dpp v{d}, v{d}, v{d} {m} {DPPM}')
        for i in range(8):
            A(f'v_mov_b32 v{T+i}, v{S+VORD[i]}')
        tree('v_max_f32', 46, 48)
        for i in range(8):
            A(f'v_readlane_b32 s{70+i}, v{46+2*(i>>2)}, {16*(i&3)}')
        for i in range(8):
            A(f'v_subrev_f32 v{T+i}, s{70+i}, v{S+VORD[i]}')
        for i in range(8):
            A(f'v_mul_f32 v{T+i}, {LOG2E}, v{T+i}')
        for i in range(8):
            A(f'v_exp_f32 v{T+i}, v{T+i}')
        for i in range(8):
            A(f'v_cvt_pk_bf16_f32 v{S+i}, v{T+i}, v{T+i}')
        tree('v_add_f32', 47, 49)
        A('s_mov_b32 exec_lo, 0x00010001')
        A('s_mov_b32 exec_hi, 0x00010001')
        A('ds_write_b64 v52, v[46:47]')
        A('ds_write_b64 v52, v[48:49] offset:128')
        A('s_mov_b64 exec, 1')
        A(f'ds_add_u32 v63, v55 offset:{C_KC}')
        A('s_mov_b64 exec, -1')
        A('s_waitcnt lgkmcnt(0)')

        def pv(c):
            t = (c % 24) // 3
            b = 8 + 4 * (t & 1)
            A(f'v_mov_b32_dpp v6, v{S+c//24} row_newbcast:{t} row_mask:0xf bank_mask:0x3')
            A(f'v_mov_b32_dpp v37, v{S+c//24} row_newbcast:{8+t} row_mask:0xf bank_mask:0xc')
            A('v_or_b32 v5, v6, v37')
            for w in range(4):
                A(f'v_and_b32 v{b+w}, v5, v{42+w}')

        def pm(c):
            t, j = (c % 24) // 3, c % 3
            b = 8 + 4 * (t & 1)
            A(f'v_mfma_f32_16x16x32_bf16 {vr(Q+4*j,4)}, {vr(RING+4*(c%48),4)}, {vr(b,4)}, {"0" if t == 0 else vr(Q+4*j,4)}')

        def flush():
            A('s_mov_b64 exec, s[94:95]')
            for j in range(3):
                A(f'ds_write_b128 v62, {vr(Q+4*j,4)} offset:{256*j}')
            A('s_mov_b64 exec, 1')
            A(f'ds_add_u32 v63, v60 offset:{C_IC}')
            A('s_mov_b64 exec, -1')
            A('v_add_u32 v62, 1536, v62')
            A('v_lshlrev_b32 v60, 4, v60')

        def factor():
            top, done = self.lab('rdy'), self.lab('rdyd')
            A(f's_lshl2_add_u32 s44, s3, {L_FL + 7*16}')
            A('v_mov_b32 v2, s44')
            A(f's_mov_b32 s99, {SPIN*8}')
            A(f'{top}:')
            A(f'ds_read_b32 v1, v63 offset:{C_RDY}')
            A('ds_read_b32 v46, v2')
            A('s_waitcnt lgkmcnt(0)')
            A('v_readfirstlane_b32 s96, v1')
            A('s_cmp_lg_u32 s96, 0')
            A(f's_cbranch_scc1 {done}')
            A('s_sub_u32 s99, s99, 1')
            A(f's_cbranch_scc0 {top}')
            A(f'{done}:')
        A('v_mov_b32 v6, 0')
        A('v_mov_b32 v37, 0')
        LAG = 9
        assert LAG > DX

        def consume(c):
            if c % 24 == 0 and c:
                flush()
            if c % 3 == 0:
                pv(c)
            pm(c)
        c = 0
        for n in range(48):
            while c < min(2 * n + 2, 49 + n - LAG):
                consume(c)
                c += 1
            wait(n)
            load(n)
            balance(n)
        assert c == 96 - LAG
        A('s_mov_b32 s99, 0')
        A('L_vloop:')
        for i in range(6):
            A(f'v_mov_b32 v{S+i}, v{S+i+2}')
        for n in range(48):
            consume(48 + n - LAG)
            wait(n)
            load(n)
            balance(n)
        if o['TV']:
            A(f's_sub_u32 s101, s101, {16*o["TV"]}')
        A('s_add_u32 s99, s99, 1')
        A('s_cmp_lt_u32 s99, 2')
        A('s_cbranch_scc1 L_vloop')
        ldsadd(16)
        factor()
        self.stamp(4)
        nxt = (c + 2) // 3
        while c < 96:
            while nxt < 32 and nxt <= (c + 2) // 3:
                pv(3 * nxt)
                nxt += 1
            if 95 - c < DX:
                A(f's_waitcnt vmcnt({95-c})')
            pm(c)
            c += 1
        self.stamp(5)
        A('s_mov_b64 exec, s[94:95]')
        for j in range(3):
            for h in range(2):
                A(f'v_pk_mul_f32 {vr(Q+4*j+2*h,2)}, {vr(Q+4*j+2*h,2)}, v[46:47] op_sel_hi:[1,0]')
            A(f'ds_write_b128 v62, {vr(Q+4*j,4)} offset:{256*j}')
        A('s_mov_b64 exec, 1')
        A('ds_add_rtn_u32 v1, v63, v55')
        A('s_mov_b32 exec_lo, -1')
        A('s_mov_b32 exec_hi, 0xffff')
        for w in range(4):
            for h in range(2):
                A(f'ds_read_b128 {vr(64+8*w+4*h,4)}, v56 offset:{12288*w + 768*h}')
        A('s_waitcnt lgkmcnt(0)' if o['stamps'] else 's_waitcnt lgkmcnt(8)')
        A('v_readfirstlane_b32 s44, v1')
        A('s_cmp_lg_u32 s44, 3')
        A('s_cbranch_scc1 L_end')
        for w in range(4):
            A(f's_waitcnt lgkmcnt({6-2*w})')
            self.pk('add', 64 + 8 * w, 64 + 8 * w, 68 + 8 * w, n=2)
            if w:
                self.pk('add', 64, 64, 64 + 8 * w, n=2)
        self.pack(2, 64, 2)
        A('v_min_u32 v2, -2, v2')
        A('v_min_u32 v3, -2, v3')
        self.mode_store('buffer_store_dwordx2 v[2:3], v57, s[4:7], 0 offen', 's96')
        ldsadd(64)
        self.stamp(6)
        self.dump_stamps(0)
        A('L_end:')
        A('s_endpgm')

    WR = 128

    def dma_addr(self, ptr, rowbase_s, stride, colb_s):
        A = self.A
        A(f's_mul_i32 s10, {rowbase_s}, {stride}')
        A(f's_add_u32 s10, s10, {colb_s}')
        A(f's_add_u32 s10, s{ptr}, s10')
        A(f's_addc_u32 s11, s{ptr+1}, 0')
        A(f'v_mul_u32_u24 v1, {stride}, v18')
        A('v_lshl_add_u32 v10, v19, 4, v1')
        A('v_xor_b32 v2, 4, v19')
        A('v_lshl_add_u32 v12, v2, 4, v1')
        A(f'v_add_u32 v12, {8*stride}, v12')
        A('v_mov_b32 v11, 0')
        A('v_mov_b32 v13, 0')
        A('v_lshl_add_u64 v[10:11], v[10:11], 0, s[10:11]')
        A('v_lshl_add_u64 v[12:13], v[12:13], 0, s[10:11]')

    def dma_issue(self, NS, stride, pol, DH, burst=0, cond=0, s0=0, jump=None, hold=0):
        A = self.A
        A(f's_mov_b32 s10, {16*stride}')
        A('s_mov_b32 s11, 0')
        self.stamp(4, 1)
        A(f's_add_u32 m0, s37, {4096*s0}')
        for i in range(4 * (NS - s0)):
            a = 10 + 2 * (i & 1)
            if jump and i + 4 * s0 in (16, 17):
                A(f'v_lshl_add_u64 {vr(a,2)}, {vr(a,2)}, 0, {jump}')
            if i >= DH and i >= burst:
                if cond:
                    l = self.lab('np')
                    A(f's_cbranch_vccz {l}')
                A(f's_waitcnt vmcnt({DH-1})')
                if cond:
                    A(f'{l}:')
            A(f'global_load_lds_dwordx4 {vr(a,2)}, off {pol}')
            A('s_add_u32 m0, m0, 1024')
            A(f'v_lshl_add_u64 {vr(a,2)}, {vr(a,2)}, 0, s[10:11]')
            if self.o['hold'] and s0 == 0 and i + 1 == min(hold or self.o['hold'], 4 * NS):
                l = self.lab('nb')
                A(f's_cmp_lg_u32 s39, {L_RED}')
                A(f's_cbranch_scc1 {l}')
                A('s_barrier')
                A(f'{l}:')

    def tr_addr(self, worder):
        A = self.A
        A('v_bfe_u32 v1, v0, 2, 2')
        A('v_and_b32 v2, 3, v0')
        if worder == 2:
            A('v_lshl_add_u32 v3, v20, 2, v1')
            A('v_lshrrev_b32 v4, 1, v1')
            A('v_lshrrev_b32 v5, 1, v20')
        elif not worder:
            A('v_lshl_add_u32 v3, v20, 3, v1')
            A('v_lshrrev_b32 v4, 1, v1')
            A('v_and_b32 v5, 1, v20')
        else:
            A('v_lshlrev_b32 v3, 1, v20')
            A('v_lshl_add_u32 v3, v1, 3, v3')
            A('v_and_b32 v4, 1, v20')
            A('v_and_b32 v5, 1, v1')
        A('v_lshl_add_u32 v4, v5, 1, v4')
        A('v_lshlrev_b32 v3, 7, v3')
        A('v_lshl_add_u32 v3, v2, 3, v3')
        A('v_add_u32 v3, s37, v3')
        for ct in range(4):
            A(f'v_xor_b32 v5, {ct}, v4')
            A(f'v_lshl_add_u32 v{14+ct}, v5, 5, v3')

    def tr_read(self, NS, hfoff, extra=0, s0=0, WR=128):
        A = self.A
        self.stamp(1, 1)
        for s in range(s0, NS):
            A(f's_waitcnt vmcnt({4*(NS-1-s)+extra})')
            if s in (0, NS - 1):
                self.stamp(2 if s == 0 else 3, 1)
            for ct in range(4):
                for hf in range(2):
                    A(f'ds_read_b64_tr_b16 {vr(WR+16*s+4*ct+2*hf,2)}, v{14+ct} offset:{4096*s+hfoff*hf}')
        A('s_waitcnt lgkmcnt(0)')

    def dense_addr(self, dst, base, esz, k='v23'):
        A = self.A
        sh = 1 if esz == 2 else 2
        A(f'v_lshrrev_b32 v1, 6, {k}')
        A('v_lshl_add_u32 v1, v1, 1, v22')
        A('v_lshlrev_b32 v1, 6, v1')
        A(f'v_and_b32 v2, 63, {k}')
        A(f'v_add_lshl_u32 {dst}, v1, v2, {sh}')
        if base:
            A(f'v_add_u32 {dst}, {base}, {dst}')

    def mfma_std(self, act, NS=5, shadow=()):
        A = self.A
        shadow = list(shadow)
        for s in range(NS):
            cur = act if s == 0 else 112 + 4 * (s & 1)
            for ct in range(4):
                d = vr(96 + 4 * ct, 4)
                A(f'v_mfma_f32_16x16x32_bf16 {d}, {vr(self.WR+16*s+4*ct,4)}, {vr(cur,4)}, {"0" if s == 0 else d}')
                if s + 1 < NS and ct < 2:
                    for i in (2 * ct, 2 * ct + 1):
                        A(f'v_mov_b32_dpp v{112+4*((s+1)&1)+i}, v{act+i} row_shl:{2*(s+1)} {DPPM}')
                else:
                    for i in range(1 if s + 1 == NS else 2):
                        if shadow:
                            A(shadow.pop(0))
        for x in shadow:
            A(x)

    def red_addr(self):
        A = self.A
        A('s_lshl_b32 s10, s38, 9')
        A('s_add_u32 s10, s10, s39')
        A('v_lshlrev_b32 v1, 8, v22')
        A('v_lshl_add_u32 v1, v20, 4, v1')
        A('v_add_u32 v24, s10, v1')
        A('v_lshl_add_u32 v25, v0, 3, s39')
        A('s_lshr_b32 s10, s39, 9')
        A(f's_add_u32 s10, s10, {L_CNT + 4 - (L_RED >> 9)}')
        A('v_mov_b32 v26, s10')
        A('v_mov_b32 v27, 1')
        A('s_mov_b32 s45, 3')

    def arrive(self, notlast, reads=None, nreads=0):
        A = self.A
        A('s_mov_b64 exec, 1')
        A('ds_add_rtn_u32 v1, v26, v27')
        A('s_mov_b64 exec, -1')
        if reads:
            reads()
        A(f's_waitcnt lgkmcnt({0 if self.o["stamps"] else nreads})')
        A('v_readfirstlane_b32 s10, v1')
        A('s_cmp_lg_u32 s10, s45')
        A(f's_cbranch_scc1 {notlast}')

    def probe(self):
        A = self.A
        if self.o['sel'] >= 0:
            return
        skip, top = self.lab('noprobe'), self.lab('probe')
        A('s_cmp_lg_u32 s38, 0')
        A(f's_cbranch_scc1 {skip}')
        A('s_lshr_b32 s10, s2, 6')
        A('s_lshl_b32 s10, s10, 14')
        A('s_and_b32 s11, s2, 63')
        A('s_lshl_b32 s11, s11, 7')
        A('s_add_u32 s10, s10, s11')
        A(f's_add_u32 s10, s10, {H_PRB}')
        A(f's_add_u32 s10, s{sWS}, s10')
        A(f's_addc_u32 s11, s{sWS+1}, 0')
        A('s_mov_b32 s12, -1')
        A('s_mov_b32 s13, -1')
        A(f's_mov_b32 s9, {self.o["NP"]}')
        A(f'{top}:')
        for c in range(2):
            A('s_memtime s[32:33]')
            A('s_waitcnt lgkmcnt(0)')
            A(f's_load_dword s8, s[10:11], {8192*c} glc')
            A('s_waitcnt lgkmcnt(0)')
            A('s_memtime s[34:35]')
            A('s_waitcnt lgkmcnt(0)')
            A('s_sub_u32 s8, s34, s32')
            A(f's_min_u32 s{12+c}, s{12+c}, s8')
        A('s_sub_u32 s9, s9, 1')
        A('s_cmp_lg_u32 s9, 0')
        A(f's_cbranch_scc1 {top}')
        A('s_cmp_lt_u32 s13, s12')
        A('s_cselect_b32 s8, 8192, 0')
        A(f'v_mov_b32 v1, {L_CNT+16}')
        A('v_mov_b32 v2, s8')
        A('ds_write_b32 v1, v2')
        A(f'{skip}:')

    def get_sel(self):
        A = self.A
        if self.o['sel'] >= 0:
            A(f's_mov_b32 s47, {8192*self.o["sel"]}')
            return
        A(f'v_mov_b32 v1, {L_CNT+16}')
        A('ds_read_b32 v1, v1')
        A('s_waitcnt lgkmcnt(0)')
        A('v_readfirstlane_b32 s47, v1')
        A('s_and_b32 s47, s47, 8192')
        if self.o['stamps']:
            A('s_mov_b32 s60, s47')

    def wake(self, level, add=True, both=True, sleep=None):
        A = self.A
        top, done = self.lab('wake'), self.lab('awake')
        A(f'v_mov_b32 v1, {L_CNT+24}')
        if add:
            A('v_mov_b32 v2, 1')
            A('s_mov_b64 exec, 1')
            A('ds_add_u32 v1, v2')
            A('s_mov_b64 exec, -1')
        A(f's_mov_b32 s9, {SPIN*8}')
        A(f'{top}:')
        A('ds_read_b64 v[2:3], v1')
        A('s_waitcnt lgkmcnt(0)')
        if both:
            A('v_lshrrev_b32 v2, 2, v2')
            A('v_mul_u32_u24 v3, v2, v3')
        A(f'v_cmp_gt_u32 vcc, {level}, v3')
        A(f's_cbranch_vccz {done}')
        A(f's_sleep {sleep or self.o["wks"]}')
        A('s_sub_u32 s9, s9, 1')
        A(f's_cbranch_scc0 {top}')
        A(f'{done}:')

    def midwait(self):
        if self.o['p2']:
            self.A('s_setprio 0')
        self.wake(1, add=False, both=False, sleep=16)
        self.flags_addr('v8', True)
        self.flags_wait('v8', 'v9')

    def tail_begin(self, name):
        A = self.A
        A('s_mov_b32 s46, 8192')
        self.stamp(1)
        A('s_mov_b32 s6, 0')
        A('s_mov_b32 s30, 0')
        A('s_mov_b32 s45, 0')
        A('v_mov_b32 v27, 0')
        A(f'{name}:')
        self.stamp(2)

    def hbar(self, sleep=0):
        A = self.A
        top, done = self.lab('hbar'), self.lab('hbard')
        A(f'v_mov_b32 v1, {L_CNT+12}')
        A('v_mov_b32 v2, 1')
        A('s_mov_b64 exec, 1')
        A('ds_add_u32 v1, v2')
        A('s_mov_b64 exec, -1')
        A(f's_mov_b32 s9, {SPIN*8}')
        A(f'{top}:')
        A('ds_read_b32 v2, v1')
        A('s_waitcnt lgkmcnt(0)')
        A('v_cmp_ne_u32 vcc, 4, v2')
        A(f's_cbranch_vccz {done}')
        if sleep:
            A(f's_sleep {sleep}')
        A('s_sub_u32 s9, s9, 1')
        A(f's_cbranch_scc0 {top}')
        A(f'{done}:')

    def merge_call(self, ty):
        A = self.A
        A(f's_mov_b32 s24, {ty}')
        A('s_cmp_eq_u32 s38, 3')
        A('s_cbranch_scc1 L_merge')
        A(f'L_back{ty}:')

    def tail_end(self, name, ty, level, late=None, llevel=128):
        A = self.A
        l = self.lab('real')
        A('s_cmp_lg_u32 s45, 0')
        A(f's_cbranch_scc1 {l}')
        A('s_mov_b64 exec, -1')
        A(f's_mov_b32 s6, {H_END}')
        A('s_mov_b32 s30, 2560')
        A('s_mov_b32 s45, 3')
        A('v_mov_b32 v27, 1')
        A('s_waitcnt vmcnt(0)')
        self.merge_call(ty)
        if late:
            self.wake(llevel)
            self.stamp(1)
            late()
        else:
            self.wake(level)
        A(f's_branch {name}')
        A(f'{l}:')
        self.dump_stamps(0x20000)
        A('s_endpgm')

    def red_write_std(self, nt=4, off=0):
        A = self.A
        A('s_mov_b32 exec_lo, 0x00030003')
        A('s_mov_b32 exec_hi, 0x00030003')
        for ct in range(nt):
            A(f'ds_write_b128 v24, {vr(96+4*ct,4)} offset:{64*ct+off}')

    def red_read(self, dst, addr='v25', off=0):
        A = self.A
        for w in range(4):
            A(f'ds_read_b64 {vr(dst+2*w,2)}, {addr} offset:{512*w+off}')

    def red_sum(self, dst):
        self.pk('add', dst, dst, dst + 4, n=2)
        self.pk('add', dst, dst, dst + 2, n=1)

    def publish_bf16(self, base):
        A = self.A
        self.red_read(96)
        A('s_lshl_b32 s10, s40, 8')
        A(f's_add_u32 s10, s10, {base}')
        A('v_lshl_add_u32 v1, v0, 2, s10')
        A('s_waitcnt lgkmcnt(0)')
        self.red_sum(96)
        A('v_cvt_pk_bf16_f32 v2, v96, v97')
        A('v_min_u32 v2, -2, v2')
        A('buffer_store_dword v2, v1, s[4:7], 0 offen sc1')
        A('s_mov_b64 exec, 1')
        A('ds_add_u32 v26, v27')
        A('s_mov_b64 exec, -1')

    def ln_scalars(self, mean, var):
        A = self.A
        A(f'v_cvt_pk_bf16_f32 v1, {mean}, {var}')
        A(f'v_and_b32 {var}, 0xffff0000, v1')
        A(f'v_add_f32 {var}, {f2u(1e-5)}, {var}')
        self.rbf(var)
        A(f'v_sqrt_f32 {var}, {var}')
        A(f'v_lshlrev_b32 {mean}, 16, v1')
        self.rbf(var)
        A(f'v_rcp_f32 {var}, {var}')

    def helper(self):
        A = self.A
        A('L_helper:')
        A('s_getpc_b64 s[92:93]')
        A('L_pc:')
        A('s_lshr_b32 s8, s2, 3')
        A('s_lshl2_add_u32 s8, s8, s3')
        A(f's_lshl_b32 s8, s8, {6 if self.o["pf"] > 2 else 7}')
        for i in range(self.o['pf']):
            if i:
                A(f's_add_u32 s8, s8, {8192 if self.o["pf"] > 2 else 16384}')
                A('s_min_u32 s8, s8, L_tab-L_pc')
            A('s_load_dword s9, s[92:93], s8')
        A('s_add_u32 s92, s92, L_tab-L_pc')
        A('s_addc_u32 s93, s93, 0')
        A('s_lshl_b32 s8, s2, 2')
        A('s_load_dword s36, s[92:93], s8')
        A(f's_setprio {self.o["prio"]}')
        A('s_sub_u32 s38, s3, 4')
        A('s_mul_i32 s37, s38, 24576')
        A(f's_mov_b32 s39, {L_RED}')
        A(f'v_mov_b32 v1, {L_CNT}')
        A('v_mov_b32 v2, 0')
        A('v_mov_b32 v3, 0')
        A('ds_write_b64 v1, v[2:3]')
        for o in (8, 16, 24, 32, 40):
            A(f'ds_write_b64 v1, v[2:3] offset:{o}')
        A('v_lshrrev_b32 v18, 3, v0')
        A('v_lshrrev_b32 v20, 4, v0')
        A('v_and_b32 v1, 1, v20')
        A('v_lshlrev_b32 v1, 1, v1')
        A('v_and_b32 v2, 7, v0')
        A('v_xor_b32 v19, v1, v2')
        A('v_and_b32 v22, 1, v0')
        A('v_bfe_u32 v1, v0, 1, 3')
        A('v_min_u32 v1, 4, v1')
        A('v_lshlrev_b32 v1, 5, v1')
        A('v_lshl_add_u32 v21, v20, 3, v1')
        A('s_mul_i32 s41, s38, 160')
        A('v_add_u32 v23, s41, v21')
        A('s_mov_b32 s16, 0x03ff03ff')
        A('s_mov_b32 s17, 0x03ff03ff')
        A('s_waitcnt lgkmcnt(0)')
        if not self.o['hold']:
            A('s_barrier')
        self.ws_srd()
        A('s_bitcmp1_b32 s36, 28')
        A('s_cbranch_scc1 L_clear')
        A('L_job:')
        A('s_and_b32 s10, s36, 15')
        A('s_bfe_u32 s40, s36, 0x80004')
        A('s_lshr_b32 s36, s36, 12')
        A('s_and_b32 s36, s36, 0xfff')
        for ty, l in ((T_M, 'L_M'), (T_Q, 'L_Q'), (T_W, 'L_W'), (T_F, 'L_F'), (T_D, 'L_D')):
            A(f's_cmp_eq_u32 s10, {ty}')
            A(f's_cbranch_scc1 {l}')
        A('s_branch L_idle')
        A('L_next:')
        if self.o['pw']:
            A('s_cmp_eq_u32 s36, 0')
            A('s_cbranch_scc1 L_idle')
            self.lwait(4, lambda: A('s_cmp_ge_u32 s8, 5'), 2)
        A('s_add_u32 s39, s39, 2048')
        A('s_branch L_job')
        A('L_clear:')
        A('s_bfe_u32 s10, s36, 0x40018')
        A('s_lshl2_add_u32 s10, s10, s38')
        for i in range(4):
            A(f'v_mov_b32 v{4+i}, -1')
        A('s_mov_b32 s11, 4096')
        A('s_cmp_ge_u32 s10, 8')
        A('s_cbranch_scc1 L_clrB')
        A('s_mul_i32 s12, s10, 5120')
        A('v_lshl_add_u32 v1, v0, 4, s12')
        for k in range(5):
            A(f'buffer_store_dwordx4 v[4:7], v1, s[4:7], {"s11" if k >= 4 else "0"} offen offset:{1024*(k&3)} sc1')
        A('s_branch L_clrF')
        A('L_clrB:')
        assert H_TS == 8 * 5120 and H_CLR - H_TS <= 12 * 32768
        A('s_add_u32 s12, s10, 32')
        A('s_lshl_b32 s12, s12, 10')
        A('v_lshl_add_u32 v1, v0, 4, s12')
        A(f's_mov_b32 s6, {H_END if self.o["ca"] else H_CLR}')
        for i in range(30 if self.o['ca'] else 12):
            A('buffer_store_dwordx4 v[4:7], v1, s[4:7], 0 offen sc1')
            A('v_add_u32 v1, 32768, v1')
        A('s_add_u32 s10, s10, 24')
        A(f's_mov_b32 s6, {H_END}')
        A('L_clrF:')
        A('s_lshl_b32 s10, s10, 2')
        A('v_mov_b32 v1, s10')
        A('s_waitcnt vmcnt(0)')
        A('s_mov_b64 exec, 1')
        A(f'global_store_dword v1, v4, {sp(sDBG)} sc1')
        A('s_mov_b64 exec, -1')
        A('s_branch L_job')

        A('L_M:')
        A('v_mul_u32_u24 v1, 640, v22')
        A('v_add_lshl_u32 v1, v1, v23, 1')
        A(f'global_load_dwordx4 v[28:31], v1, {sp(sC)}')
        A('s_lshl_b32 s12, s40, 7')
        self.dma_addr(sWM, 's41', 7680, 's12')
        A(f's_cmp_lg_u32 s39, {L_RED}')
        A('s_cselect_b64 vcc, -1, 0')
        self.dma_issue(5, 7680, 'nt', self.o['DM2'], cond=1)
        self.tr_addr(False)
        self.red_addr()
        A('s_waitcnt vmcnt(20)')
        self.unpack(32, 28, 4)
        for i in range(8):
            self.silu(f'v{32+i}', 'v4', 'v5')
        self.pack(28, 32, 4)
        self.flags_addr('v8', False)
        A(f'global_load_dword v9, v8, {sp(sDBG)} sc1')
        self.tr_read(5, 512, extra=1)
        self.stamp(1)
        self.mfma_std(28)
        self.red_write_std()
        self.arrive('L_next')
        ok = self.lab('fok')
        A('s_waitcnt vmcnt(0)')
        A('v_cmp_eq_u32 vcc, 0, v9')
        A(f's_cbranch_vccz {ok}')
        self.flags_wait('v8', 'v9')
        A(f'{ok}:')
        self.publish_bf16(H_MOD)
        if self.o['stamps']:
            self.stamp(2)
            A('s_cmp_lt_u32 s40, 20')
            A('s_cbranch_scc0 L_next')
            self.dump_stamps(0x10000)
            A('s_mov_b64 exec, -1')
        A('s_branch L_next')

        A('L_Q:')
        A('v_mul_u32_u24 v1, 640, v22')
        A('v_add_lshl_u32 v2, v1, v23, 1')
        A('v_add_lshl_u32 v1, v1, v21, 1')
        A(f'global_load_dwordx4 v[28:31], v2, {sp(sX)}')
        for w in range(4):
            A(f'global_load_dwordx4 {vr(32+4*w,4)}, v1, {sp(sX)} offset:{320*w}')
        A('s_lshl_b32 s12, s40, 7')
        self.dma_addr(sWQ, 's41', 12288, 's12')
        self.dma_issue(5, 12288, 'nt', self.o['DQ'])
        self.tr_addr(False)
        self.red_addr()
        A('s_waitcnt vmcnt(20)')
        self.unpack(48, 32, 16)
        self.unpack(32, 28, 4)
        self.pk('add', 80, 48, 64, n=8)
        self.pk('add', 80, 80, 88, n=4)
        self.pk('add', 80, 80, 84, n=2)
        self.pk('add', 80, 80, 82, n=1)
        A('v_add_f32 v6, v80, v81')
        A('v_cndmask_b32 v6, 0, v6, s[16:17]')
        self.rowred('v_add_f32', 'v6', self.ROWPAR)
        self.xrow('v_add_f32', 'v6', 'v1')
        A(f'v_mul_f32 v6, {f2u(1/640)}, v6')
        A('v_mov_b32 v8, 0')
        for i in range(32):
            A(f'v_sub_f32 v1, v{48+i}, v6')
            A('v_fmac_f32 v8, v1, v1')
        A('v_cndmask_b32 v8, 0, v8, s[16:17]')
        self.rowred('v_add_f32', 'v8', self.ROWPAR)
        self.xrow('v_add_f32', 'v8', 'v1')
        A(f'v_mul_f32 v8, {f2u(1/640)}, v8')
        self.ln_scalars('v6', 'v8')
        self.pk('add', 32, 32, 6, bstep=0, mods='op_sel_hi:[1,0] neg_lo:[0,1] neg_hi:[0,1]')
        self.rbf8(32, 28)
        self.pk('mul', 32, 32, 8, bstep=0, mods='op_sel_hi:[1,0]')
        self.rbf8(32, 28)
        self.flags_addr('v8', False)
        A(f'global_load_dword v9, v8, {sp(sDBG)} sc1')
        self.tr_read(5, 512, extra=1)
        ok = self.lab('fok')
        A('s_waitcnt vmcnt(0)')
        A('v_cmp_eq_u32 vcc, 0, v9')
        A(f's_cbranch_vccz {ok}')
        self.flags_wait('v8', 'v9')
        A(f'{ok}:')
        self.dense_addr('v8', H_MOD, 2)
        self.stamp(1)

        def ld():
            A('buffer_load_dwordx4 v[40:43], v8, s[4:7], 0 offen sc1')
            A('buffer_load_dwordx4 v[44:47], v8, s[4:7], 0 offen offset:2560 sc1')
        self.poll(ld, range(40, 48), 'v1', mask=True)
        self.stamp(2)
        self.unpack(56, 44, 4)
        for i in range(4):
            A(f'v_pk_add_f32 {vr(56+2*i,2)}, {vr(56+2*i,2)}, 1.0 op_sel_hi:[1,0]')
        self.rbf8(56, 28)
        self.pk('mul', 32, 32, 56)
        self.rbf8(32, 28)
        self.unpack(48, 40, 4)
        self.pk('add', 32, 32, 48)
        self.pack(28, 32, 4)
        self.mfma_std(28)
        self.red_write_std()
        self.arrive('L_next')
        self.publish_bf16(H_Q)
        if self.o['stamps']:
            self.stamp(3)
            self.dump_stamps(0x10000)
            A('s_mov_b64 exec, -1')
        A('s_branch L_next')

        A('L_W:')
        EF, ED = self.o['EF'], self.o['ED']
        WP, WS = 64, 160
        A('s_and_b32 s42, s40, 7')
        A('s_lshr_b32 s43, s40, 3')
        A('s_sub_u32 s13, 3, s38')
        A('s_lshl3_add_u32 s13, s13, s42')
        A('s_mul_i32 s13, s13, 192')
        A('s_lshl_b32 s12, s43, 7')
        self.dma_addr(sWO, 's13', 1280, 's12')
        A(f's_cmp_lg_u32 s39, {L_RED}')
        A('s_cselect_b64 vcc, -1, 0')
        self.dma_issue(6, 1280, 'nt', self.o['DW2'], cond=1)
        self.tr_addr(1)
        self.red_addr()
        A('s_mul_i32 s10, s42, 12288')
        A(f's_add_u32 s10, s10, {H_OP}')
        A('v_bfe_u32 v1, v0, 1, 3')
        A('v_mul_u32_u24 v1, 384, v1')
        A('v_lshl_add_u32 v1, v22, 4, v1')
        A('v_lshl_add_u32 v1, v20, 5, v1')
        A('v_add_u32 v28, s10, v1')
        A('s_lshl_b32 s10, s38, 9')
        A('s_add_u32 s10, s10, s39')
        A('v_lshl_add_u32 v24, v0, 2, s10')
        A('s_lshr_b32 s10, s42, 1')
        A('s_lshl_b32 s10, s10, 14')
        A('s_and_b32 s11, s42, 1')
        A('s_mul_i32 s11, s11, 2560')
        A('s_add_u32 s10, s10, s11')
        A('s_lshl_b32 s11, s43, 8')
        A('s_add_u32 s10, s10, s11')
        A(f's_add_u32 s10, s10, {H_Y}')
        A('v_bfe_u32 v1, v0, 2, 2')
        A('v_bfe_u32 v3, v0, 4, 1')
        A('v_lshl_add_u32 v1, v1, 1, v3')
        A('v_lshrrev_b32 v3, 5, v0')
        A('v_lshl_add_u32 v1, v1, 1, v3')
        A('v_and_b32 v3, 3, v0')
        A('v_lshl_add_u32 v1, v1, 2, v3')
        A('v_lshl_add_u32 v29, v1, 2, s10')
        A('s_lshl_b32 s10, s42, 10')
        A(f's_add_u32 s10, s10, {H_FLG}')
        A('v_and_b32 v1, 31, v0')
        A('v_lshl_add_u32 v30, v1, 2, s10')
        self.tr_read(6, 128, WR=WP)
        self.hbar(sleep=8)
        AF = 8
        dq = lambda ct, p: 32 + 8 * ct + 4 * p

        def post(ct):
            d = 32 + 8 * ct
            r = [f'v_add_f32 v{d}, v{d}, v{d+2}', f'v_add_f32 v{d+5}, v{d+5}, v{d+7}', f'v_add_f32 v{d}, v{d}, v{d+5}']
            if ct & 1:
                r += [f'v_permlane16_swap_b32 v{d-8}, v{d}', f'v_add_f32 v{d}, v{d-8}, v{d}']
            return r
        A('s_mov_b32 s46, 8192')
        A('s_mov_b32 s6, 0')
        A('s_mov_b32 s45, 0')
        A('s_mov_b32 s44, 0')
        A('s_mov_b32 s47, 0')
        A('v_mov_b32 v27, 0')
        A('L_Wt:')
        self.stamp(2)

        def mf(ct, s):
            d = vr(dq(ct, s & 1), 4)
            return f'v_mfma_f32_16x16x32_bf16 {d}, {vr(AF+4*(s>>1),4)}, {vr(WS+16*s+4*ct,4)}, {"0" if s < 2 else d}'
        self.spoll([(f'buffer_load_dwordx4 {vr(AF+4*u,4)}, v28, s[4:7], s47 offen offset:{128*u} sc1', AF + 4 * u) for u in range(3)],
                   [[mf(0, 2 * u), mf(0, 2 * u + 1)] for u in range(3)])
        self.stamp(3)
        sh = []
        for ct in range(1, 4):
            for s in range(6):
                A(mf(ct, s))
                if s == 1 and ct >= 2:
                    sh += post(ct - 2)
                if sh:
                    A(sh.pop(0))
        for x in sh + post(2) + post(3):
            A(x)
        A(f's_sub_u32 s47, s47, {OPI}')
        A('s_sub_u32 s44, s44, 1')
        A('v_permlane32_swap_b32 v40, v56')
        A('v_add_f32 v40, v40, v56')
        A('v_add_f32 v40, v40, v4')
        A('ds_write_b32 v24, v40')
        A('v_mov_b32 v4, v5')
        A('v_subrev_u32 v24, 256, v24')
        A('s_cbranch_scc0 L_Wt2')
        self.arrive('L_end', lambda: self.red_read(AF), 4)
        A('s_waitcnt lgkmcnt(0)')
        self.red_sum(AF)
        A(f'v_cvt_pk_bf16_f32 v2, v{AF}, v{AF+1}')
        A('v_min_u32 v2, -2, v2')
        A('buffer_store_dword v2, v29, s[4:7], 0 offen sc1')
        A('buffer_store_dword v2, v29, s[4:7], s46 offen sc1')
        self.stamp(4)
        A('s_cmp_lg_u32 s45, 0')
        A('s_cbranch_scc1 L_Wend')
        A(f's_mov_b32 s6, {H_END}')
        A('s_mov_b32 s45, 3')
        A('v_mov_b32 v27, 1')
        A('v_add_u32 v24, 512, v24')
        A('v_mov_b32 v4, 0')
        A('v_mov_b32 v5, 0')
        self.midwait()
        self.merge_call(T_W)
        A('s_cmp_eq_u32 s38, 3')
        A('s_cbranch_scc1 L_Wsh')
        if self.o['xg']:
            A('s_branch L_Wsh')
        A('s_mov_b32 s44, s38')
        A('L_Wp:')
        A('s_lshl2_add_u32 s12, s44, 2')
        self.item_wait('s12')
        self.stamp(1, 3)
        if self.o['fs0']:
            A(f's_sleep {self.o["fs0"]}')
        A('s_lshl_b32 s12, s44, 7')
        if self.o['xf'] != 1:
            self.poll(lambda: A('buffer_load_dword v2, v30, s[4:7], s12 offen sc1'), [2], 'v1', sleep=self.o['fsl'])
        self.stamp(2, 3)
        if self.o['xf'] == 2:
            A('s_mov_b32 s6, 0')
        A('s_sub_u32 s47, 7, s44')
        A(f's_mul_i32 s20, s47, {OPI}')
        for r in range(1, 4):
            A(f's_add_u32 s{20+r}, s20, {3072*r}')
        NB = 12
        pl = lambda i: A(f'buffer_load_dwordx4 {vr(WS+4*(i%NB),4)}, v28, s[4:7], s{20+i//3} offen offset:{128*(i%3)} sc1')
        for i in range(NB):
            pl(i)
        for i in range(12):
            A(f's_waitcnt vmcnt({min(NB-1, 11-i)})')
            for ct in range(4):
                for p in range(2):
                    d = vr(dq(ct, p), 4)
                    A(f'v_mfma_f32_16x16x32_bf16 {d}, {vr(WS+4*(i%NB),4)}, {vr(WP+16*(2*(i%3)+p)+4*ct,4)}, {"0" if i == 0 else d}')
            if i + NB < 12:
                pl(i + NB)
        for ct in range(4):
            for x in post(ct):
                A(x)
        A('v_permlane32_swap_b32 v40, v56')
        A('v_mov_b32 v4, v5')
        A('v_add_f32 v5, v40, v56')
        A(f's_mov_b32 s6, {H_END}')
        A('s_add_u32 s44, s44, 3')
        A('s_cmp_lt_u32 s44, 6')
        A('s_cbranch_scc1 L_Wp')
        if self.o['stamps'] == 3:
            self.stamp(3, 3)
            A('s_cmp_lg_u32 s38, 2')
            A('s_cbranch_scc1 L_Wsh')
            self.dump_stamps(0x10000)
            A('s_mov_b64 exec, -1')
        A('L_Wsh:')
        A('v_mov_b32 v6, v4')
        A('v_mov_b32 v7, v5')
        A(f's_mov_b32 s37, {3*24576}')
        self.tr_addr(1)
        self.tr_read(6, 128, WR=WS)
        A('v_mov_b32 v4, v6')
        A('v_mov_b32 v5, v7')
        self.stamp(1)
        self.wake(self.o['WL'])
        A('s_mul_i32 s47, s38, 3072')
        A(f's_add_u32 s47, s47, {OPI}')
        A('s_mov_b32 s44, 1')
        A('s_branch L_Wt')
        A('L_Wt2:')
        if self.o['w2']:
            self.wake(128, add=False, both=False, sleep=self.o['w2'])
        A('s_branch L_Wt')
        A('L_Wend:')
        self.dump_stamps(0x20000)
        A('s_endpgm')

        A('L_idle:')
        A('s_cmp_lg_u32 s38, 3')
        A('s_cbranch_scc1 L_end')
        self.midwait()
        A('s_mov_b32 s24, 0')
        A('L_merge:')
        if self.o['pt'] == 1:
            A('s_and_b32 s10, s2, 7')
            A('s_lshr_b32 s11, s2, 3')
            A('s_lshl_b32 s10, s10, 5')
            A('s_add_u32 s10, s10, s11')
            A('s_mul_i32 s10, s10, 384')
            A(f's_add_u32 s10, s{sWS}, s10')
            A(f's_addc_u32 s11, s{sWS+1}, 0')
            for j in range(2, 8):
                for k in range(3):
                    A(f's_load_dword s8, s[10:11], {H_OP + j*OPI + 128*k}')
                A('s_waitcnt lgkmcnt(0)')
        self.lwait(C_KC, lambda: A('s_cmp_eq_u32 s8, 4'), 8)
        A('v_and_b32 v96, 31, v0')
        A('v_lshlrev_b32 v1, 3, v96')
        A(f'v_add_u32 v1, {L_MLL}, v1')
        A('ds_read_b64 v[98:99], v1')
        A('s_and_b32 s34, s2, 7')
        A('s_lshr_b32 s35, s2, 3')
        A('s_lshl_b32 s10, s34, 12')
        A(f's_add_u32 s10, s10, {H_ML}')
        A('v_lshrrev_b32 v1, 1, v0')
        A('v_lshlrev_b32 v1, 7, v1')
        A('v_add_u32 v97, s10, v1')
        A('s_lshl_b32 s11, s35, 7')
        A('s_add_u32 s10, s10, s11')
        A('v_lshl_add_u32 v1, v0, 1, s10')
        A('s_getreg_b32 s32, hwreg(HW_REG_XCC_ID, 0, 4)')
        A('s_waitcnt lgkmcnt(0)')
        A('v_mov_b32 v100, v98')
        self.rowred('v_max_f32', 'v100', self.ROW16[:2])
        A('v_sub_f32 v101, v98, v100')
        A(f'v_mul_f32 v101, {LOG2E}, v101')
        A('v_exp_f32 v101, v101')
        A('v_mul_f32 v101, v101, v99')
        self.rowred('v_add_f32', 'v101', self.ROW16[:2])
        A('v_min_u32 v100, -2, v100')
        A('v_min_u32 v101, -2, v101')
        A('v_writelane_b32 v100, s32, 32')
        A('s_mov_b32 exec_lo, 0x11111111')
        A('s_mov_b32 exec_hi, 1')
        A('buffer_store_dwordx2 v[100:101], v1, s[4:7], 0 offen sc1')
        A('s_mov_b64 exec, -1')
        self.item_wait(2 + 4 * self.o['gw'])
        A('v_and_b32 v1, 1, v0')
        A('v_lshl_add_u32 v3, v1, 5, v97')

        def ld():
            A('buffer_load_dwordx4 v[48:51], v3, s[4:7], 0 offen sc1')
            A('buffer_load_dwordx4 v[52:55], v3, s[4:7], 0 offen offset:16 sc1')
            A('buffer_load_dword v56, v97, s[4:7], 0 offen offset:64 sc1')
        self.poll(ld, range(48, 57), 'v1', sleep=self.o['fsl'], mask=True)
        A('v_cmp_ne_u32 vcc, s32, v56')
        A('s_cmp_eq_u64 vcc, 0')
        A(f's_cselect_b32 s32, {2 if self.o["fast"] else 1}, 1')
        for i in range(4):
            A(f'v_mov_b32 v{64+2*i}, v{48+2*i}')

        def par(op, off):
            for m in self.ROWPAR:
                for i in range(4):
                    A(f'{op}_dpp v{off+2*i}, v{off+2*i}, v{off+2*i} {m} {DPPM}')
            for sw in ('v_permlane16_swap_b32', 'v_permlane32_swap_b32'):
                for i in range(4):
                    A(f'v_mov_b32 v{72+i}, v{off+2*i}')
                for i in range(4):
                    A(f'{sw} v{off+2*i}, v{72+i}')
                for i in range(4):
                    A(f'{op} v{off+2*i}, v{off+2*i}, v{72+i}')
        par('v_max_f32', 64)
        for i in range(4):
            A(f'v_sub_f32 v{48+2*i}, v{48+2*i}, v{64+2*i}')
            A(f'v_mul_f32 v{48+2*i}, {LOG2E}, v{48+2*i}')
            A(f'v_exp_f32 v{48+2*i}, v{48+2*i}')
            A(f'v_mul_f32 v{65+2*i}, v{48+2*i}, v{49+2*i}')
        par('v_add_f32', 65)
        A('v_lshlrev_b32 v1, 5, v0')
        A(f'v_add_u32 v1, {L_GL}, v1')
        A('s_mov_b64 exec, 3')
        A('ds_write_b128 v1, v[64:67]')
        A('ds_write_b128 v1, v[68:71] offset:16')
        A('s_mov_b64 exec, -1')
        A('v_lshrrev_b32 v1, 2, v96')
        A('v_lshlrev_b32 v1, 3, v1')
        A(f'v_add_u32 v1, {L_GL}, v1')
        A('ds_read_b64 v[100:101], v1')
        A('v_lshlrev_b32 v1, 2, v96')
        A(f'v_add_u32 v1, {L_FL}, v1')
        A(f'v_mov_b32 v2, {L_CNT}')
        A('v_mov_b32 v3, s32')
        A('s_waitcnt lgkmcnt(0)')
        A('v_sub_f32 v98, v98, v100')
        A(f'v_mul_f32 v98, {LOG2E}, v98')
        A('v_exp_f32 v98, v98')
        A('v_rcp_f32 v101, v101')
        A('v_mul_f32 v98, v98, v101')
        A('ds_write_b32 v1, v98')
        A(f'ds_write_b32 v2, v3 offset:{C_RDY}')
        self.op_addr('v102', 'v103', L_PART)
        if True:
            A(f's_add_u32 s12, s{sWS}, s44')
            A(f's_addc_u32 s13, s{sWS+1}, 0')
        A(f'v_mov_b32 v104, {L_FL}')
        A('s_lshl_b32 s10, s34, 10')
        A('s_lshl2_add_u32 s10, s35, s10')
        A(f's_add_u32 s10, s10, {H_FLG}')
        A('v_mov_b32 v105, s10')
        A('s_mov_b32 s34, 2')
        A(f's_mov_b32 s35, {7*OPI}')
        A('L_mitem:')
        def touch():
            for k in range(6):
                A(f's_add_u32 s10, s35, {64*k}')
                A('s_load_dword s11, s[12:13], s10')
        if self.o['pt'] == 2:
            A(f's_cmp_gt_u32 s35, {self.o["ptm"]*OPI}')
            A('s_cbranch_scc1 L_notouch')
            touch()
            A('L_notouch:')
        if self.o['pt'] == 4:
            A('s_sub_u32 s44, s34, 2')
            self.lwait(C_IC, lambda: (A('s_lshr_b32 s8, s8, s44'), A('s_and_b32 s8, s8, 7')), 8)
            touch()
        self.item_wait('s34')
        A('ds_read_b128 v[108:111], v104')
        for w in range(4):
            for h in range(2):
                A(f'ds_read_b128 {vr(48+8*w+4*h,4)}, v103 offset:{12288*w + 768*h}')
        A('s_waitcnt lgkmcnt(0)')
        for w in range(4):
            self.pk('add', 48 + 8 * w, 48 + 8 * w, 52 + 8 * w, n=2)
            f = vr(108 + (w & 2), 2)
            for h in range(2):
                if w == 0:
                    A(f'v_pk_mul_f32 {vr(48+2*h,2)}, {vr(48+2*h,2)}, {f} op_sel_hi:[1,0]')
                else:
                    m = 'op_sel:[0,1,0] op_sel_hi:[1,1,1]' if w & 1 else 'op_sel_hi:[1,0,1]'
                    A(f'v_pk_fma_f32 {vr(48+2*h,2)}, {vr(48+8*w+2*h,2)}, {f}, {vr(48+2*h,2)} {m}')
        self.pack(2, 48, 2)
        A('v_min_u32 v2, -2, v2')
        A('v_min_u32 v3, -2, v3')
        A('s_mov_b32 exec_hi, 0xffff')
        if self.o['xs']:
            A(f's_mov_b32 s6, {H_CLR}')
        if self.o['dt']:
            A('buffer_store_dwordx2 v[2:3], v102, s[4:7], s35 offen sc1')
        else:
            self.mode_store('buffer_store_dwordx2 v[2:3], v102, s[4:7], s35 offen', 's32')
        A(f's_mov_b32 s6, {H_END}')
        A('s_mov_b64 exec, 1')
        if self.o['pt'] == 3:
            touch()
        A('s_waitcnt vmcnt(0) lgkmcnt(0)')
        self.mode_store('buffer_store_dword v0, v105, s[4:7], 0 offen', 's32')
        A('s_mov_b64 exec, -1')
        A('v_add_u32 v103, 1536, v103')
        A('v_add_u32 v104, 16, v104')
        A('v_add_u32 v105, 128, v105')
        A('s_add_u32 s34, s34, 4')
        A(f's_sub_u32 s35, s35, {OPI}')
        A('s_cmp_lg_u32 s35, 0')
        A('s_cbranch_scc1 L_mitem')
        if self.o['t7']:
            touch()
            A('s_waitcnt lgkmcnt(0)')
        for ty in (T_W, T_F, T_D):
            A(f's_cmp_eq_u32 s24, {ty}')
            A(f's_cbranch_scc1 L_back{ty}')
        A('s_endpgm')

        A('L_F:')
        XF, GA, C1, PV, SEL = 224, 232, 240, 248, 88
        ly = 1
        A('v_lshlrev_b32 v1, 2, v20')
        if ly:
            A('s_lshl_b32 s41, s38, 7')
            A('s_mul_i32 s14, s38, -96')
            A('s_add_u32 s14, s14, 384')
            A('v_lshrrev_b32 v2, 7, v21')
            A('v_mad_u32_u24 v23, v2, s14, v21')
            A('v_add_u32 v23, s41, v23')
            A('s_mul_i32 s14, s14, 3072')
            A('s_mov_b32 s15, 0')
        A('v_sub_u32 v23, v23, v1')
        A('v_mul_u32_u24 v1, 640, v22')
        A('v_add_lshl_u32 v2, v1, v23, 1')
        A('v_add_lshl_u32 v1, v1, v21, 1')
        A(f'global_load_dwordx2 v[28:29], v2, {sp(sX)}')
        A(f'global_load_dwordx2 v[30:31], v2, {sp(sX)} offset:32')
        for w in range(4):
            A(f'global_load_dwordx4 {vr(32+4*w,4)}, v1, {sp(sX)} offset:{320*w}')
        A('s_mul_i32 s10, s41, 3072')
        A('s_lshl_b32 s11, s40, 6')
        A('s_add_u32 s10, s10, s11')
        A('v_mul_u32_u24 v1, 3072, v18')
        A('v_and_b32 v2, 3, v19')
        A('v_lshl_add_u32 v1, v2, 4, v1')
        A('v_add_u32 v1, s10, v1')
        A(f'v_add_u32 v2, {8*3072}, v1')
        A(f'v_mov_b32 v4, s{sWG}')
        A(f'v_mov_b32 v5, s{sWG+1}')
        A(f'v_mov_b32 v6, s{sWU}')
        A(f'v_mov_b32 v7, s{sWU+1}')
        A('v_cmp_gt_u32 vcc, 4, v19')
        A('v_cndmask_b32 v10, v6, v4, vcc')
        A('v_cndmask_b32 v11, v7, v5, vcc')
        A('v_cndmask_b32 v12, v4, v6, vcc')
        A('v_cndmask_b32 v13, v5, v7, vcc')
        A('v_add_co_u32 v10, vcc, v10, v1')
        A('v_addc_co_u32 v11, vcc, 0, v11, vcc')
        A('v_add_co_u32 v12, vcc, v12, v2')
        A('v_addc_co_u32 v13, vcc, 0, v13, vcc')
        self.dma_issue(EF, 3072, '', self.o['DF'], burst=self.o['FB'], jump='s[14:15]' if ly else None, hold=(self.o['hold'] + 1) // 2)
        self.tr_addr(2)
        self.red_addr()
        self.tr_read(EF, 2048)
        A('s_waitcnt vmcnt(0)')
        self.unpack(48, 32, 16)
        self.unpack(XF, 28, 4)
        self.pk('add', 80, 48, 64, n=8)
        self.pk('add', 80, 80, 88, n=4)
        self.pk('add', 80, 80, 84, n=2)
        self.pk('add', 80, 80, 82, n=1)
        A('v_add_f32 v6, v80, v81')
        A('v_cndmask_b32 v6, 0, v6, s[16:17]')
        self.rowred('v_add_f32', 'v6', self.ROWPAR)
        self.xrow('v_add_f32', 'v6', 'v1')
        A(f'v_mul_f32 v{PV}, {f2u(1/640)}, v6')
        A(f'v_readlane_b32 s10, v{PV}, 0')
        A(f'v_readlane_b32 s11, v{PV}, 1')
        A('s_mov_b32 s18, 0')
        A('s_mov_b32 s19, -1')
        A('v_mov_b32 v1, s10')
        A('v_mov_b32 v2, s11')
        A(f'v_cndmask_b32 v{PV+2}, v1, v2, s[18:19]')
        self.probe()
        self.midwait()
        self.dense_addr('v8', H_MOD + 20 * 256, 2)
        A('v_add_u32 v9, 5120, v8')

        def ld():
            for h in range(2):
                A(f'buffer_load_dwordx2 {vr(40+2*h,2)}, v8, s[4:7], 0 offen offset:{32*h} sc1')
                A(f'buffer_load_dwordx2 {vr(44+2*h,2)}, v8, s[4:7], 0 offen offset:{2560+32*h} sc1')
                A(f'buffer_load_dwordx2 {vr(48+2*h,2)}, v9, s[4:7], 0 offen offset:{32*h} sc1')
        self.poll(ld, range(40, 52), 'v1', sleep=self.o['slp'])
        self.unpack(GA, 40, 4)
        self.unpack(C1, 48, 4)
        for i in range(4):
            A(f'v_pk_add_f32 {vr(C1+2*i,2)}, {vr(C1+2*i,2)}, 1.0 op_sel_hi:[1,0]')
        self.rbf8(C1, 80)
        X1 = 120
        self.pk('add', XF, XF, PV, bstep=0, mods='op_sel_hi:[1,0] neg_lo:[0,1] neg_hi:[0,1]')
        self.pk('mul', X1, XF, C1)
        self.pk('mul', C1, C1, GA)
        for i in range(4):
            A(f'v_mov_b32 v{84+i}, v{44+i}')

        def consts():
            for act, off in ((80, 2048), (84, 4096)):
                self.mfma_std(act)
                self.red_write_std(off=off)
                A('s_mov_b64 exec, -1')
                A('s_waitcnt lgkmcnt(0)')
        if EF == 5:
            consts()
        if ly:
            A('v_lshrrev_b32 v1, 6, v23')
            A('v_lshlrev_b32 v1, 8, v1')
            A('v_and_b32 v2, 32, v23')
            A('v_lshl_add_u32 v2, v22, 4, v2')
            A(f'v_add_u32 v1, {H_Y}, v1')
            A('v_add_u32 v208, v1, v2')
        else:
            A('v_and_b32 v3, 0xffe0, v23')
            self.dense_addr('v208', H_Y, 2, k='v3')
        A('v_lshrrev_b32 v1, 1, v20')
        A('v_lshl_add_u32 v208, v1, 14, v208')
        A('v_and_b32 v1, 1, v20')
        A('v_mul_u32_u24 v1, 2560, v1')
        A('v_add_u32 v208, v1, v208')
        A('v_lshlrev_b32 v1, 4, v22')
        A('v_mov_b32 v2, 0x3f80')
        A('v_lshlrev_b32 v1, v1, v2')
        A('v_bfe_u32 v2, v0, 1, 3')
        for w in range(8):
            A(f'v_cmp_eq_u32 vcc, {w}, v2')
            A(f'v_cndmask_b32 v{SEL+w}, 0, v1, vcc')
        self.dense_addr('v209', H_X2, 2)
        A('v_lshrrev_b32 v1, 5, v0')
        A('v_lshl_add_u32 v2, v22, 3, v1')
        A('v_lshlrev_b32 v2, 2, v2')
        A(f's_lshl3_add_u32 s10, s38, {L_ST}')
        A('v_add_u32 v210, s10, v2')
        A('v_lshlrev_b32 v2, 5, v1')
        A(f'v_add_u32 v211, {L_ST}, v2')
        A('v_and_b32 v2, 31, v0')
        A('v_lshlrev_b32 v3, 8, v1')
        A('v_lshl_add_u32 v3, v2, 2, v3')
        A('v_add_u32 v25, s39, v3')
        A('v_add_u32 v213, 1024, v25')
        A('s_lshl_b32 s10, s40, 7')
        A(f's_add_u32 s10, s10, {H_ACT}')
        A('v_lshrrev_b32 v3, 3, v2')
        A('v_lshl_add_u32 v3, v3, 1, v1')
        A('v_and_b32 v2, 7, v2')
        A('v_lshl_add_u32 v3, v3, 3, v2')
        A('v_lshl_add_u32 v212, v3, 1, s10')
        self.tail_begin('L_Ft')
        self.get_sel()
        A('s_add_u32 s20, s47, 32768')
        AC = 214

        def rd2(dst, a0, a1):
            for w in range(4):
                A(f'ds_read2_b32 {vr(dst+2*w,2)}, {a1 if w >> 1 else a0} offset0:{128*(w&1)} offset1:{128*(w&1)+32}')
        for n in range(2):
            A(f'v_add_u32 v2, {2048*(n+1)}, v25')
            A(f'v_add_u32 v3, {2048*(n+1)}, v213')
            rd2(96, 'v2', 'v3')
            A('s_waitcnt lgkmcnt(0)')
            self.pk('add', 96, 96, 100, n=2)
            A(f'v_pk_add_f32 {vr(AC+2*n,2)}, v[96:97], v[98:99]')
        Y, YL = 32, 48
        order = (0, 2, 1, 3, 4, 6, 5, 7)
        lds, work = [], []
        for n in order:
            lds.append((f'buffer_load_dwordx4 {vr(YL+4*n,4)}, v208, s[4:7], {"s20" if n >= 4 else "s47"} offen offset:{64*(n&3)} sc1', YL + 4 * n))
            d = vr(Y + 4 * ((n >> 1) & 1), 4)
            work.append([f'v_mfma_f32_16x16x32_bf16 {d}, {vr(SEL+4*(n&1),4)}, {vr(YL+4*n,4)}, {"0" if n in (0, 2) else d}'])
        self.spoll(lds, work, 's[16:17]')
        self.stamp(3)
        for i in range(4):
            A(f'v_pk_fma_f32 {vr(40+2*i,2)}, {vr(Y+2*i,2)}, {vr(C1+2*i,2)}, {vr(X1+2*i,2)}')
        self.pack(28, 40, 4)
        self.stamp(4)
        sh = [f'v_pk_fma_f32 {vr(Y+2*i,2)}, {vr(Y+2*i,2)}, {vr(GA+2*i,2)}, {vr(XF+2*i,2)}' for i in range(4)]
        sh += [f'v_pk_mul_f32 v[56:57], {vr(Y,2)}, {vr(Y,2)}', f'v_pk_add_f32 v[58:59], {vr(Y,2)}, {vr(Y+2,2)}']
        for i in range(1, 4):
            sh.append(f'v_pk_fma_f32 v[56:57], {vr(Y+2*i,2)}, {vr(Y+2*i,2)}, v[56:57]')
            if i > 1:
                sh.append(f'v_pk_add_f32 v[58:59], v[58:59], {vr(Y+2*i,2)}')
        sh += ['v_add_f32 v56, v56, v57', 'v_add_f32 v58, v58, v59', 's_nop 0',
               'v_permlane32_swap_b32 v58, v56', 'v_add_f32 v56, v56, v58', 'v_cndmask_b32 v56, 0, v56, s[16:17]']
        sh += [f'v_add_f32_dpp v56, v56, v56 {m} {DPPM}' for m in self.ROWPAR]
        self.mfma_std(28, shadow=sh)
        if self.o['clk']:
            self.stamp(1)
        A('v_mov_b32 v57, v56')
        A('v_permlane16_swap_b32 v56, v57')
        A('v_add_f32 v56, v56, v57')
        self.red_write_std()
        A('ds_write_b32 v210, v56')

        def rd():
            A('ds_read_b128 v[56:59], v211')
            A('ds_read_b128 v[60:63], v211 offset:16')
            rd2(64, 'v25', 'v213')
            A('s_cmp_lg_u32 s40, 0')
            A('s_cbranch_scc1 L_Fnox')
            self.pk('add', 40, Y, PV, bstep=0, mods='op_sel_hi:[1,0]')
            self.pack(48, 40, 4)
            for i in range(4):
                A(f'v_min_u32 v{48+i}, -2, v{48+i}')
            A('s_mov_b64 exec, s[16:17]')
            for so in ('0', 's46'):
                A(f'buffer_store_dwordx2 v[48:49], v209, s[4:7], {so} offen sc1')
                A(f'buffer_store_dwordx2 v[50:51], v209, s[4:7], {so} offen offset:32 sc1')
            A('s_mov_b64 exec, -1')
            A('L_Fnox:')
        self.arrive('L_end', rd, 4)
        if self.o['clk']:
            self.stamp(2)
        A('v_pk_add_f32 v[56:57], v[56:57], v[58:59]')
        A('v_pk_add_f32 v[60:61], v[60:61], v[62:63]')
        A('v_pk_add_f32 v[56:57], v[56:57], v[60:61]')
        A(f'v_mul_f32 v56, {f2u(1/640)}, v56')
        A(f'v_mul_f32 v8, {f2u(1/640)}, v57')
        A(f'v_add_f32 v6, v{PV+2}, v56')
        A('v_fma_f32 v8, -v56, v56, v8')
        A('v_max_f32 v8, 0, v8')
        self.ln_scalars('v6', 'v8')
        A(f'v_sub_f32 v6, v{PV+2}, v6')
        A('s_waitcnt lgkmcnt(0)')
        self.red_sum(64)
        A(f'v_pk_fma_f32 v[96:97], {vr(AC,2)}, v[6:7], v[64:65] op_sel_hi:[1,0,1]')
        A(f'v_pk_fma_f32 v[96:97], v[96:97], v[8:9], {vr(AC+2,2)} op_sel_hi:[1,0,1]')
        A('v_cvt_pk_bf16_f32 v98, v96, v97')
        A('v_lshlrev_b32 v100, 16, v98')
        A(f'v_mul_f32 v4, {LOG2E}, v100')
        A('v_exp_f32 v4, -v4')
        A('v_and_b32 v101, 0xffff0000, v98')
        A('v_add_f32 v4, 1.0, v4')
        A('v_rcp_f32 v4, v4')
        A('s_mov_b32 s10, 0x55555555')
        A('v_mul_f32 v2, v100, v4')
        self.rbf('v2')
        A('v_mul_f32 v2, v2, v101')
        A('s_mov_b32 s11, 0x55555555')
        A(f'v_mov_b32_dpp v3, v2 quad_perm:[1,0,3,2] {DPPM}')
        A('s_mov_b64 exec, s[10:11]')
        A('v_cvt_pk_bf16_f32 v2, v2, v3')
        A('v_min_u32 v2, -2, v2')
        A('buffer_store_dword v2, v212, s[4:7], 0 offen sc1')
        A('buffer_store_dword v2, v212, s[4:7], s46 offen sc1')
        self.stamp(5)

        def late():
            self.dma_issue(5, 3072, '', 24, s0=EF, jump='s[14:15]' if ly else None)
            self.tr_read(5, 2048, s0=EF)
            consts()
            self.hbar()
        self.tail_end('L_Ft', T_F, self.o['WF'], late if EF < 5 else None, self.o['WLF'])

        A('L_D:')
        A(f's_mul_i32 s10, s38, {384*1280}')
        A('s_lshl_b32 s11, s40, 5')
        A('s_add_u32 s10, s10, s11')
        A(f's_add_u32 s10, s{sWD}, s10')
        A(f's_addc_u32 s11, s{sWD+1}, 0')
        for a, x in ((10, 0), (12, 4)):
            A(f'v_xor_b32 v1, {x}, v19')
            A('v_lshrrev_b32 v2, 1, v1')
            A('v_mul_u32_u24 v2, 96, v2')
            A('v_add_u32 v2, v2, v18')
            if x:
                A('v_add_u32 v2, 8, v2')
            A('v_mul_u32_u24 v2, 1280, v2')
            A('v_and_b32 v1, 1, v1')
            A(f'v_lshl_add_u32 v{a}, v1, 4, v2')
            A(f'v_mov_b32 v{a+1}, 0')
            A(f'v_lshl_add_u64 {vr(a,2)}, {vr(a,2)}, 0, s[10:11]')
        self.dma_issue(ED, 1280, '', self.o['DD'], burst=self.o['DB'])
        self.tr_addr(False)
        self.red_addr()
        self.tr_read(ED, 512)
        self.probe()
        self.midwait()
        A('v_bfe_u32 v30, v0, 3, 1')
        A('v_and_b32 v1, 7, v0')
        A('v_lshlrev_b32 v2, 8, v30')
        A('v_lshl_add_u32 v2, v1, 3, v2')
        A('v_add_u32 v25, s39, v2')
        A('s_lshl_b32 s10, s40, 4')
        A('v_lshl_add_u32 v31, v1, 1, s10')
        A('v_mul_u32_u24 v3, 640, v30')
        A('v_add_lshl_u32 v29, v3, v31, 1')
        A('v_mov_b32 v4, v22')
        A('v_mov_b32 v22, v30')
        self.dense_addr('v28', H_X2, 2, k='v31')
        A('v_mov_b32 v22, v4')
        A(f'v_add_u32 v8, {H_MOD + 50*256 - H_X2}, v28')

        def ld():
            A('buffer_load_dword v44, v8, s[4:7], 0 offen sc1')
        self.poll(ld, [44], 'v1', sleep=self.o['slp'])
        A(f's_mov_b32 s28, s{sOUT}')
        A(f's_mov_b32 s29, s{sOUT+1}')
        A('s_mov_b32 s30, 2560')
        A('s_mov_b32 s31, 0x20000')
        self.unpack(46, 44, 1)
        A('v_bfe_u32 v1, v0, 1, 3')
        A(f'v_lshlrev_b32 v2, 4, v22')
        A(f'v_lshl_add_u32 v2, v20, 5, v2')
        A('s_mul_i32 s10, s38, 1536')
        A(f's_add_u32 s10, s10, {H_ACT}')
        A('v_add_u32 v2, s10, v2')
        A('v_lshl_add_u32 v8, v1, 7, v2')
        A('v_and_b32 v1, 3, v1')
        A('v_lshl_add_u32 v9, v1, 7, v2')
        self.tail_begin('L_Dt')
        self.get_sel()

        def ld0():
            A('buffer_load_dword v40, v28, s[4:7], s47 offen sc1')

        pairs = [(0, 32), (8, 36), (2, 48), (4, 52), (6, 56), (10, 60)]
        sh = [f'v_mov_b32_dpp v{r+i}, v{32+4*(ks//8)+i} row_shl:{2*(ks%8)} {DPPM}' for ks, r in pairs[2:] for i in range(4)]

        def mf(n, e):
            ks, r = pairs[n]
            d = vr(96 + 4 * e, 4)
            return f'v_mfma_f32_16x16x32_bf16 {d}, {vr(self.WR+16*((ks+e)%3)+4*((ks+e)//3),4)}, {vr(r,4)}, {"0" if n == 0 else d}'
        self.spoll([('buffer_load_dwordx4 v[32:35], v8, s[4:7], s47 offen sc1', 32),
                    ('buffer_load_dwordx4 v[36:39], v9, s[4:7], s47 offen offset:1024 sc1', 36)],
                   [[mf(n, 0), mf(n, 1), sh[2 * n], sh[2 * n + 1]] for n in range(2)],
                   one=('buffer_load_dword v40, v28, s[4:7], s47 offen sc1', 40))
        self.stamp(3)
        sh = sh[4:]
        for n in range(2, 6):
            for e in range(2):
                A(mf(n, e))
                for i in range(2 if n > 2 or e else 4):
                    if sh:
                        A(sh.pop(0))
        self.unpack(42, 40, 1)
        for i in range(4):
            A(f'v_add_f32_dpp v{96+i}, v{100+i}, v{96+i} quad_perm:[2,3,0,1] {DPPM}')
        self.red_write_std(1)
        self.arrive('L_end', lambda: self.red_read(104), 4)
        A('s_waitcnt lgkmcnt(0)')
        self.red_sum(104)
        self.pack(98, 104, 1)
        self.unpack(96, 98, 1)
        A('v_pk_mul_f32 v[96:97], v[96:97], v[46:47]')
        self.pack(98, 96, 1)
        self.unpack(96, 98, 1)
        A('v_pk_add_f32 v[96:97], v[96:97], v[42:43]')
        A('v_cvt_pk_bf16_f32 v2, v96, v97')
        A('s_mov_b64 exec, 0xffff')
        A(f'buffer_store_dword v2, v29, s[28:31], 0 offen')
        self.stamp(4)

        def late():
            self.dma_issue(3, 1280, '', 24, s0=ED)
            self.tr_read(3, 512, s0=ED)
        self.tail_end('L_Dt', T_D, self.o['WD'], late if ED < 3 else None, self.o['WLD'])

    def build(self):
        self.entry()
        self.helper()
        self.stream()
        t = f'; @launch grid=(256,1,1) block=(512,1,1) lds={L_END}\n' + self.A.text()
        t += '.p2align 8\n.type L_tab,@object\nL_tab:\n'
        w = job_table()
        for i in range(0, len(w), 8):
            t += '.long ' + ','.join('0x%08x' % x for x in w[i:i + 8]) + '\n'
        t += '.section .rodata,"a"\n.p2align 6\n' + kd(KN + '_kernel', 256, sgpr=102)
        return t


if __name__ == '__main__':
    import os
    os.makedirs('gen', exist_ok=True)
    names = []
    for spec in sys.argv[1:]:
        kw = {}
        for kv in spec.split(','):
            if not kv:
                continue
            k, v = kv.split('=')
            try:
                v = int(v, 0)
            except ValueError:
                v = v.replace('+', ' ')
            kw[k] = v
        nm = 'work/gen/v13_' + spec.replace('=', '').replace(',', '_') + '.s'
        open('code/' + nm, 'w').write(G(**kw).build())
        names.append(nm)
    print(' '.join(names))
```

```python
import sys, struct
sys.path.insert(0, 'work')
from asmlib import Asm, kd

KN = 'adaLN_cond__gqa_block_cached__swiglu_ffn__decode'
f2u = lambda x: '0x%08x' % struct.unpack('<I', struct.pack('<f', x))[0]
LOG2E = f2u(1.4426950408889634)
SCALE = f2u(192 ** -0.5)
PER = 196608
sX, sK, sV, sWQ, sWO, sWG, sWU, sWD, sC, sWM, sOUT, sDBG, sWS = 64, 66, 68, 70, 72, 76, 78, 80, 82, 84, 86, 88, 90
H_MOD, H_Q, H_TS, H_FLG, H_ML = 0, 0x4000, 0xA000, 0x12000, 0x14000
H_X2, H_ACT, H_Y, H_OP, H_CLR, H_END, H_PRB = 0x1C000, 0x20000, 0x24000, 0x34000, 0x64000, 0xF4000, 0xF4000
VORD = (7, 6, 5, 3, 2, 1, 4, 0)
OPI = 98304
L_STG, L_PART, L_RED, L_ST, L_CNT, L_MLL, L_GL, L_FL, L_END = 0, 98304, 147456, 153600, 153728, 153792, 154048, 154112, 154240
C_MRG, C_HBAR, C_SEL, C_HB, C_WK, C_KC, C_IC, C_RDY = 0, 12, 16, 24, 28, 32, 36, 40
SPIN = 1 << 15
DPPM = 'row_mask:0xf bank_mask:0xf'
T_M, T_Q, T_W, T_F, T_D = 1, 2, 3, 4, 5
STAMP0 = 0x2ff00000


def sp(n):
    return f's[{n}:{n+1}]'


def vr(n, c):
    return f'v[{n}:{n+c-1}]' if c > 1 else f'v{n}'


JT = 5
RN = 1
HV = 0


def job_table():
    J = {i: [] for i in range(256)}
    free = {x: [8 * r + x for r in range(32)] for x in range(8)}
    if JT in (1, 4, 5):
        fx = [f // 6 for f in range(48)]
        dx = [[0, 1, 2, 3, 4, 5, 6, 7, 2, 5][d // 4] for d in range(40)]
    elif JT == 2:
        fx = [[0, 3, 6][f // 16] for f in range(48)]
        dx = [[2, 5][d // 20] for d in range(40)]
    elif JT == 3:
        fx = [[0, 1, 2, 3][f // 12] for f in range(48)]
        dx = [[0, 1, 2, 3, 0, 1, 2, 3, 4, 4][d // 4] for d in range(40)]
    for f in range(48):
        J[free[fx[f]].pop(0)] = [(T_F, f)]
    for d in range(40):
        J[free[dx[d]].pop(0)] = [(T_D, d)]
    wl = []
    for w in range(80):
        i = free[w & 7].pop(0)
        J[i] = [(T_W, w)]
        wl.append(i)
    rest = sorted(i for x in free for i in free[x])
    m2 = list(range(20, 60)); q = list(range(96))
    k = 0
    if JT < 4:
        for m in range(20):
            J[rest[k]] = [(T_M, m), (T_M, m2.pop())]; k += 1
        for _ in range(20):
            J[rest[k]] = [(T_Q, q.pop()), (T_M, m2.pop())]; k += 1
    while k < len(rest):
        J[rest[k]] = [(T_Q, q.pop())]; k += 1
    k = 0
    if JT >= 4:
        for i in range(256):
            if J[i][0][0] == T_D:
                J[i] = [(T_Q, q.pop()) if JT == 5 and q else (T_M, m2.pop())] + J[i]
        while m2:
            J[wl[k]] = [(T_M, m2.pop())] + J[wl[k]]; k += 1
        for m in range(20):
            J[wl[k]] = [(T_M, m)] + J[wl[k]]; k += 1
    while q:
        J[wl[k]] = [(T_Q, q.pop())] + J[wl[k]]; k += 1
    singles = wl[k:]
    if RN:
        cq, c1, c2 = 0, 0, 20
        for i in sorted(range(256), key=lambda i: (i & 7, i)):
            for n, (ty, ix) in enumerate(J[i]):
                if ty == T_Q:
                    J[i][n] = (ty, cq); cq += 1
                elif ty == T_M and ix < 20:
                    J[i][n] = (ty, c1); c1 += 1
                elif ty == T_M:
                    J[i][n] = (ty, c2); c2 += 1
    clr = {singles[n]: n for n in range(10)}
    words = []
    for i in range(256):
        j = J[i] + [(0, 0)]
        v = j[0][0] | j[0][1] << 4 | j[1][0] << 12 | j[1][1] << 16
        if i in clr:
            v |= (16 | clr[i]) << 24
        last = J[i][-1][0]
        v |= (last == T_W) << 30 | (last == T_F) << 31
        t0, i0 = J[i][0]
        heavy = (len(J[i]) == 2 and last == T_W) or (t0 == T_F and (i0 >> 1) & 7 == 3)
        if HV >= 2:
            heavy = heavy or len(J[i]) == 2 or (t0 == T_Q and i0 & 7 == 3) or i in clr
        if HV >= 3:
            heavy = heavy or t0 == T_F
        v |= (heavy and HV > 0) << 29
        words.append(v)
    return words


HEADER = '''; adaLN -> cached attention -> adaLN -> SwiGLU, decode step (B=2, D=640, 32 heads x 192, 8192 keys).
; Written with my own generator script (work/gen_v13.py).  One persistent launch, one workgroup per CU.
;
;
; Hand-offs go through ws: slots are first set to 0xffffffff (flags in debug say when), writers never store that
;   value, readers poll with device-scope loads (bounded).  Stores write through, except inside a group whose 32
'''


class G:
    def __init__(self, **kw):
        self.o = dict(D=5, DX=7, BG=20, BO=25, NR=13, BI=0, bal=2, NF=24, NQ=0, stamps=0, clk=0, diag='',
                      prio=3, DQ=24, DF=24, FB=10, DD=1, DB=5, DM2=2, DW2=4, JT=5, RN=1, fast=1,
                      NP=12, sel=-1, slp=32, wks=1, EF=4, ED=1, PB=24, ND=20, U=4, N1=6,
                      WL=64, WLF=64, WLD=128, WF=64, WD=64, fsl=24, fs0=0, gw=0, TH=23, TV=0, NOM=335, pp=0, psl=4, mh=0, cs=1, DL=2, t0=2, ssh=3, db=1, hv=1, DP=5, kc=-1, ms=90, CL=40, CP=24, RO=12, NSM=16, sm=1, iws=8, hold=20, ptm=3, TB=0, pw=1, BW=35, BF=12, w2=0, t7=0, pf=5, lin=1, dt=0, xf=0, pt=2, ca=0, p2=1, xo=0, xs=0, xg=0, pol='')
        self.o.update(kw)
        global JT, RN, HV
        JT, RN, HV = self.o['JT'], self.o['RN'], self.o['hv']
        self.A = Asm()
        self.nl = 0

    def lab(self, s):
        self.nl += 1
        return f'L{self.nl}_{s}'

    def stamp(self, i, alt=0):
        m = self.o['stamps']
        if (m in (1, 3) and not alt) or (m == 2 and (alt == 1 or i in (0, 6))) or (m == 3 and alt == 3):
            self.A(f'{"s_memtime" if self.o["clk"] else "s_memrealtime"} {sp(48+2*i)}')

    def dump_stamps(self, area):
        if not self.o['stamps'] or self.o['diag']:
            return
        A = self.A
        A('s_mov_b64 exec, 1')
        A('s_getreg_b32 s62, hwreg(HW_REG_XCC_ID)')
        A('s_mov_b32 s63, s3')
        A('s_waitcnt lgkmcnt(0)')
        A('s_lshl_b32 s8, s2, 7')
        A(f's_add_u32 s8, s8, {STAMP0 + area}')
        A('v_mov_b32 v1, s8')
        for i in range(16):
            A(f'v_mov_b32 v{112+i}, s{48+i}')
        for i in range(4):
            A(f'global_store_dwordx4 v1, {vr(112+4*i,4)}, {sp(sWS)} offset:{16*i}')

    def rbf(self, v):
        self.A(f'v_cvt_pk_bf16_f32 {v}, {v}, {v}')
        self.A(f'v_lshlrev_b32 {v}, 16, {v}')

    def unpack(self, dst, src, n):
        for i in range(n):
            self.A(f'v_and_b32 v{dst+2*i+1}, 0xffff0000, v{src+i}')
            self.A(f'v_lshlrev_b32 v{dst+2*i}, 16, v{src+i}')

    def pack(self, dst, src, n):
        for i in range(n):
            self.A(f'v_cvt_pk_bf16_f32 v{dst+i}, v{src+2*i}, v{src+2*i+1}')

    def rbf8(self, x, t):
        self.pack(t, x, 4)
        self.unpack(x, t, 4)

    def pk(self, op, d, a, b, n=4, bstep=2, mods=''):
        for i in range(n):
            self.A(f'v_pk_{op}_f32 {vr(d+2*i,2)}, {vr(a+2*i,2)}, {vr(b+bstep*i,2)} {mods}')

    def xrow(self, op, v, t):
        for sw in ('v_permlane16_swap_b32', 'v_permlane32_swap_b32'):
            self.A(f'v_mov_b32 {t}, {v}')
            self.A(f'{sw} {v}, {t}')
            self.A(f'{op} {v}, {v}, {t}')

    def rowred(self, op, v, modes):
        for m in modes:
            self.A(f'{op}_dpp {v}, {v}, {v} {m} {DPPM}')

    ROW16 = ('quad_perm:[1,0,3,2]', 'quad_perm:[2,3,0,1]', 'row_half_mirror', 'row_mirror')
    ROWPAR = ('quad_perm:[2,3,0,1]', 'row_ror:4', 'row_ror:8')

    def silu(self, v, t, u):
        A = self.A
        A(f'v_mul_f32 {t}, {LOG2E}, {v}')
        A(f'v_exp_f32 {t}, -{t}')
        A(f'v_add_f32 {t}, 1.0, {t}')
        A(f'v_rcp_f32 {u}, {t}')
        A(f'v_mul_f32 v2, {v}, {u}')
        A(f'v_fma_f32 v3, -v2, {t}, {v}')
        A(f'v_fma_f32 v2, v3, {u}, v2')
        A(f'v_div_fixup_f32 {v}, v2, {t}, {v}')

    def invalid(self, regs, t):
        A = self.A
        regs = list(regs)
        if len(regs) == 1:
            A(f'v_cmp_eq_u32 vcc, -1, v{regs[0]}')
            return
        cur = f'v{regs.pop(0)}'
        while regs:
            if len(regs) >= 2:
                A(f'v_max3_u32 {t}, {cur}, v{regs.pop(0)}, v{regs.pop(0)}')
            else:
                A(f'v_max_u32 {t}, {cur}, v{regs.pop(0)}')
            cur = t
        A(f'v_cmp_eq_u32 vcc, -1, {t}')

    def poll(self, loads, regs, t, sleep=0, cnt='s9', mask=False, fly=0):
        A = self.A
        top, done = self.lab('poll'), self.lab('pdone')
        A(f's_mov_b32 {cnt}, {SPIN}')
        A(f'{top}:')
        loads()
        A(f's_waitcnt vmcnt({fly})')
        self.invalid(regs, t)
        A(f's_cbranch_vccz {done}')
        if mask:
            A('s_mov_b64 exec, vcc')
        if sleep:
            A(f's_sleep {sleep}')
        A(f's_sub_u32 {cnt}, {cnt}, 1')
        A(f's_cbranch_scc0 {top}')
        A(f'{done}:')
        if mask:
            A('s_mov_b64 exec, -1')

    def spoll(self, loads, work, lanes=None, one=None):
        A = self.A
        top, done = self.lab('spoll'), self.lab('sdone')
        A(f's_mov_b32 s9, {SPIN}')
        A(f's_mov_b64 vcc, {lanes or -1}')
        A(f'{top}:')
        A('s_sub_u32 s9, s9, 1')
        A(f's_cbranch_scc1 {done}')
        A('s_mov_b64 exec, vcc')
        if one:
            A(one[0])
        for t, r in loads:
            A(t)
        A('s_mov_b64 exec, -1')
        for i, (t, r) in enumerate(loads):
            A(f's_waitcnt vmcnt({len(loads)-1-i})')
            if i == 0 and one:
                chk = [f'v_max3_u32 v1, v{one[1]}, v{r}, v{r+1}', f'v_max3_u32 v1, v1, v{r+2}, v{r+3}']
            elif i == 0:
                chk = [f'v_max3_u32 v1, v{r}, v{r+1}, v{r+2}', f'v_max_u32 v1, v1, v{r+3}']
            else:
                chk = [f'v_max3_u32 v1, v1, v{r}, v{r+1}', f'v_max3_u32 v1, v1, v{r+2}, v{r+3}']
            w = list(work[i])
            A(w.pop(0))
            for c in chk:
                A(c)
            if i + 1 == len(loads):
                A('v_cmp_eq_u32 vcc, -1, v1')
            for x in w:
                A(x)
        if lanes:
            A(f's_and_b64 vcc, vcc, {lanes}')
        A(f's_cbranch_vccnz {top}')
        A(f'{done}:')

    def flags_addr(self, va, both):
        A = self.A
        A(f'v_and_b32 {va}, 7, v0')
        if both:
            A('v_cmp_gt_u32 vcc, 32, v0')
            A(f'v_cndmask_b32 {va}, v0, {va}, vcc')
        A(f'v_lshlrev_b32 {va}, 2, {va}')

    def flags_wait(self, va, vd, cnt='s9'):
        A = self.A
        top, done = self.lab('flag'), self.lab('fdone')
        A(f's_mov_b32 {cnt}, {SPIN}')
        A(f'{top}:')
        A(f'global_load_dword {vd}, {va}, {sp(sDBG)} sc1')
        A('s_waitcnt vmcnt(0)')
        A(f'v_cmp_eq_u32 vcc, 0, {vd}')
        A(f's_cbranch_vccz {done}')
        A('s_sleep 8')
        A(f's_sub_u32 {cnt}, {cnt}, 1')
        A(f's_cbranch_scc0 {top}')
        A(f'{done}:')

    def op_addr(self, dst, rd, rdbase):
        A = self.A
        A('s_and_b32 s44, s2, 7')
        A('s_lshr_b32 s45, s2, 3') if dst == 'v57' else A('s_lshr_b32 s8, s2, 3')
        A('s_lshl_b32 s44, s44, 5')
        A(f's_add_u32 s44, s44, {"s45" if dst == "v57" else "s8"}')
        A('s_mul_i32 s44, s44, 384')
        A(f's_add_u32 s44, s44, {H_OP}')
        A('v_and_b32 v1, 0x31, v0')
        if self.o['lin']:
            A('v_bfe_u32 v2, v0, 2, 2')
            A('v_lshl_add_u32 v1, v2, 1, v1')
            A('v_bfe_u32 v2, v0, 1, 1')
            A('v_lshl_add_u32 v1, v2, 3, v1')
            A(f'v_lshl_add_u32 {dst}, v0, 3, s44')
        else:
            A('v_bfe_u32 v2, v0, 1, 2')
            A('v_lshl_add_u32 v1, v2, 2, v1')
            A('v_bfe_u32 v2, v0, 3, 1')
            A('v_lshl_add_u32 v1, v2, 1, v1')
            A(f'v_lshl_add_u32 {dst}, v1, 3, s44')
            A('v_mov_b32 v1, v0')
        A('v_min_u32 v1, 47, v1')
        A('v_lshlrev_b32 v1, 4, v1')
        A(f'v_add_u32 {rd}, {rdbase}, v1')

    def mode_store(self, text, mode):
        A = self.A
        thru, done = self.lab('thru'), self.lab('stored')
        A(f's_cmp_lg_u32 {mode}, 2')
        A(f's_cbranch_scc1 {thru}')
        A(text + ' ' + self.o['pol'])
        A(f's_branch {done}')
        A(f'{thru}:')
        A(text + ' sc1')
        A(f'{done}:')

    def lwait(self, off, test, sleep):
        A = self.A
        top, done = self.lab('lw'), self.lab('lwd')
        A(f'v_mov_b32 v1, {L_CNT}')
        A(f's_mov_b32 s9, {SPIN*8}')
        A(f'{top}:')
        A(f'ds_read_b32 v2, v1 offset:{off}')
        A('s_waitcnt lgkmcnt(0)')
        A('v_readfirstlane_b32 s8, v2')
        test()
        A(f's_cbranch_scc1 {done}')
        A(f's_sleep {sleep}')
        A('s_sub_u32 s9, s9, 1')
        A(f's_cbranch_scc0 {top}')
        A(f'{done}:')

    def item_wait(self, bit):
        self.lwait(C_IC, lambda: self.A(f's_bitcmp1_b32 s8, {bit}'), self.o['iws'])

    def ws_srd(self):
        A = self.A
        A(f's_mov_b32 s4, s{sWS}')
        A(f's_mov_b32 s5, s{sWS+1}')
        A(f's_mov_b32 s6, {H_END}')
        A('s_mov_b32 s7, 0x20000')

    RING, Q, S = 64, 16, 28

    def entry(self):
        A = self.A
        n = KN + '_kernel'
        A('.amdgcn_target "amdgcn-amd-amdhsa--gfx950"')
        A('.text')
        A(f'.globl {n}')
        A('.p2align 8')
        A(f'.type {n},@function')
        A(f'{n}:')
        A('s_cmp_ge_u32 s2, 256')
        A('s_cbranch_scc1 L_end')
        self.stamp(0)
        A('s_load_dwordx16 s[64:79], s[0:1], 0')
        A('v_lshrrev_b32 v1, 6, v0')
        A('s_load_dwordx8 s[80:87], s[0:1], 64')
        A('v_readfirstlane_b32 s3, v1')
        A('s_load_dwordx4 s[88:91], s[0:1], 96')
        A('v_and_b32 v0, 63, v0')
        A('s_cmp_ge_u32 s3, 4')
        A('s_cbranch_scc1 L_helper')
        A('s_and_b32 s13, s2, 7')
        A('s_lshr_b32 s14, s2, 4')
        A('s_lshl4_add_u32 s34, s13, s14')
        A(f's_mul_i32 s34, s34, {PER}')
        A('s_bfe_u32 s12, s2, 0x10003')
        A('s_lshl2_add_u32 s12, s12, s3')
        A('s_mul_i32 s36, s12, 392')
        A('s_lshr_b32 s36, s36, 10')
        A('s_mul_i32 s36, s36, 22')
        A('s_lshl3_add_u32 s36, s12, s36')
        A('s_mul_i32 s36, s36, 1536')
        A('v_and_b32 v1, 1, v0')
        A('v_lshrrev_b32 v2, 4, v0')
        A('v_lshl_add_u32 v1, v1, 2, v2')
        A('v_lshlrev_b32 v51, 4, v1')
        A('v_bfe_u32 v1, v0, 1, 2')
        A('v_bfe_u32 v2, v0, 3, 1')
        A('v_mul_u32_u24 v2, 84, v2')
        A('v_add_u32 v1, v1, v2')
        A('v_mul_u32_u24 v1, 384, v1')
        A('v_add_u32 v40, v1, v51')
        A(f's_mov_b32 s10, {PER}')
        A('s_mov_b32 s11, 0x20000')
        self.stamp(5, 1)
        A('s_waitcnt lgkmcnt(0)')
        self.stamp(1, 1)
        A(f's_add_u32 s8, s{sK}, s34')
        A(f's_addc_u32 s9, s{sK+1}, 0')
        for n in range(self.o['N1']):
            A(f'buffer_load_dwordx4 {vr(self.RING+4*n,4)}, v40, s[8:11], s36 offen offset:{1536*(n//3) + 128*(n%3)} nt')
        A('s_barrier')
        A('s_branch L_stream')

    def stream(self):
        A = self.A
        o = self.o
        D, bal = o['D'], o['bal']
        DX = o['DX'] if bal else D
        RING, Q, S = self.RING, self.Q, self.S
        A('L_stream:')
        for t in range(1, 8):
            A(f's_lshl3_add_u32 s44, s12, {t}')
            A('s_mul_i32 s45, s44, 49')
            A('s_lshr_b32 s45, s45, 10')
            A('s_mul_i32 s45, s45, 22')
            A('s_add_u32 s45, s45, s44')
            A(f's_mul_i32 s{36+t}, s45, 1536')
        A('s_cmp_eq_u32 s12, 7')
        A(f's_cselect_b32 s43, {42*1536}, s43')
        A(f's_cselect_b32 s44, {22*1536}, 0')
        A('v_bfe_u32 v1, v0, 3, 1')
        A('v_mad_u32_u24 v41, v1, s44, v40')
        A('v_bfe_u32 v1, v0, 3, 2')
        A('v_lshrrev_b32 v2, 5, v0')
        A('v_mul_u32_u24 v3, 84, v2')
        A('v_add_u32 v1, v1, v3')
        A('v_mul_u32_u24 v1, 384, v1')
        A('v_and_b32 v3, 7, v0')
        A('v_lshl_add_u32 v38, v3, 4, v1')
        A('v_mad_u32_u24 v39, v2, s44, v38')

        A('s_mov_b64 s[14:15], s[8:9]')
        A('s_mov_b32 s97, 0x07654321')

        def nxt_slice():
            A('s_and_b32 s46, s97, 7')
            A('s_lshr_b32 s97, s97, 4')
            A(f's_mul_i32 s46, s46, {128*PER}')
            A('s_add_u32 s8, s14, s46')
            A('s_addc_u32 s9, s15, 0')

        def load(n):
            k = n % 24
            t = k // 3
            A(f'buffer_load_dwordx4 {vr(RING+4*n,4)}, v{41 if t == 7 else 40}, s[8:11], s{36+t} offen offset:{128*(k%3)} nt')
            if k == 23:
                nxt_slice()

        def setup():
            self.ws_srd()
            A('s_getpc_b64 s[98:99]')
            A('L_pc2:')
            A('s_add_u32 s98, s98, L_tab-L_pc2')
            A('s_addc_u32 s99, s99, 0')
            A('s_lshl_b32 s44, s2, 2')
            A('s_load_dword s93, s[98:99], s44')
            A('s_mov_b32 s16, 0xff00ff00')
            A('s_mov_b32 s17, 0xff00ff00')
            for t in range(8):
                A(f's_mov_b32 s{18+2*t}, {0x01010101 << t}')
                A(f's_mov_b32 s{19+2*t}, {0x01010101 << t}')
            yield
            A('v_and_b32 v1, 1, v0')
            A('v_lshlrev_b32 v1, 4, v1')
            A('v_mov_b32 v2, 0xffff')
            A('v_lshlrev_b32 v1, v1, v2')
            A('v_bfe_u32 v2, v0, 1, 2')
            for w in range(4):
                A(f'v_cmp_eq_u32 vcc, {w}, v2')
                A(f'v_cndmask_b32 v{42+w}, 0, v1, vcc')
            yield
            A('v_bfe_u32 v1, v0, 3, 2')
            A('v_mul_u32_u24 v1, 6144, v1')
            A('v_lshrrev_b32 v2, 5, v0')
            A('v_lshl_add_u32 v1, v2, 7, v1')
            A('v_and_b32 v2, 7, v0')
            A('v_lshl_add_u32 v1, v2, 4, v1')
            A('s_mul_i32 s44, s13, 768')
            A(f's_add_u32 s44, s44, {H_Q}')
            A('v_add_u32 v50, s44, v1')
            A('s_mul_i32 s35, s3, 12288')
            A(f's_add_u32 s35, s35, {L_PART}')
            A('v_add_u32 v51, s35, v51')
            A('v_lshrrev_b32 v1, 4, v0')
            A('v_lshlrev_b32 v1, 5, v1')
            A(f's_lshl3_add_u32 s44, s3, {L_MLL}')
            A('v_add_u32 v52, s44, v1')
            self.flags_addr('v54', True)
            yield
            if bal:
                sh = 4 if o['NSM'] == 16 else 5
                A(f's_lshr_b32 s45, s2, {sh}')
                A(f's_and_b32 s44, s2, {(1 << sh) - 1}')
                A('s_xor_b32 s44, s44, s45')
                A('s_bfe_u32 s46, s2, 0x20001')
                A('s_xor_b32 s46, s46, s3')
                A('s_or_b32 s92, s44, s46')
                A('s_lshl_b32 s45, s45, 7')
                A(f's_add_u32 s45, s45, {H_TS}')
                A('v_mov_b32 v58, s45')
                A(f's_mov_b32 s100, {o["BI"]}')
                A(f's_add_u32 s64, s{sWS}, {H_TS}')
                A(f's_addc_u32 s65, s{sWS+1}, 0')
            yield
            A('s_waitcnt lgkmcnt(0)')
            b0 = o['BO'] + o['BG'] // 2 if bal == 1 else -o['TH']
            A(f's_mov_b32 s101, {16*b0}')
            A('s_bitcmp1_b32 s93, 30')
            A(f's_cselect_b32 s101, {16*(b0 + o["BW"])}, s101')
            A('s_bitcmp1_b32 s93, 31')
            A(f's_cselect_b32 s101, {16*(b0 + o["BF"])}, s101')
            A('v_lshrrev_b32 v1, 5, v0')
            A('v_mul_u32_u24 v1, 768, v1')
            A('v_bfe_u32 v2, v0, 4, 1')
            A('v_lshl_add_u32 v1, v2, 7, v1')
            A('v_and_b32 v2, 7, v0')
            A('v_lshl_add_u32 v1, v2, 4, v1')
            A('v_add_u32 v62, s35, v1')
            self.op_addr('v57', 'v56', L_PART + 7 * 1536)
            A('s_mov_b32 s94, 0x00ff00ff')
            A('s_mov_b32 s95, 0xff00ff00')
            A('v_mov_b32 v55, 1')
            A('v_mov_b32 v60, 1')
            A(f'v_mov_b32 v63, {L_CNT}')
            yield

        def qloads():
            for j in range(3):
                A(f'buffer_load_dwordx4 {vr(Q+4*j,4)}, v50, s[4:7], 0 offen offset:{256*j} sc1')
        DP = o['DP']
        NF, NQ = o['NF'], o['NQ'] or 47 - DP
        assert NQ - NF > DP + 1 and NF >= 13 and o['EF'] >= 1 and o['ED'] >= 1 and o['N1'] <= 6
        su = setup()
        for n in range(o['N1'], 48):
            ex = (1 if NF < n <= NF + DP else 0) + (3 if NQ < n <= NQ + DP else 0)
            if o['hv'] and n >= 18:
                if n in (18, NQ + 1):
                    A('s_bitcmp1_b32 s93, 29')
                    A('s_cselect_b64 vcc, -1, 0')
                l = self.lab('y')
                A(f's_waitcnt vmcnt({DX-1+ex})')
                A(f's_cbranch_vccnz {l}')
                A(f's_waitcnt vmcnt({DP-1+ex})')
                A(f'{l}:')
            else:
                A(f's_waitcnt vmcnt({DP-1+ex})')
            if n in (6, 10, 16):
                self.stamp({6: 2, 10: 3, 16: 4}[n], 1)
            load(n)
            if n >= 8 and n % 2 == 0:
                next(su, None)
            if n == NF:
                A(f'global_load_dword v53, v54, {sp(sDBG)} sc1')
            if n == NQ:
                ok = self.lab('fok')
                A('v_cmp_eq_u32 vcc, 0, v53')
                A(f's_cbranch_vccz {ok}')
                self.flags_wait('v54', 'v53', 's99')
                A(f'{ok}:')
                qloads()
        self.stamp(1)
        A(f's_waitcnt vmcnt({47-NQ})')
        ok = self.lab('qok')
        self.invalid(range(Q, Q + 12), 'v1')
        A(f's_cbranch_vccz {ok}')
        self.poll(qloads, range(Q, Q + 12), 'v1', cnt='s99')
        A(f'{ok}:')
        A('v_lshl_add_u32 v1, v0, 4, s35')
        for j in range(3):
            A(f'ds_write_b128 v1, {vr(Q+4*j,4)} offset:{1024*j}')
        for j in range(3):
            A(f'ds_read_b128 {vr(Q+4*j,4)}, v51 offset:{1024*j}')
        self.stamp(2)
        NR, PB, ND, U = o['NR'], o['PB'], o['ND'], o['U']
        NB = PB // U
        assert ND % U == 0 and ND <= PB and NR + 3 < ND

        def wait(n, extra=-100):
            ex = lambda d: 1 if extra < n <= extra + d else 0
            if not bal:
                A(f's_waitcnt vmcnt({D-1+ex(D)})')
                return
            if n % U == 0 and bal == 1:
                A(f's_bitcmp1_b32 s100, {((n - ND) // U) % NB}')
                A('s_cselect_b64 vcc, -1, 0')
            l = self.lab('x')
            A(f's_waitcnt vmcnt({DX-1+ex(DX)})')
            A(f's_cbranch_vccnz {l}')
            A(f's_waitcnt vmcnt({D-1+ex(D)})')
            A(f'{l}:')

        CP, RO, NSM = o['CP'], o['RO'], o['NSM']
        back = (U - 1 + RO) // CP
        if bal == 2:
            assert RO % U == 0 and CP % U == 0 and (U - 1 + RO) % CP + U < CP + (CP == 24) * 0 + 1
            assert (336 // CP + back) * NSM * 128 <= H_FLG - H_TS
            A('s_memrealtime s[0:1]')
            A(f's_mov_b32 s87, {16*o["NOM"]*U//24}')
            A('s_mov_b32 s86, 0')
            A(f's_mov_b32 s98, {1 + back}')
            A(f's_mov_b64 vcc, {o["BI"]}')
            A(f'v_add_u32 v58, {back*NSM*128}, v58')
            if o['kc'] >= 0:
                A('v_lshl_add_u32 v58, v0, 6, v58')
                A(f's_getreg_b32 s44, hwreg(HW_REG_HW_ID, {o["kc"]}, 1)')
                A('s_lshl_b32 s44, s44, 6')
                A('s_add_u32 s64, s64, s44')
                A('s_addc_u32 s65, s65, 0')
            A('s_waitcnt lgkmcnt(0)')
            A(f's_add_u32 s100, s0, {-100000 if o["BI"] else 100000}')
            if o['hv']:
                A('s_sub_u32 s44, s0, 60')
                A('s_bitcmp1_b32 s93, 29')
                A('s_cselect_b32 s100, s44, s100')
                A('s_cselect_b64 vcc, -1, 0')
            A('s_lshl_b32 s100, s100, 4')

        def balance2(n):
            n = n % CP
            if n % U == U - 2:
                A('s_memrealtime s[0:1]')
            if n % U == U - 1:
                A('s_waitcnt lgkmcnt(0)')
                A('s_lshl4_add_u32 s44, s0, s101')
                A('s_sub_u32 s44, s44, s100')
                A('s_add_u32 s100, s100, s87')
                A('s_cmp_gt_i32 s44, 0')
                A('s_cselect_b64 vcc, -1, 0')
            if n == U - 1:
                l = self.lab('nopub')
                A('s_cmp_lg_u32 s92, 0')
                A(f's_cbranch_scc1 {l}')
                A('v_mov_b32 v59, s0')
                A(f's_mov_b64 exec, {3 if o["kc"] >= 0 else 1}')
                A('buffer_store_dword v59, v58, s[4:7], 0 offen sc1')
                A('s_mov_b64 exec, -1')
                A(f'v_add_u32 v58, {NSM*128}, v58')
                A(f'{l}:')
            if n == (U - 1 + RO) % CP:
                for i in range(NSM):
                    A(f's_load_dword s{70+i}, s[64:65], {128*i}')
            if n == (U - 1 + RO) % CP + U:
                A(f's_add_u32 s64, s64, {NSM*128}')
                A('s_addc_u32 s65, s65, 0')
                A('s_mov_b32 s45, 0')
                st = 's0'
                if o['ms']:
                    A('s_sub_u32 s47, s44, s101')
                    A('s_max_i32 s47, s47, 0')
                    A('s_lshr_b32 s47, s47, 4')
                    A(f's_add_u32 s47, s47, {o["ms"]}')
                    A('s_sub_u32 s47, s0, s47')
                    st = 's47'
                for i in range(NSM):
                    A(f's_cmp_eq_u32 s{70+i}, -1')
                    A(f's_cselect_b32 s{70+i}, {st}, s{70+i}')
                    A(f's_add_u32 s45, s45, s{70+i}')
                if NSM == 8:
                    A('s_lshl_b32 s45, s45, 1')
                A('s_sub_u32 s44, s45, s86')
                A('s_mov_b32 s86, s45')
                A(f's_mul_i32 s1, s87, {CP // U}')
                A('s_sub_u32 s44, s44, s1')
                A(f's_min_i32 s44, s44, {16*o["CL"]}')
                A(f's_max_i32 s44, s44, {-16*o["CL"]}')
                A(f's_mul_hi_i32 s44, s44, {(2**32 * U // CP) >> o["sm"]}')
                A('s_add_u32 s44, s44, s87')
                A('s_sub_u32 s98, s98, 1')
                A('s_cselect_b32 s87, s44, s87')
                A('s_cselect_b32 s98, 0, s98')
                A(f's_mul_i32 s44, s87, {RO//U + 2}')
                A('s_add_u32 s100, s45, s44')

        def balance(n, last=False):
            if not bal:
                return
            if bal == 2:
                return balance2(n)
            if last and n - n % PB + ND >= 48:
                return
            n = n % PB
            if n == 0:
                A('s_memrealtime s[0:1]')
            if n == 1:
                l = self.lab('nopub')
                A('s_cmp_lg_u32 s92, 0')
                A(f's_cbranch_scc1 {l}')
                A('s_waitcnt lgkmcnt(0)')
                A('v_mov_b32 v59, s0')
                A('s_mov_b64 exec, 1')
                A('buffer_store_dword v59, v58, s[4:7], 0 offen sc1')
                A('s_mov_b64 exec, -1')
                A('v_add_u32 v58, 2048, v58')
                A(f'{l}:')
            if n == NR:
                for i in range(16):
                    A(f's_load_dword s{70+i}, s[64:65], {128*i}')
            if n == ND - 2:
                A('s_waitcnt lgkmcnt(0)')
                A('s_add_u32 s64, s64, 2048')
                A('s_addc_u32 s65, s65, 0')
                A(f's_add_u32 s1, s0, {int(NR*13.8)+40}')
                A('s_lshl_b32 s86, s0, 4')
            if n in (ND - 2, ND - 1):
                for i in range(8 * (n - ND + 2), 8 * (n - ND + 3)):
                    A(f's_cmp_eq_u32 s{70+i}, -1')
                    A(f's_cselect_b32 s{70+i}, s1, s{70+i}')
                    A(f's_sub_u32 s86, s86, s{70+i}')
            if n == ND - 1:
                A('s_add_i32 s44, s86, s101')
                A('s_max_i32 s44, s44, 0')
                A(f's_mul_hi_u32 s44, s44, {2**32 // (16*o["BG"])}')
                A(f's_lshr_b32 s45, s100, {NB - ND // U}')
                A('s_bcnt1_i32_b32 s45, s45')
                A('s_sub_i32 s44, s44, s45')
                A('s_max_i32 s44, s44, 0')
                A(f's_min_i32 s44, s44, {NB}')
                A('s_bfm_b32 s100, s44, 0')

        def ldsadd(v):
            A(f'v_mov_b32 v7, {v}')
            A('s_mov_b64 exec, 1')
            A(f'ds_add_u32 v63, v7 offset:{C_WK}')
            A('s_mov_b64 exec, -1')
        A('s_mov_b32 s99, 0')
        A('L_kloop:')
        A('s_cmp_lg_u32 s99, 3')
        A('s_cbranch_scc1 L_knosw')
        A(f's_add_u32 s14, s{sV}, s34')
        A(f's_addc_u32 s15, s{sV+1}, 0')
        A(f's_mov_b32 s97, {sum(x << (4*i) for i, x in enumerate(VORD if not o["xo"] else range(8)))}')
        nxt_slice()
        A('v_mov_b32 v40, v38')
        A('v_mov_b32 v41, v39')
        ldsadd(1)
        if o['p2']:
            A('s_setprio 2')
        A('L_knosw:')

        def extract(t):
            d = 8 + 4 * (t & 1)
            A(f'v_cndmask_b32 v2, v{d}, v{d+2}, s[16:17]')
            A(f'v_cndmask_b32 v3, v{d+1}, v{d+3}, s[16:17]')
            if t & 1:
                A(f'v_add_f32_dpp v2, v2, v3 quad_perm:[1,0,3,2] {DPPM}')
            else:
                A(f'v_add_f32_dpp v2, v3, v2 quad_perm:[1,0,3,2] {DPPM}')
            A(f'v_cndmask_b32 v36, v36, v2, {sp(18+2*t)}')

        def score(i):
            self.rbf('v36')
            A(f'v_mul_f32 v36, {SCALE}, v36')
            A('v_cvt_pk_bf16_f32 v36, v36, v36')
            if i == 0:
                for x in range(6):
                    A(f'v_mov_b32 v{S+x}, v{S+x+2}')
            A(f'v_lshlrev_b32 v{S+6+i}, 16, v36')
        for n in range(48):
            k = n % 24
            t, j = k // 3, k % 3
            d = 8 + 4 * (t & 1)
            if k == 0:
                A('s_waitcnt lgkmcnt(0)')
            A(f'v_mfma_f32_16x16x32_bf16 {vr(d,4)}, {vr(RING+4*n,4)}, {vr(Q+4*j,4)}, {"0" if j == 0 else vr(d,4)}')
            if t == 7:
                A(f'ds_read_b128 {vr(Q+4*j,4)}, v51 offset:{1024*j + 128*(n//24 + 1)}')
            wait(n)
            load(n)
            balance(n)
            if o['TB'] and n == 24 + ND - 1:
                A('s_cmp_eq_u32 s99, 3')
                A(f's_cselect_b32 s44, {o["TB"]}, 0')
                A('s_or_b32 s100, s100, s44')
            if j == 0 and n > 0:
                extract((t - 1) & 7)
                if n == 24:
                    score(0)
        extract(7)
        score(1)
        A('v_add_u32 v51, 256, v51')
        A('s_add_u32 s99, s99, 1')
        A('s_cmp_lt_u32 s99, 4')
        A('s_cbranch_scc1 L_kloop')
        self.stamp(3)
        T = 8

        def tree(op, d0, d1):
            for a in (0, 1, 4, 5):
                A(f'v_permlane32_swap_b32 v{T+a}, v{T+a+2}')
            for a in (0, 1, 4, 5):
                A(f'{op} v{T+a}, v{T+a}, v{T+a+2}')
            for a in (0, 4):
                A(f'v_permlane16_swap_b32 v{T+a}, v{T+a+1}')
            A(f'{op} v{d0}, v{T}, v{T+1}')
            A(f'{op} v{d1}, v{T+4}, v{T+5}')
            for m in self.ROW16:
                for d in (d0, d1):
                    A(f'{op}_dpp v{d}, v{d}, v{d} {m} {DPPM}')
        for i in range(8):
            A(f'v_mov_b32 v{T+i}, v{S+VORD[i]}')
        tree('v_max_f32', 46, 48)
        for i in range(8):
            A(f'v_readlane_b32 s{70+i}, v{46+2*(i>>2)}, {16*(i&3)}')
        for i in range(8):
            A(f'v_subrev_f32 v{T+i}, s{70+i}, v{S+VORD[i]}')
        for i in range(8):
            A(f'v_mul_f32 v{T+i}, {LOG2E}, v{T+i}')
        for i in range(8):
            A(f'v_exp_f32 v{T+i}, v{T+i}')
        for i in range(8):
            A(f'v_cvt_pk_bf16_f32 v{S+i}, v{T+i}, v{T+i}')
        if o['t0'] >= 2:
            A(f'v_mov_b32 v61, v{T+7}')
        tree('v_add_f32', 47, 49)
        A('s_mov_b32 exec_lo, 0x00010001')
        A('s_mov_b32 exec_hi, 0x00010001')
        A('ds_write_b64 v52, v[46:47]')
        A('ds_write_b64 v52, v[48:49] offset:128')
        A('s_mov_b64 exec, 1')
        A(f'ds_add_u32 v63, v55 offset:{C_KC}')
        A('s_mov_b64 exec, -1')
        A('s_waitcnt lgkmcnt(0)')

        def pv(c):
            t = (c % 24) // 3
            b = 8 + 4 * (t & 1)
            A(f'v_mov_b32_dpp v6, v{S+c//24} row_newbcast:{t} row_mask:0xf bank_mask:0x3')
            A(f'v_mov_b32_dpp v37, v{S+c//24} row_newbcast:{8+t} row_mask:0xf bank_mask:0xc')
            A('v_or_b32 v5, v6, v37')
            for w in range(4):
                A(f'v_and_b32 v{b+w}, v5, v{42+w}')

        def pm(c):
            t, j = (c % 24) // 3, c % 3
            b = 8 + 4 * (t & 1)
            A(f'v_mfma_f32_16x16x32_bf16 {vr(Q+4*j,4)}, {vr(RING+4*(c%48),4)}, {vr(b,4)}, {"0" if t == 0 else vr(Q+4*j,4)}')

        def flush():
            A('s_mov_b64 exec, s[94:95]')
            for j in range(3):
                A(f'ds_write_b128 v62, {vr(Q+4*j,4)} offset:{256*j}')
            A('s_mov_b64 exec, 1')
            A(f'ds_add_u32 v63, v60 offset:{C_IC}')
            A('s_mov_b64 exec, -1')
            A('v_add_u32 v62, 1536, v62')
            A('v_lshlrev_b32 v60, 4, v60')

        def factor(cnt='s99'):
            top, done = self.lab('rdy'), self.lab('rdyd')
            A(f's_lshl2_add_u32 s44, s3, {L_FL + 7*16}')
            A('v_mov_b32 v2, s44')
            A(f's_mov_b32 {cnt}, {SPIN*8}')
            A(f'{top}:')
            A(f'ds_read_b32 v1, v63 offset:{C_RDY}')
            A('ds_read_b32 v46, v2')
            A('s_waitcnt lgkmcnt(0)')
            A('v_readfirstlane_b32 s96, v1')
            A('s_cmp_lg_u32 s96, 0')
            A(f's_cbranch_scc1 {done}')
            A(f's_sub_u32 {cnt}, {cnt}, 1')
            A(f's_cbranch_scc0 {top}')
            A(f'{done}:')
        A('v_mov_b32 v6, 0')
        A('v_mov_b32 v37, 0')
        LAG = 9
        assert LAG > DX

        def consume(c):
            if c % 24 == 0 and c:
                flush()
            if c % 3 == 0:
                pv(c)
            pm(c)
        c = 0
        for n in range(48):
            while c < min(2 * n + 2, 49 + n - LAG):
                consume(c)
                c += 1
            wait(n)
            load(n)
            balance(n)
        assert c == 96 - LAG
        A('s_mov_b32 s99, 0')
        A('L_vloop:')
        for i in range(6):
            A(f'v_mov_b32 v{S+i}, v{S+i+2}')
        for n in range(48):
            consume(48 + n - LAG)
            wait(n)
            load(n)
            balance(n)
            if o['t0'] >= 2 and n == 24:
                A('s_cmp_eq_u32 s99, 0')
                A('s_cbranch_scc1 L_nofac')
                factor('s47')
                A('v_mul_f32 v61, v61, v46')
                A(f'v_cvt_pk_bf16_f32 v{S+3}, v61, v61')
                A('L_nofac:')
        if o['TV']:
            A(f's_sub_u32 s101, s101, {16*o["TV"]}')
        A('s_add_u32 s99, s99, 1')
        A('s_cmp_lt_u32 s99, 2')
        A('s_cbranch_scc1 L_vloop')
        ldsadd(16)
        if o['t0'] < 2:
            factor()
        self.stamp(4)
        nxt = (c + 2) // 3
        while c < 96:
            while nxt < 32 and nxt <= (c + 2) // 3:
                pv(3 * nxt)
                nxt += 1
            if 95 - c < DX:
                A(f's_waitcnt vmcnt({95-c})')
            pm(c)
            c += 1
        self.stamp(5)
        A('s_mov_b64 exec, s[94:95]')
        for j in range(3):
            for h in range(2 if o['t0'] < 2 else 0):
                A(f'v_pk_mul_f32 {vr(Q+4*j+2*h,2)}, {vr(Q+4*j+2*h,2)}, v[46:47] op_sel_hi:[1,0]')
            A(f'ds_write_b128 v62, {vr(Q+4*j,4)} offset:{256*j}')
        A('s_mov_b64 exec, 1')
        A('ds_add_rtn_u32 v1, v63, v55')
        A('s_mov_b32 exec_lo, -1')
        A('s_mov_b32 exec_hi, 0xffff')
        for w in range(4):
            for h in range(2):
                A(f'ds_read_b128 {vr(64+8*w+4*h,4)}, v56 offset:{12288*w + 768*h}')
        A('s_waitcnt lgkmcnt(0)' if o['stamps'] else 's_waitcnt lgkmcnt(8)')
        A('v_readfirstlane_b32 s44, v1')
        if not o['t0']:
            A('s_cmp_lg_u32 s44, 3')
            A('s_cbranch_scc1 L_end')
        for w in range(4):
            A(f's_waitcnt lgkmcnt({6-2*w})')
            self.pk('add', 64 + 8 * w, 64 + 8 * w, 68 + 8 * w, n=2)
            if w:
                self.pk('add', 64, 64, 64 + 8 * w, n=2)
            elif o['t0']:
                A('s_cmp_lg_u32 s44, 3')
                A('s_cbranch_scc1 L_end')
        self.pack(2, 64, 2)
        A('v_min_u32 v2, -2, v2')
        A('v_min_u32 v3, -2, v3')
        self.mode_store('buffer_store_dwordx2 v[2:3], v57, s[4:7], 0 offen', 's96')
        ldsadd(64)
        self.stamp(6)
        self.dump_stamps(0)
        A('L_end:')
        A('s_endpgm')

    WR = 128

    def dma_addr(self, ptr, rowbase_s, stride, colb_s):
        A = self.A
        A(f's_mul_i32 s10, {rowbase_s}, {stride}')
        A(f's_add_u32 s10, s10, {colb_s}')
        A(f's_add_u32 s10, s{ptr}, s10')
        A(f's_addc_u32 s11, s{ptr+1}, 0')
        A(f'v_mul_u32_u24 v1, {stride}, v18')
        A('v_lshl_add_u32 v10, v19, 4, v1')
        A('v_xor_b32 v2, 4, v19')
        A('v_lshl_add_u32 v12, v2, 4, v1')
        A(f'v_add_u32 v12, {8*stride}, v12')
        A('v_mov_b32 v11, 0')
        A('v_mov_b32 v13, 0')
        A('v_lshl_add_u64 v[10:11], v[10:11], 0, s[10:11]')
        A('v_lshl_add_u64 v[12:13], v[12:13], 0, s[10:11]')

    def dma_issue(self, NS, stride, pol, DH, burst=0, cond=0, s0=0, jump=None, hold=0, mid=(0, None), nobar=None):
        A = self.A
        A(f's_mov_b32 s10, {16*stride}')
        A('s_mov_b32 s11, 0')
        self.stamp(4, 1)
        A(f's_add_u32 m0, s37, {4096*s0}')
        for i in range(4 * (NS - s0)):
            a = 10 + 2 * (i & 1)
            if i and i == mid[0]:
                mid[1]()
            if jump and i + 4 * s0 in (16, 17):
                A(f'v_lshl_add_u64 {vr(a,2)}, {vr(a,2)}, 0, {jump}')
            if i >= DH and i >= burst:
                if cond:
                    l = self.lab('np')
                    A(f's_cbranch_vccz {l}')
                A(f's_waitcnt vmcnt({DH-1})')
                if cond:
                    A(f'{l}:')
            A(f'global_load_lds_dwordx4 {vr(a,2)}, off {pol}')
            A('s_add_u32 m0, m0, 1024')
            A(f'v_lshl_add_u64 {vr(a,2)}, {vr(a,2)}, 0, s[10:11]')
            if self.o['hold'] and s0 == 0 and i + 1 == min(hold or self.o['hold'], 4 * NS):
                l = self.lab('nb')
                A(nobar or f's_cmp_lg_u32 s39, {L_RED}')
                A(f's_cbranch_scc1 {l}')
                A('s_barrier')
                A(f'{l}:')

    def tr_addr(self, worder):
        A = self.A
        A('v_bfe_u32 v1, v0, 2, 2')
        A('v_and_b32 v2, 3, v0')
        if worder == 2:
            A('v_lshl_add_u32 v3, v20, 2, v1')
            A('v_lshrrev_b32 v4, 1, v1')
            A('v_lshrrev_b32 v5, 1, v20')
        elif not worder:
            A('v_lshl_add_u32 v3, v20, 3, v1')
            A('v_lshrrev_b32 v4, 1, v1')
            A('v_and_b32 v5, 1, v20')
        else:
            A('v_lshlrev_b32 v3, 1, v20')
            A('v_lshl_add_u32 v3, v1, 3, v3')
            A('v_and_b32 v4, 1, v20')
            A('v_and_b32 v5, 1, v1')
        A('v_lshl_add_u32 v4, v5, 1, v4')
        A('v_lshlrev_b32 v3, 7, v3')
        A('v_lshl_add_u32 v3, v2, 3, v3')
        A('v_add_u32 v3, s37, v3')
        for ct in range(4):
            A(f'v_xor_b32 v5, {ct}, v4')
            A(f'v_lshl_add_u32 v{14+ct}, v5, 5, v3')

    def tr_read(self, NS, hfoff, extra=0, s0=0, WR=128):
        A = self.A
        self.stamp(1, 1)
        for s in range(s0, NS):
            A(f's_waitcnt vmcnt({4*(NS-1-s)+extra})')
            if s in (0, NS - 1):
                self.stamp(2 if s == 0 else 3, 1)
            for ct in range(4):
                for hf in range(2):
                    A(f'ds_read_b64_tr_b16 {vr(WR+16*s+4*ct+2*hf,2)}, v{14+ct} offset:{4096*s+hfoff*hf}')
        A('s_waitcnt lgkmcnt(0)')

    def dense_addr(self, dst, base, esz, k='v23'):
        A = self.A
        sh = 1 if esz == 2 else 2
        A(f'v_lshrrev_b32 v1, 6, {k}')
        A('v_lshl_add_u32 v1, v1, 1, v22')
        A('v_lshlrev_b32 v1, 6, v1')
        A(f'v_and_b32 v2, 63, {k}')
        A(f'v_add_lshl_u32 {dst}, v1, v2, {sh}')
        if base:
            A(f'v_add_u32 {dst}, {base}, {dst}')

    def mfma_std(self, act, NS=5, shadow=(), per=2):
        A = self.A
        shadow = list(shadow)
        for s in range(NS):
            cur = act if s == 0 else 112 + 4 * (s & 1)
            for ct in range(4):
                d = vr(96 + 4 * ct, 4)
                A(f'v_mfma_f32_16x16x32_bf16 {d}, {vr(self.WR+16*s+4*ct,4)}, {vr(cur,4)}, {"0" if s == 0 else d}')
                if s + 1 < NS and ct < 2:
                    for i in (2 * ct, 2 * ct + 1):
                        A(f'v_mov_b32_dpp v{112+4*((s+1)&1)+i}, v{act+i} row_shl:{2*(s+1)} {DPPM}')
                else:
                    for i in range(1 if s + 1 == NS and len(shadow) < 5 else per):
                        if shadow:
                            A(shadow.pop(0))
        for x in shadow:
            A(x)

    def red_addr(self):
        A = self.A
        A('s_lshl_b32 s10, s38, 9')
        A('s_add_u32 s10, s10, s39')
        A('v_lshlrev_b32 v1, 8, v22')
        A('v_lshl_add_u32 v1, v20, 4, v1')
        A('v_add_u32 v24, s10, v1')
        A('v_lshl_add_u32 v25, v0, 3, s39')
        A('s_lshr_b32 s10, s39, 9')
        A(f's_add_u32 s10, s10, {L_CNT + 4 - (L_RED >> 9)}')
        A('v_mov_b32 v26, s10')
        A('v_mov_b32 v27, 1')
        A('s_mov_b32 s45, 3')

    def arrive(self, notlast, reads=None, nreads=0, defer=False):
        A = self.A
        A('s_mov_b64 exec, 1')
        A('ds_add_rtn_u32 v1, v26, v27')
        A('s_mov_b64 exec, -1')
        if reads:
            reads()
        A(f's_waitcnt lgkmcnt({0 if self.o["stamps"] else nreads})')
        A('v_readfirstlane_b32 s8, v1')
        if not (defer and self.o['db']):
            self.lastonly(notlast)

    def lastonly(self, notlast, deferred=False):
        if deferred and not self.o['db']:
            return
        self.A('s_cmp_lg_u32 s8, s45')
        self.A(f's_cbranch_scc1 {notlast}')

    def probe(self):
        A = self.A
        if self.o['sel'] >= 0:
            return
        skip, top = self.lab('noprobe'), self.lab('probe')
        A('s_cmp_lg_u32 s38, 0')
        A(f's_cbranch_scc1 {skip}')
        A('s_lshr_b32 s10, s2, 6')
        A('s_lshl_b32 s10, s10, 14')
        A('s_and_b32 s11, s2, 63')
        A('s_lshl_b32 s11, s11, 7')
        A('s_add_u32 s10, s10, s11')
        A(f's_add_u32 s10, s10, {H_PRB}')
        A(f's_add_u32 s10, s{sWS}, s10')
        A(f's_addc_u32 s11, s{sWS+1}, 0')
        A('s_mov_b32 s12, -1')
        A('s_mov_b32 s13, -1')
        A(f's_mov_b32 s9, {self.o["NP"]}')
        A(f'{top}:')
        for c in range(2):
            A('s_memtime s[32:33]')
            A('s_waitcnt lgkmcnt(0)')
            A(f's_load_dword s8, s[10:11], {8192*c} glc')
            A('s_waitcnt lgkmcnt(0)')
            A('s_memtime s[34:35]')
            A('s_waitcnt lgkmcnt(0)')
            A('s_sub_u32 s8, s34, s32')
            A(f's_min_u32 s{12+c}, s{12+c}, s8')
        A('s_sub_u32 s9, s9, 1')
        A('s_cmp_lg_u32 s9, 0')
        A(f's_cbranch_scc1 {top}')
        A('s_cmp_lt_u32 s13, s12')
        A('s_cselect_b32 s8, 8192, 0')
        A(f'v_mov_b32 v1, {L_CNT+16}')
        A('v_mov_b32 v2, s8')
        A('ds_write_b32 v1, v2')
        A(f'{skip}:')

    def get_sel(self):
        A = self.A
        if self.o['sel'] >= 0:
            A(f's_mov_b32 s47, {8192*self.o["sel"]}')
            return
        A(f'v_mov_b32 v1, {L_CNT+16}')
        A('ds_read_b32 v1, v1')
        A('s_waitcnt lgkmcnt(0)')
        A('v_readfirstlane_b32 s47, v1')
        A('s_and_b32 s47, s47, 8192')
        if self.o['stamps']:
            A('s_mov_b32 s60, s47')

    def wake(self, level, add=True, both=True, sleep=None):
        A = self.A
        top, done = self.lab('wake'), self.lab('awake')
        A(f'v_mov_b32 v1, {L_CNT+24}')
        if add:
            A('v_mov_b32 v2, 1')
            A('s_mov_b64 exec, 1')
            A('ds_add_u32 v1, v2')
            A('s_mov_b64 exec, -1')
        A(f's_mov_b32 s9, {SPIN*8}')
        A(f'{top}:')
        A('ds_read_b64 v[2:3], v1')
        A('s_waitcnt lgkmcnt(0)')
        if both:
            A('v_lshrrev_b32 v2, 2, v2')
            A('v_mul_u32_u24 v3, v2, v3')
        A(f'v_cmp_gt_u32 vcc, {level}, v3')
        A(f's_cbranch_vccz {done}')
        A(f's_sleep {sleep or self.o["wks"]}')
        A('s_sub_u32 s9, s9, 1')
        A(f's_cbranch_scc0 {top}')
        A(f'{done}:')

    def midwait(self):
        if self.o['p2']:
            self.A('s_setprio 0')
        self.wake(1, add=False, both=False, sleep=16)
        self.flags_addr('v8', True)
        self.flags_wait('v8', 'v9')

    def tail_begin(self, name):
        A = self.A
        A('s_mov_b32 s46, 8192')
        self.stamp(1)
        A('s_mov_b32 s6, 0')
        A('s_mov_b32 s30, 0')
        A('s_mov_b32 s45, 0')
        A('v_mov_b32 v27, 0')
        A(f'{name}:')
        self.stamp(2)

    def hbar(self, sleep=0):
        A = self.A
        top, done = self.lab('hbar'), self.lab('hbard')
        A(f'v_mov_b32 v1, {L_CNT+12}')
        A('v_mov_b32 v2, 1')
        A('s_mov_b64 exec, 1')
        A('ds_add_u32 v1, v2')
        A('s_mov_b64 exec, -1')
        A(f's_mov_b32 s9, {SPIN*8}')
        A(f'{top}:')
        A('ds_read_b32 v2, v1')
        A('s_waitcnt lgkmcnt(0)')
        A('v_cmp_ne_u32 vcc, 4, v2')
        A(f's_cbranch_vccz {done}')
        if sleep:
            A(f's_sleep {sleep}')
        A('s_sub_u32 s9, s9, 1')
        A(f's_cbranch_scc0 {top}')
        A(f'{done}:')

    def merge_call(self, ty):
        A = self.A
        A(f's_mov_b32 s24, {ty}')
        A('s_cmp_eq_u32 s38, 3')
        A('s_cbranch_scc1 L_merge')
        A(f'L_back{ty}:')

    def tail_end(self, name, ty, level, late=None, llevel=128):
        A = self.A
        l = self.lab('real')
        A('s_cmp_lg_u32 s45, 0')
        A(f's_cbranch_scc1 {l}')
        A('s_mov_b64 exec, -1')
        A(f's_mov_b32 s6, {H_END}')
        A('s_mov_b32 s30, 2560')
        A('s_mov_b32 s45, 3')
        A('v_mov_b32 v27, 1')
        A('s_waitcnt vmcnt(0)')
        self.merge_call(ty)
        if late:
            self.wake(llevel)
            self.stamp(1)
            late()
        else:
            self.wake(level)
        A(f's_branch {name}')
        A(f'{l}:')
        self.dump_stamps(0x20000)
        A('s_endpgm')

    def red_write_std(self, nt=4, off=0):
        A = self.A
        A('s_mov_b32 exec_lo, 0x00030003')
        A('s_mov_b32 exec_hi, 0x00030003')
        for ct in range(nt):
            A(f'ds_write_b128 v24, {vr(96+4*ct,4)} offset:{64*ct+off}')

    def red_read(self, dst, addr='v25', off=0):
        A = self.A
        for w in range(4):
            A(f'ds_read_b64 {vr(dst+2*w,2)}, {addr} offset:{512*w+off}')

    def red_sum(self, dst):
        self.pk('add', dst, dst, dst + 4, n=2)
        self.pk('add', dst, dst, dst + 2, n=1)

    def publish_bf16(self, base):
        A = self.A
        self.red_read(96)
        A('s_lshl_b32 s10, s40, 8')
        A(f's_add_u32 s10, s10, {base}')
        A('v_lshl_add_u32 v1, v0, 2, s10')
        A('s_waitcnt lgkmcnt(0)')
        self.red_sum(96)
        A('v_cvt_pk_bf16_f32 v2, v96, v97')
        A('v_min_u32 v2, -2, v2')
        A('buffer_store_dword v2, v1, s[4:7], 0 offen sc1')
        A('s_mov_b64 exec, 1')
        A('ds_add_u32 v26, v27')
        A('s_mov_b64 exec, -1')

    def ln_scalars(self, mean, var):
        A = self.A
        A(f'v_cvt_pk_bf16_f32 v1, {mean}, {var}')
        A(f'v_and_b32 {var}, 0xffff0000, v1')
        A(f'v_add_f32 {var}, {f2u(1e-5)}, {var}')
        self.rbf(var)
        A(f'v_sqrt_f32 {var}, {var}')
        A(f'v_lshlrev_b32 {mean}, 16, v1')
        self.rbf(var)
        A(f'v_rcp_f32 {var}, {var}')

    def helper(self):
        A = self.A
        A('L_helper:')
        A('s_getpc_b64 s[92:93]')
        A('L_pc:')
        A('s_lshr_b32 s8, s2, 3')
        A('s_lshl2_add_u32 s8, s8, s3')
        A(f's_lshl_b32 s8, s8, {6 if self.o["pf"] > 2 else 7}')
        for i in range(self.o['pf']):
            if i:
                A(f's_add_u32 s8, s8, {8192 if self.o["pf"] > 2 else 16384}')
                A('s_min_u32 s8, s8, L_tab-L_pc')
            A('s_load_dword s9, s[92:93], s8')
        A('s_add_u32 s92, s92, L_tab-L_pc')
        A('s_addc_u32 s93, s93, 0')
        A('s_lshl_b32 s8, s2, 2')
        A('s_load_dword s36, s[92:93], s8')
        A(f's_setprio {self.o["prio"]}')
        A('s_sub_u32 s38, s3, 4')
        A('s_mul_i32 s37, s38, 24576')
        A(f's_mov_b32 s39, {L_RED}')
        A(f'v_mov_b32 v1, {L_CNT}')
        A('v_mov_b32 v2, 0')
        A('v_mov_b32 v3, 0')
        A('ds_write_b64 v1, v[2:3]')
        for o in (8, 16, 24, 32, 40):
            A(f'ds_write_b64 v1, v[2:3] offset:{o}')
        A('v_lshrrev_b32 v18, 3, v0')
        A('v_lshrrev_b32 v20, 4, v0')
        A('v_and_b32 v1, 1, v20')
        A('v_lshlrev_b32 v1, 1, v1')
        A('v_and_b32 v2, 7, v0')
        A('v_xor_b32 v19, v1, v2')
        A('v_and_b32 v22, 1, v0')
        A('v_bfe_u32 v1, v0, 1, 3')
        A('v_min_u32 v1, 4, v1')
        A('v_lshlrev_b32 v1, 5, v1')
        A('v_lshl_add_u32 v21, v20, 3, v1')
        A('s_mul_i32 s41, s38, 160')
        A('v_add_u32 v23, s41, v21')
        A('s_mov_b32 s16, 0x03ff03ff')
        A('s_mov_b32 s17, 0x03ff03ff')
        A('s_waitcnt lgkmcnt(0)')
        if not self.o['hold']:
            A('s_barrier')
        self.ws_srd()
        A('s_bitcmp1_b32 s36, 28')
        A('s_cbranch_scc1 L_clear')
        A('L_job:')
        A('s_and_b32 s10, s36, 15')
        A('s_bfe_u32 s40, s36, 0x80004')
        A('s_lshr_b32 s36, s36, 12')
        A('s_and_b32 s36, s36, 0xfff')
        for ty, l in ((T_M, 'L_M'), (T_Q, 'L_Q'), (T_W, 'L_W'), (T_F, 'L_F'), (T_D, 'L_D')):
            A(f's_cmp_eq_u32 s10, {ty}')
            A(f's_cbranch_scc1 {l}')
        A('s_branch L_idle')
        A('L_next:')
        if self.o['pw']:
            A('s_cmp_eq_u32 s36, 0')
            A('s_cbranch_scc1 L_idle')
            self.lwait(4, lambda: A('s_cmp_ge_u32 s8, 5'), 2)
        A('s_add_u32 s39, s39, 2048')
        A('s_branch L_job')
        A('L_clear:')
        A('s_bfe_u32 s10, s36, 0x40018')
        A('s_lshl2_add_u32 s10, s10, s38')
        for i in range(4):
            A(f'v_mov_b32 v{4+i}, -1')
        A('s_mov_b32 s11, 4096')
        A('s_cmp_ge_u32 s10, 8')
        A('s_cbranch_scc1 L_clrB')
        A('s_mul_i32 s12, s10, 5120')
        A('v_lshl_add_u32 v1, v0, 4, s12')
        for k in range(5):
            A(f'buffer_store_dwordx4 v[4:7], v1, s[4:7], {"s11" if k >= 4 else "0"} offen offset:{1024*(k&3)} sc1')
        A('s_branch L_clrF')
        A('L_clrB:')
        assert H_TS == 8 * 5120 and H_CLR - H_TS <= 12 * 32768
        A('s_add_u32 s12, s10, 32')
        A('s_lshl_b32 s12, s12, 10')
        A('v_lshl_add_u32 v1, v0, 4, s12')
        A(f's_mov_b32 s6, {H_END if self.o["ca"] else H_CLR}')
        used = lambda kb: not (H_X2 <= kb * 1024 < H_OP) or (kb & 7) < (3 if kb * 1024 < H_ACT else 6 if kb * 1024 < H_Y else 5)
        for i in range(30 if self.o['ca'] else 12):
            m = sum(used(40 + 32 * i + c) << c for c in range(32))
            if self.o['cs'] and m != 0xffffffff:
                l = self.lab('nc')
                A('s_sub_u32 s12, s10, 8')
                A(f's_bitcmp1_b32 {m}, s12')
                A(f's_cbranch_scc0 {l}')
                A('buffer_store_dwordx4 v[4:7], v1, s[4:7], 0 offen sc1')
                A(f'{l}:')
            else:
                A('buffer_store_dwordx4 v[4:7], v1, s[4:7], 0 offen sc1')
            A('v_add_u32 v1, 32768, v1')
        A('s_add_u32 s10, s10, 24')
        A(f's_mov_b32 s6, {H_END}')
        A('L_clrF:')
        A('s_lshl_b32 s10, s10, 2')
        A('v_mov_b32 v1, s10')
        A('s_waitcnt vmcnt(0)')
        A('s_mov_b64 exec, 1')
        A(f'global_store_dword v1, v4, {sp(sDBG)} sc1')
        A('s_mov_b64 exec, -1')
        A('s_branch L_job')

        A('L_M:')
        A('v_mul_u32_u24 v1, 640, v22')
        A('v_add_lshl_u32 v1, v1, v23, 1')
        A(f'global_load_dwordx4 v[28:31], v1, {sp(sC)}')
        A('s_lshl_b32 s12, s40, 7')
        self.dma_addr(sWM, 's41', 7680, 's12')
        A(f's_cmp_lg_u32 s39, {L_RED}')
        A('s_cselect_b64 vcc, -1, 0')
        self.dma_issue(5, 7680, 'nt', self.o['DM2'], cond=1, nobar='s_cmp_lt_u32 s40, 20' if self.o['mh'] else None)
        self.tr_addr(False)
        self.red_addr()
        A('s_waitcnt vmcnt(20)')
        self.unpack(32, 28, 4)
        for i in range(8):
            self.silu(f'v{32+i}', 'v4', 'v5')
        self.pack(28, 32, 4)
        self.flags_addr('v8', False)
        A(f'global_load_dword v9, v8, {sp(sDBG)} sc1')
        self.tr_read(5, 512, extra=1)
        self.stamp(1)
        self.mfma_std(28)
        self.red_write_std()
        self.arrive('L_Mdone')
        ok = self.lab('fok')
        A('s_waitcnt vmcnt(0)')
        A('v_cmp_eq_u32 vcc, 0, v9')
        A(f's_cbranch_vccz {ok}')
        self.flags_wait('v8', 'v9')
        A(f'{ok}:')
        self.publish_bf16(H_MOD)
        if self.o['stamps']:
            self.stamp(2)
            A('s_cmp_lt_u32 s40, 20')
            A('s_cbranch_scc0 L_next')
            self.dump_stamps(0x10000)
            A('s_mov_b64 exec, -1')
        A('L_Mdone:')
        if self.o['mh']:
            assert JT == 5 and self.o['hold']
            A('s_cmp_lt_u32 s40, 20')
            A('s_cbranch_scc0 L_next')
            A('s_barrier')
        A('s_branch L_next')

        A('L_Q:')
        A('v_mul_u32_u24 v1, 640, v22')
        A('v_add_lshl_u32 v2, v1, v23, 1')
        A('v_add_lshl_u32 v1, v1, v21, 1')
        A(f'global_load_dwordx4 v[28:31], v2, {sp(sX)}')
        for w in range(4):
            A(f'global_load_dwordx4 {vr(32+4*w,4)}, v1, {sp(sX)} offset:{320*w}')
        A('s_lshl_b32 s12, s40, 7')
        self.dma_addr(sWQ, 's41', 12288, 's12')
        self.dma_issue(5, 12288, 'nt', self.o['DQ'])
        self.tr_addr(False)
        self.red_addr()
        A('s_waitcnt vmcnt(20)')
        self.unpack(48, 32, 16)
        self.unpack(32, 28, 4)
        self.pk('add', 80, 48, 64, n=8)
        self.pk('add', 80, 80, 88, n=4)
        self.pk('add', 80, 80, 84, n=2)
        self.pk('add', 80, 80, 82, n=1)
        A('v_add_f32 v6, v80, v81')
        A('v_cndmask_b32 v6, 0, v6, s[16:17]')
        self.rowred('v_add_f32', 'v6', self.ROWPAR)
        self.xrow('v_add_f32', 'v6', 'v1')
        A(f'v_mul_f32 v6, {f2u(1/640)}, v6')
        A('v_mov_b32 v8, 0')
        for i in range(32):
            A(f'v_sub_f32 v1, v{48+i}, v6')
            A('v_fmac_f32 v8, v1, v1')
        A('v_cndmask_b32 v8, 0, v8, s[16:17]')
        self.rowred('v_add_f32', 'v8', self.ROWPAR)
        self.xrow('v_add_f32', 'v8', 'v1')
        A(f'v_mul_f32 v8, {f2u(1/640)}, v8')
        self.ln_scalars('v6', 'v8')
        self.pk('add', 32, 32, 6, bstep=0, mods='op_sel_hi:[1,0] neg_lo:[0,1] neg_hi:[0,1]')
        self.rbf8(32, 28)
        self.pk('mul', 32, 32, 8, bstep=0, mods='op_sel_hi:[1,0]')
        self.rbf8(32, 28)
        self.flags_addr('v8', False)
        A(f'global_load_dword v9, v8, {sp(sDBG)} sc1')
        self.tr_read(5, 512, extra=1)
        ok = self.lab('fok')
        A('s_waitcnt vmcnt(0)')
        A('v_cmp_eq_u32 vcc, 0, v9')
        A(f's_cbranch_vccz {ok}')
        self.flags_wait('v8', 'v9')
        A(f'{ok}:')
        self.dense_addr('v8', H_MOD, 2)
        self.stamp(1)

        def ld():
            A('buffer_load_dwordx4 v[40:43], v8, s[4:7], 0 offen sc1')
            A('buffer_load_dwordx4 v[44:47], v8, s[4:7], 0 offen offset:2560 sc1')
        if self.o['pp']:
            for r in range(40, 48):
                A(f'v_mov_b32 v{r}, -1')
            self.poll(ld, range(40, 48), 'v1', mask=True, sleep=self.o['psl'], fly=2 * self.o['pp'])
        else:
            self.poll(ld, range(40, 48), 'v1', mask=True)
        self.stamp(2)
        self.unpack(56, 44, 4)
        for i in range(4):
            A(f'v_pk_add_f32 {vr(56+2*i,2)}, {vr(56+2*i,2)}, 1.0 op_sel_hi:[1,0]')
        self.rbf8(56, 28)
        self.pk('mul', 32, 32, 56)
        self.rbf8(32, 28)
        self.unpack(48, 40, 4)
        self.pk('add', 32, 32, 48)
        self.pack(28, 32, 4)
        self.mfma_std(28)
        self.red_write_std()
        self.arrive('L_next')
        self.publish_bf16(H_Q)
        if self.o['stamps']:
            self.stamp(3)
            self.dump_stamps(0x10000)
            A('s_mov_b64 exec, -1')
        A('s_branch L_next')

        A('L_W:')
        EF, ED = self.o['EF'], self.o['ED']
        WP, WS = 64, 160
        A('s_and_b32 s42, s40, 7')
        A('s_lshr_b32 s43, s40, 3')
        A('s_sub_u32 s13, 3, s38')
        A('s_lshl3_add_u32 s13, s13, s42')
        A('s_mul_i32 s13, s13, 192')
        A('s_lshl_b32 s12, s43, 7')
        self.dma_addr(sWO, 's13', 1280, 's12')
        A(f's_cmp_lg_u32 s39, {L_RED}')
        A('s_cselect_b64 vcc, -1, 0')
        self.dma_issue(6, 1280, 'nt', self.o['DW2'], cond=1)
        self.tr_addr(1)
        self.red_addr()
        A('s_mul_i32 s10, s42, 12288')
        A(f's_add_u32 s10, s10, {H_OP}')
        A('v_bfe_u32 v1, v0, 1, 3')
        A('v_mul_u32_u24 v1, 384, v1')
        A('v_lshl_add_u32 v1, v22, 4, v1')
        A('v_lshl_add_u32 v1, v20, 5, v1')
        A('v_add_u32 v28, s10, v1')
        A('s_lshl_b32 s10, s38, 9')
        A('s_add_u32 s10, s10, s39')
        A('v_lshl_add_u32 v24, v0, 2, s10')
        A('s_lshr_b32 s10, s42, 1')
        A('s_lshl_b32 s10, s10, 14')
        A('s_and_b32 s11, s42, 1')
        A('s_mul_i32 s11, s11, 2560')
        A('s_add_u32 s10, s10, s11')
        A('s_lshl_b32 s11, s43, 8')
        A('s_add_u32 s10, s10, s11')
        A(f's_add_u32 s10, s10, {H_Y}')
        A('v_bfe_u32 v1, v0, 2, 2')
        A('v_bfe_u32 v3, v0, 4, 1')
        A('v_lshl_add_u32 v1, v1, 1, v3')
        A('v_lshrrev_b32 v3, 5, v0')
        A('v_lshl_add_u32 v1, v1, 1, v3')
        A('v_and_b32 v3, 3, v0')
        A('v_lshl_add_u32 v1, v1, 2, v3')
        A('v_lshl_add_u32 v29, v1, 2, s10')
        A('s_lshl_b32 s10, s42, 10')
        A(f's_add_u32 s10, s10, {H_FLG}')
        A('v_and_b32 v1, 31, v0')
        A('v_lshl_add_u32 v30, v1, 2, s10')
        self.tr_read(6, 128, WR=WP)
        self.hbar(sleep=8)
        AF = 8
        dq = lambda ct, p: 32 + 8 * ct + 4 * p

        def post(ct):
            d = 32 + 8 * ct
            r = [f'v_add_f32 v{d}, v{d}, v{d+2}', f'v_add_f32 v{d+5}, v{d+5}, v{d+7}', f'v_add_f32 v{d}, v{d}, v{d+5}']
            if ct & 1:
                r += [f'v_permlane16_swap_b32 v{d-8}, v{d}', f'v_add_f32 v{d}, v{d-8}, v{d}']
            return r
        A('s_mov_b32 s46, 8192')
        A('s_mov_b32 s6, 0')
        A('s_mov_b32 s45, 0')
        A('s_mov_b32 s44, 0')
        A('s_mov_b32 s47, 0')
        A('v_mov_b32 v27, 0')
        A('L_Wt:')
        self.stamp(2)

        def mf(ct, s):
            d = vr(dq(ct, s & 1), 4)
            return f'v_mfma_f32_16x16x32_bf16 {d}, {vr(AF+4*(s>>1),4)}, {vr(WS+16*s+4*ct,4)}, {"0" if s < 2 else d}'
        self.spoll([(f'buffer_load_dwordx4 {vr(AF+4*u,4)}, v28, s[4:7], s47 offen offset:{128*u} sc1', AF + 4 * u) for u in range(3)],
                   [[mf(0, 2 * u), mf(0, 2 * u + 1)] for u in range(3)])
        self.stamp(3)
        sh = []
        for ct in range(1, 4):
            for s in range(6):
                A(mf(ct, s))
                if s == 1 and ct >= 2:
                    sh += post(ct - 2)
                if sh:
                    A(sh.pop(0))
        for x in sh + post(2) + post(3):
            A(x)
        A(f's_sub_u32 s47, s47, {OPI}')
        A('s_sub_u32 s44, s44, 1')
        A('v_permlane32_swap_b32 v40, v56')
        A('v_add_f32 v40, v40, v56')
        A('v_add_f32 v40, v40, v4')
        A('ds_write_b32 v24, v40')
        A('v_mov_b32 v4, v5')
        A('v_subrev_u32 v24, 256, v24')
        A('s_cbranch_scc0 L_Wt2')
        self.arrive('L_end', lambda: self.red_read(AF), 4, True)
        A('s_waitcnt lgkmcnt(0)')
        self.red_sum(AF)
        self.lastonly('L_end', True)
        A(f'v_cvt_pk_bf16_f32 v2, v{AF}, v{AF+1}')
        A('v_min_u32 v2, -2, v2')
        A('buffer_store_dword v2, v29, s[4:7], 0 offen sc1')
        A('buffer_store_dword v2, v29, s[4:7], s46 offen sc1')
        self.stamp(4)
        A('s_cmp_lg_u32 s45, 0')
        A('s_cbranch_scc1 L_Wend')
        A(f's_mov_b32 s6, {H_END}')
        A('s_mov_b32 s45, 3')
        A('v_mov_b32 v27, 1')
        A('v_add_u32 v24, 512, v24')
        A('v_mov_b32 v4, 0')
        A('v_mov_b32 v5, 0')
        self.midwait()
        self.merge_call(T_W)
        A('s_cmp_eq_u32 s38, 3')
        A('s_cbranch_scc1 L_Wsh')
        if self.o['xg']:
            A('s_branch L_Wsh')
        A('s_mov_b32 s44, s38')
        A('L_Wp:')
        A('s_lshl2_add_u32 s12, s44, 2')
        self.item_wait('s12')
        self.stamp(1, 3)
        if self.o['fs0']:
            A(f's_sleep {self.o["fs0"]}')
        A('s_lshl_b32 s12, s44, 7')
        if self.o['xf'] != 1:
            self.poll(lambda: A('buffer_load_dword v2, v30, s[4:7], s12 offen sc1'), [2], 'v1', sleep=self.o['fsl'])
        self.stamp(2, 3)
        if self.o['xf'] == 2:
            A('s_mov_b32 s6, 0')
        A('s_sub_u32 s47, 7, s44')
        A(f's_mul_i32 s20, s47, {OPI}')
        for r in range(1, 4):
            A(f's_add_u32 s{20+r}, s20, {3072*r}')
        NB = 12
        pl = lambda i: A(f'buffer_load_dwordx4 {vr(WS+4*(i%NB),4)}, v28, s[4:7], s{20+i//3} offen offset:{128*(i%3)} sc1')
        for i in range(NB):
            pl(i)
        for i in range(12):
            A(f's_waitcnt vmcnt({min(NB-1, 11-i)})')
            for ct in range(4):
                for p in range(2):
                    d = vr(dq(ct, p), 4)
                    A(f'v_mfma_f32_16x16x32_bf16 {d}, {vr(WS+4*(i%NB),4)}, {vr(WP+16*(2*(i%3)+p)+4*ct,4)}, {"0" if i == 0 else d}')
            if i + NB < 12:
                pl(i + NB)
        for ct in range(4):
            for x in post(ct):
                A(x)
        A('v_permlane32_swap_b32 v40, v56')
        A('v_mov_b32 v4, v5')
        A('v_add_f32 v5, v40, v56')
        A(f's_mov_b32 s6, {H_END}')
        A('s_add_u32 s44, s44, 3')
        A('s_cmp_lt_u32 s44, 6')
        A('s_cbranch_scc1 L_Wp')
        if self.o['stamps'] == 3:
            self.stamp(3, 3)
            A('s_cmp_lg_u32 s38, 2')
            A('s_cbranch_scc1 L_Wsh')
            self.dump_stamps(0x10000)
            A('s_mov_b64 exec, -1')
        A('L_Wsh:')
        A('v_mov_b32 v6, v4')
        A('v_mov_b32 v7, v5')
        A(f's_mov_b32 s37, {3*24576}')
        self.tr_addr(1)
        self.tr_read(6, 128, WR=WS)
        A('v_mov_b32 v4, v6')
        A('v_mov_b32 v5, v7')
        self.stamp(1)
        self.wake(self.o['WL'])
        A('s_mul_i32 s47, s38, 3072')
        A(f's_add_u32 s47, s47, {OPI}')
        A('s_mov_b32 s44, 1')
        A('s_branch L_Wt')
        A('L_Wt2:')
        if self.o['w2']:
            self.wake(128, add=False, both=False, sleep=self.o['w2'])
        A('s_branch L_Wt')
        A('L_Wend:')
        self.dump_stamps(0x20000)
        A('s_endpgm')

        A('L_idle:')
        A('s_cmp_lg_u32 s38, 3')
        A('s_cbranch_scc1 L_end')
        self.midwait()
        A('s_mov_b32 s24, 0')
        A('L_merge:')
        if self.o['pt'] == 1:
            A('s_and_b32 s10, s2, 7')
            A('s_lshr_b32 s11, s2, 3')
            A('s_lshl_b32 s10, s10, 5')
            A('s_add_u32 s10, s10, s11')
            A('s_mul_i32 s10, s10, 384')
            A(f's_add_u32 s10, s{sWS}, s10')
            A(f's_addc_u32 s11, s{sWS+1}, 0')
            for j in range(2, 8):
                for k in range(3):
                    A(f's_load_dword s8, s[10:11], {H_OP + j*OPI + 128*k}')
                A('s_waitcnt lgkmcnt(0)')
        self.lwait(C_KC, lambda: A('s_cmp_eq_u32 s8, 4'), 8)
        A('v_and_b32 v96, 31, v0')
        A('v_lshlrev_b32 v1, 3, v96')
        A(f'v_add_u32 v1, {L_MLL}, v1')
        A('ds_read_b64 v[98:99], v1')
        A('s_and_b32 s34, s2, 7')
        A('s_lshr_b32 s35, s2, 3')
        A('s_lshl_b32 s10, s34, 12')
        A(f's_add_u32 s10, s10, {H_ML}')
        A('v_lshrrev_b32 v1, 1, v0')
        A('v_lshlrev_b32 v1, 7, v1')
        A('v_add_u32 v97, s10, v1')
        A('s_lshl_b32 s11, s35, 7')
        A('s_add_u32 s10, s10, s11')
        A('v_lshl_add_u32 v1, v0, 1, s10')
        A('s_getreg_b32 s32, hwreg(HW_REG_XCC_ID, 0, 4)')
        A('s_waitcnt lgkmcnt(0)')
        A('v_mov_b32 v100, v98')
        self.rowred('v_max_f32', 'v100', self.ROW16[:2])
        A('v_sub_f32 v101, v98, v100')
        A(f'v_mul_f32 v101, {LOG2E}, v101')
        A('v_exp_f32 v101, v101')
        A('v_mul_f32 v101, v101, v99')
        self.rowred('v_add_f32', 'v101', self.ROW16[:2])
        A('v_min_u32 v100, -2, v100')
        A('v_min_u32 v101, -2, v101')
        A('v_writelane_b32 v100, s32, 32')
        A('s_mov_b32 exec_lo, 0x11111111')
        A('s_mov_b32 exec_hi, 1')
        A('buffer_store_dwordx2 v[100:101], v1, s[4:7], 0 offen sc1')
        A('s_mov_b64 exec, -1')
        self.item_wait(2 + 4 * self.o['gw'])
        A('v_and_b32 v1, 1, v0')
        A('v_lshl_add_u32 v3, v1, 5, v97')

        def ld():
            A('buffer_load_dwordx4 v[48:51], v3, s[4:7], 0 offen sc1')
            A('buffer_load_dwordx4 v[52:55], v3, s[4:7], 0 offen offset:16 sc1')
            A('buffer_load_dword v56, v97, s[4:7], 0 offen offset:64 sc1')
        self.poll(ld, range(48, 57), 'v1', sleep=self.o['fsl'], mask=True)
        A('v_cmp_ne_u32 vcc, s32, v56')
        A('s_cmp_eq_u64 vcc, 0')
        A(f's_cselect_b32 s32, {2 if self.o["fast"] else 1}, 1')
        for i in range(4):
            A(f'v_mov_b32 v{64+2*i}, v{48+2*i}')

        def par(op, off):
            for m in self.ROWPAR:
                for i in range(4):
                    A(f'{op}_dpp v{off+2*i}, v{off+2*i}, v{off+2*i} {m} {DPPM}')
            for sw in ('v_permlane16_swap_b32', 'v_permlane32_swap_b32'):
                for i in range(4):
                    A(f'v_mov_b32 v{72+i}, v{off+2*i}')
                for i in range(4):
                    A(f'{sw} v{off+2*i}, v{72+i}')
                for i in range(4):
                    A(f'{op} v{off+2*i}, v{off+2*i}, v{72+i}')
        par('v_max_f32', 64)
        for i in range(4):
            A(f'v_sub_f32 v{48+2*i}, v{48+2*i}, v{64+2*i}')
            A(f'v_mul_f32 v{48+2*i}, {LOG2E}, v{48+2*i}')
            A(f'v_exp_f32 v{48+2*i}, v{48+2*i}')
            A(f'v_mul_f32 v{65+2*i}, v{48+2*i}, v{49+2*i}')
        par('v_add_f32', 65)
        A('v_lshlrev_b32 v1, 5, v0')
        A(f'v_add_u32 v1, {L_GL}, v1')
        A('s_mov_b64 exec, 3')
        A('ds_write_b128 v1, v[64:67]')
        A('ds_write_b128 v1, v[68:71] offset:16')
        A('s_mov_b64 exec, -1')
        A('v_lshrrev_b32 v1, 2, v96')
        A('v_lshlrev_b32 v1, 3, v1')
        A(f'v_add_u32 v1, {L_GL}, v1')
        A('ds_read_b64 v[100:101], v1')
        A('v_lshlrev_b32 v1, 2, v96')
        A(f'v_add_u32 v1, {L_FL}, v1')
        A(f'v_mov_b32 v2, {L_CNT}')
        A('v_mov_b32 v3, s32')
        A('s_waitcnt lgkmcnt(0)')
        A('v_sub_f32 v98, v98, v100')
        A(f'v_mul_f32 v98, {LOG2E}, v98')
        A('v_exp_f32 v98, v98')
        A('v_rcp_f32 v101, v101')
        A('v_mul_f32 v98, v98, v101')
        A('ds_write_b32 v1, v98')
        A(f'ds_write_b32 v2, v3 offset:{C_RDY}')
        self.op_addr('v102', 'v103', L_PART)
        if True:
            A(f's_add_u32 s12, s{sWS}, s44')
            A(f's_addc_u32 s13, s{sWS+1}, 0')
        A(f'v_mov_b32 v104, {L_FL}')
        A('s_lshl_b32 s10, s34, 10')
        A('s_lshl2_add_u32 s10, s35, s10')
        A(f's_add_u32 s10, s10, {H_FLG}')
        A('v_mov_b32 v105, s10')
        A('s_mov_b32 s34, 2')
        A(f's_mov_b32 s35, {7*OPI}')
        A('L_mitem:')
        def touch():
            for k in range(6):
                A(f's_add_u32 s10, s35, {64*k}')
                A('s_load_dword s11, s[12:13], s10')
        if self.o['pt'] == 2:
            A(f's_cmp_gt_u32 s35, {self.o["ptm"]*OPI}')
            A('s_cbranch_scc1 L_notouch')
            touch()
            A('L_notouch:')
        if self.o['pt'] == 4:
            A('s_sub_u32 s44, s34, 2')
            self.lwait(C_IC, lambda: (A('s_lshr_b32 s8, s8, s44'), A('s_and_b32 s8, s8, 7')), 8)
            touch()
        self.item_wait('s34')
        A('ds_read_b128 v[108:111], v104')
        for w in range(4):
            for h in range(2):
                A(f'ds_read_b128 {vr(48+8*w+4*h,4)}, v103 offset:{12288*w + 768*h}')
        A('s_waitcnt lgkmcnt(0)')
        for w in range(4):
            self.pk('add', 48 + 8 * w, 48 + 8 * w, 52 + 8 * w, n=2)
            f = vr(108 + (w & 2), 2)
            for h in range(2):
                if w == 0:
                    A(f'v_pk_mul_f32 {vr(48+2*h,2)}, {vr(48+2*h,2)}, {f} op_sel_hi:[1,0]')
                else:
                    m = 'op_sel:[0,1,0] op_sel_hi:[1,1,1]' if w & 1 else 'op_sel_hi:[1,0,1]'
                    A(f'v_pk_fma_f32 {vr(48+2*h,2)}, {vr(48+8*w+2*h,2)}, {f}, {vr(48+2*h,2)} {m}')
        self.pack(2, 48, 2)
        A('v_min_u32 v2, -2, v2')
        A('v_min_u32 v3, -2, v3')
        A('s_mov_b32 exec_hi, 0xffff')
        if self.o['xs']:
            A(f's_mov_b32 s6, {H_CLR}')
        if self.o['dt']:
            A('buffer_store_dwordx2 v[2:3], v102, s[4:7], s35 offen sc1')
        else:
            self.mode_store('buffer_store_dwordx2 v[2:3], v102, s[4:7], s35 offen', 's32')
        A(f's_mov_b32 s6, {H_END}')
        A('s_mov_b64 exec, 1')
        if self.o['pt'] == 3:
            touch()
        A('s_waitcnt vmcnt(0) lgkmcnt(0)')
        self.mode_store('buffer_store_dword v0, v105, s[4:7], 0 offen', 's32')
        A('s_mov_b64 exec, -1')
        A('v_add_u32 v103, 1536, v103')
        A('v_add_u32 v104, 16, v104')
        A('v_add_u32 v105, 128, v105')
        A('s_add_u32 s34, s34, 4')
        A(f's_sub_u32 s35, s35, {OPI}')
        A('s_cmp_lg_u32 s35, 0')
        A('s_cbranch_scc1 L_mitem')
        if self.o['t7']:
            touch()
            A('s_waitcnt lgkmcnt(0)')
        for ty in (T_W, T_F, T_D):
            A(f's_cmp_eq_u32 s24, {ty}')
            A(f's_cbranch_scc1 L_back{ty}')
        A('s_endpgm')

        A('L_F:')
        XF, GA, C1, PV, SEL = 224, 232, 240, 248, 88
        ly = 1
        A('v_lshlrev_b32 v1, 2, v20')
        if ly:
            A('s_lshl_b32 s41, s38, 7')
            A('s_mul_i32 s14, s38, -96')
            A('s_add_u32 s14, s14, 384')
            A('v_lshrrev_b32 v2, 7, v21')
            A('v_mad_u32_u24 v23, v2, s14, v21')
            A('v_add_u32 v23, s41, v23')
            A('s_mul_i32 s14, s14, 3072')
            A('s_mov_b32 s15, 0')
        A('v_sub_u32 v23, v23, v1')
        A('v_mul_u32_u24 v1, 640, v22')
        A('v_add_lshl_u32 v2, v1, v23, 1')
        A('v_add_lshl_u32 v1, v1, v21, 1')
        A(f'global_load_dwordx2 v[28:29], v2, {sp(sX)}')
        A(f'global_load_dwordx2 v[30:31], v2, {sp(sX)} offset:32')
        for w in range(4):
            A(f'global_load_dwordx4 {vr(32+4*w,4)}, v1, {sp(sX)} offset:{320*w}')
        A('s_mul_i32 s10, s41, 3072')
        A('s_lshl_b32 s11, s40, 6')
        A('s_add_u32 s10, s10, s11')
        A('v_mul_u32_u24 v1, 3072, v18')
        A('v_and_b32 v2, 3, v19')
        A('v_lshl_add_u32 v1, v2, 4, v1')
        A('v_add_u32 v1, s10, v1')
        A(f'v_add_u32 v2, {8*3072}, v1')
        A(f'v_mov_b32 v4, s{sWG}')
        A(f'v_mov_b32 v5, s{sWG+1}')
        A(f'v_mov_b32 v6, s{sWU}')
        A(f'v_mov_b32 v7, s{sWU+1}')
        A('v_cmp_gt_u32 vcc, 4, v19')
        A('v_cndmask_b32 v10, v6, v4, vcc')
        A('v_cndmask_b32 v11, v7, v5, vcc')
        A('v_cndmask_b32 v12, v4, v6, vcc')
        A('v_cndmask_b32 v13, v5, v7, vcc')
        A('v_add_co_u32 v10, vcc, v10, v1')
        A('v_addc_co_u32 v11, vcc, 0, v11, vcc')
        A('v_add_co_u32 v12, vcc, v12, v2')
        A('v_addc_co_u32 v13, vcc, 0, v13, vcc')
        self.dma_issue(EF, 3072, '', self.o['DF'], burst=self.o['FB'], jump='s[14:15]' if ly else None, hold=(self.o['hold'] + 1) // 2)
        self.tr_addr(2)
        self.red_addr()
        self.tr_read(EF, 2048)
        A('s_waitcnt vmcnt(0)')
        self.unpack(48, 32, 16)
        self.unpack(XF, 28, 4)
        self.pk('add', 80, 48, 64, n=8)
        self.pk('add', 80, 80, 88, n=4)
        self.pk('add', 80, 80, 84, n=2)
        self.pk('add', 80, 80, 82, n=1)
        A('v_add_f32 v6, v80, v81')
        A('v_cndmask_b32 v6, 0, v6, s[16:17]')
        self.rowred('v_add_f32', 'v6', self.ROWPAR)
        self.xrow('v_add_f32', 'v6', 'v1')
        A(f'v_mul_f32 v{PV}, {f2u(1/640)}, v6')
        A(f'v_readlane_b32 s10, v{PV}, 0')
        A(f'v_readlane_b32 s11, v{PV}, 1')
        A('s_mov_b32 s18, 0')
        A('s_mov_b32 s19, -1')
        A('v_mov_b32 v1, s10')
        A('v_mov_b32 v2, s11')
        A(f'v_cndmask_b32 v{PV+2}, v1, v2, s[18:19]')
        self.probe()
        self.midwait()
        self.dense_addr('v8', H_MOD + 20 * 256, 2)
        A('v_add_u32 v9, 5120, v8')

        def ld():
            for h in range(2):
                A(f'buffer_load_dwordx2 {vr(40+2*h,2)}, v8, s[4:7], 0 offen offset:{32*h} sc1')
                A(f'buffer_load_dwordx2 {vr(44+2*h,2)}, v8, s[4:7], 0 offen offset:{2560+32*h} sc1')
                A(f'buffer_load_dwordx2 {vr(48+2*h,2)}, v9, s[4:7], 0 offen offset:{32*h} sc1')
        self.poll(ld, range(40, 52), 'v1', sleep=self.o['slp'])
        self.unpack(GA, 40, 4)
        self.unpack(C1, 48, 4)
        for i in range(4):
            A(f'v_pk_add_f32 {vr(C1+2*i,2)}, {vr(C1+2*i,2)}, 1.0 op_sel_hi:[1,0]')
        self.rbf8(C1, 80)
        X1 = 120
        self.pk('add', XF, XF, PV, bstep=0, mods='op_sel_hi:[1,0] neg_lo:[0,1] neg_hi:[0,1]')
        self.pk('mul', X1, XF, C1)
        self.pk('mul', C1, C1, GA)
        for i in range(4):
            A(f'v_mov_b32 v{84+i}, v{44+i}')

        def consts():
            for act, off in ((80, 2048), (84, 4096)):
                self.mfma_std(act)
                self.red_write_std(off=off)
                A('s_mov_b64 exec, -1')
                A('s_waitcnt lgkmcnt(0)')
        if EF == 5:
            consts()
        if ly:
            A('v_lshrrev_b32 v1, 6, v23')
            A('v_lshlrev_b32 v1, 8, v1')
            A('v_and_b32 v2, 32, v23')
            A('v_lshl_add_u32 v2, v22, 4, v2')
            A(f'v_add_u32 v1, {H_Y}, v1')
            A('v_add_u32 v208, v1, v2')
        else:
            A('v_and_b32 v3, 0xffe0, v23')
            self.dense_addr('v208', H_Y, 2, k='v3')
        A('v_lshrrev_b32 v1, 1, v20')
        A('v_lshl_add_u32 v208, v1, 14, v208')
        A('v_and_b32 v1, 1, v20')
        A('v_mul_u32_u24 v1, 2560, v1')
        A('v_add_u32 v208, v1, v208')
        A('v_lshlrev_b32 v1, 4, v22')
        A('v_mov_b32 v2, 0x3f80')
        A('v_lshlrev_b32 v1, v1, v2')
        A('v_bfe_u32 v2, v0, 1, 3')
        for w in range(8):
            A(f'v_cmp_eq_u32 vcc, {w}, v2')
            A(f'v_cndmask_b32 v{SEL+w}, 0, v1, vcc')
        self.dense_addr('v209', H_X2, 2)
        A('v_lshrrev_b32 v1, 5, v0')
        A('v_lshl_add_u32 v2, v22, 3, v1')
        A('v_lshlrev_b32 v2, 2, v2')
        A(f's_lshl3_add_u32 s10, s38, {L_ST}')
        A('v_add_u32 v210, s10, v2')
        A('v_lshlrev_b32 v2, 5, v1')
        A(f'v_add_u32 v211, {L_ST}, v2')
        A('v_and_b32 v2, 31, v0')
        A('v_lshlrev_b32 v3, 8, v1')
        A('v_lshl_add_u32 v3, v2, 2, v3')
        A('v_add_u32 v25, s39, v3')
        A('v_add_u32 v213, 1024, v25')
        A('s_lshl_b32 s10, s40, 7')
        A(f's_add_u32 s10, s10, {H_ACT}')
        A('v_lshrrev_b32 v3, 3, v2')
        A('v_lshl_add_u32 v3, v3, 1, v1')
        A('v_and_b32 v2, 7, v2')
        A('v_lshl_add_u32 v3, v3, 3, v2')
        A('v_lshl_add_u32 v212, v3, 1, s10')
        self.tail_begin('L_Ft')
        self.get_sel()
        A('s_add_u32 s20, s47, 32768')
        AC = 214

        def rd2(dst, a0, a1):
            for w in range(4):
                A(f'ds_read2_b32 {vr(dst+2*w,2)}, {a1 if w >> 1 else a0} offset0:{128*(w&1)} offset1:{128*(w&1)+32}')
        for n in range(2):
            A(f'v_add_u32 v2, {2048*(n+1)}, v25')
            A(f'v_add_u32 v3, {2048*(n+1)}, v213')
            rd2(96, 'v2', 'v3')
            A('s_waitcnt lgkmcnt(0)')
            self.pk('add', 96, 96, 100, n=2)
            A(f'v_pk_add_f32 {vr(AC+2*n,2)}, v[96:97], v[98:99]')
        Y, YL = 32, 48
        order = (0, 2, 1, 3, 4, 6, 5, 7)
        lds, work = [], []
        for n in order:
            lds.append((f'buffer_load_dwordx4 {vr(YL+4*n,4)}, v208, s[4:7], {"s20" if n >= 4 else "s47"} offen offset:{64*(n&3)} sc1', YL + 4 * n))
            d = vr(Y + 4 * ((n >> 1) & 1), 4)
            work.append([f'v_mfma_f32_16x16x32_bf16 {d}, {vr(SEL+4*(n&1),4)}, {vr(YL+4*n,4)}, {"0" if n in (0, 2) else d}'])
        self.spoll(lds, work, 's[16:17]')
        self.stamp(3)
        for i in range(4):
            A(f'v_pk_fma_f32 {vr(40+2*i,2)}, {vr(Y+2*i,2)}, {vr(C1+2*i,2)}, {vr(X1+2*i,2)}')
        self.pack(28, 40, 4)
        self.stamp(4)
        sh = [f'v_pk_fma_f32 {vr(Y+2*i,2)}, {vr(Y+2*i,2)}, {vr(GA+2*i,2)}, {vr(XF+2*i,2)}' for i in range(4)]
        sh += [f'v_pk_mul_f32 v[56:57], {vr(Y,2)}, {vr(Y,2)}', f'v_pk_add_f32 v[58:59], {vr(Y,2)}, {vr(Y+2,2)}']
        for i in range(1, 4):
            sh.append(f'v_pk_fma_f32 v[56:57], {vr(Y+2*i,2)}, {vr(Y+2*i,2)}, v[56:57]')
            if i > 1:
                sh.append(f'v_pk_add_f32 v[58:59], v[58:59], {vr(Y+2*i,2)}')
        if self.o['ssh']:
            sh = []
            for i in range(8):
                sh.append(f'v_fma_f32 v{Y+i}, v{Y+i}, v{GA+i}, v{XF+i}')
                sh.append(f'v_mul_f32 v56, v{Y}, v{Y}' if i == 0 else f'v_fmac_f32 v56, v{Y+i}, v{Y+i}')
                if i:
                    sh.append(f'v_add_f32 v58, v{Y+i}, {"v58" if i > 1 else f"v{Y}"}')
        else:
            sh += ['v_add_f32 v56, v56, v57', 'v_add_f32 v58, v58, v59']
        sh += ['s_nop 0',
               'v_permlane32_swap_b32 v58, v56', 'v_add_f32 v56, v56, v58', 'v_cndmask_b32 v56, 0, v56, s[16:17]']
        sh += [f'v_add_f32_dpp v56, v56, v56 {m} {DPPM}' for m in self.ROWPAR]
        self.mfma_std(28, shadow=sh, per=self.o['ssh'] or 2)
        if self.o['clk']:
            self.stamp(1)
        A('v_mov_b32 v57, v56')
        A('v_permlane16_swap_b32 v56, v57')
        A('v_add_f32 v56, v56, v57')
        self.red_write_std()
        A('ds_write_b32 v210, v56')

        def rd():
            A('ds_read_b128 v[56:59], v211')
            A('ds_read_b128 v[60:63], v211 offset:16')
            rd2(64, 'v25', 'v213')
            A('s_cmp_lg_u32 s40, 0')
            A('s_cbranch_scc1 L_Fnox')
            self.pk('add', 40, Y, PV, bstep=0, mods='op_sel_hi:[1,0]')
            self.pack(48, 40, 4)
            for i in range(4):
                A(f'v_min_u32 v{48+i}, -2, v{48+i}')
            A('s_mov_b64 exec, s[16:17]')
            for so in ('0', 's46'):
                A(f'buffer_store_dwordx2 v[48:49], v209, s[4:7], {so} offen sc1')
                A(f'buffer_store_dwordx2 v[50:51], v209, s[4:7], {so} offen offset:32 sc1')
            A('s_mov_b64 exec, -1')
            A('L_Fnox:')
        self.arrive('L_end', rd, 4, True)
        if self.o['clk']:
            self.stamp(2)
        A('v_pk_add_f32 v[56:57], v[56:57], v[58:59]')
        A('v_pk_add_f32 v[60:61], v[60:61], v[62:63]')
        A('v_pk_add_f32 v[56:57], v[56:57], v[60:61]')
        A(f'v_mul_f32 v56, {f2u(1/640)}, v56')
        A(f'v_mul_f32 v8, {f2u(1/640)}, v57')
        A(f'v_add_f32 v6, v{PV+2}, v56')
        A('v_fma_f32 v8, -v56, v56, v8')
        A('v_max_f32 v8, 0, v8')
        self.ln_scalars('v6', 'v8')
        A(f'v_sub_f32 v6, v{PV+2}, v6')
        A('s_waitcnt lgkmcnt(0)')
        self.red_sum(64)
        A(f'v_pk_fma_f32 v[96:97], {vr(AC,2)}, v[6:7], v[64:65] op_sel_hi:[1,0,1]')
        A(f'v_pk_fma_f32 v[96:97], v[96:97], v[8:9], {vr(AC+2,2)} op_sel_hi:[1,0,1]')
        A('v_cvt_pk_bf16_f32 v98, v96, v97')
        A('v_lshlrev_b32 v100, 16, v98')
        A(f'v_mul_f32 v4, {LOG2E}, v100')
        A('v_exp_f32 v4, -v4')
        self.lastonly('L_end', True)
        A('v_and_b32 v101, 0xffff0000, v98')
        A('v_add_f32 v4, 1.0, v4')
        A('v_rcp_f32 v4, v4')
        A('s_mov_b32 s10, 0x55555555')
        A('v_mul_f32 v2, v100, v4')
        self.rbf('v2')
        A('v_mul_f32 v2, v2, v101')
        A('s_mov_b32 s11, 0x55555555')
        A(f'v_mov_b32_dpp v3, v2 quad_perm:[1,0,3,2] {DPPM}')
        A('s_mov_b64 exec, s[10:11]')
        A('v_cvt_pk_bf16_f32 v2, v2, v3')
        A('v_min_u32 v2, -2, v2')
        A('buffer_store_dword v2, v212, s[4:7], 0 offen sc1')
        A('buffer_store_dword v2, v212, s[4:7], s46 offen sc1')
        self.stamp(5)

        def late():
            self.dma_issue(5, 3072, '', 24, s0=EF, jump='s[14:15]' if ly else None)
            self.tr_read(5, 2048, s0=EF)
            consts()
            self.hbar()
        self.tail_end('L_Ft', T_F, self.o['WF'], late if EF < 5 else None, self.o['WLF'])

        A('L_D:')
        A(f's_mul_i32 s10, s38, {384*1280}')
        A('s_lshl_b32 s11, s40, 5')
        A('s_add_u32 s10, s10, s11')
        A(f's_add_u32 s10, s{sWD}, s10')
        A(f's_addc_u32 s11, s{sWD+1}, 0')
        for a, x in ((10, 0), (12, 4)):
            A(f'v_xor_b32 v1, {x}, v19')
            A('v_lshrrev_b32 v2, 1, v1')
            A('v_mul_u32_u24 v2, 96, v2')
            A('v_add_u32 v2, v2, v18')
            if x:
                A('v_add_u32 v2, 8, v2')
            A('v_mul_u32_u24 v2, 1280, v2')
            A('v_and_b32 v1, 1, v1')
            A(f'v_lshl_add_u32 v{a}, v1, 4, v2')
            A(f'v_mov_b32 v{a+1}, 0')
            A(f'v_lshl_add_u64 {vr(a,2)}, {vr(a,2)}, 0, s[10:11]')
        self.dma_issue(ED, 1280, '', self.o['DD'], burst=self.o['DB'])
        self.tr_addr(False)
        self.red_addr()
        self.tr_read(ED, 512)
        self.probe()
        self.midwait()
        A('v_bfe_u32 v30, v0, 3, 1')
        A('v_and_b32 v1, 7, v0')
        A('v_lshlrev_b32 v2, 8, v30')
        A('v_lshl_add_u32 v2, v1, 3, v2')
        A('v_add_u32 v25, s39, v2')
        A('s_lshl_b32 s10, s40, 4')
        A('v_lshl_add_u32 v31, v1, 1, s10')
        A('v_mul_u32_u24 v3, 640, v30')
        A('v_add_lshl_u32 v29, v3, v31, 1')
        A('v_mov_b32 v4, v22')
        A('v_mov_b32 v22, v30')
        self.dense_addr('v28', H_X2, 2, k='v31')
        A('v_mov_b32 v22, v4')
        A(f'v_add_u32 v8, {H_MOD + 50*256 - H_X2}, v28')

        def ld():
            A('buffer_load_dword v44, v8, s[4:7], 0 offen sc1')
        self.poll(ld, [44], 'v1', sleep=self.o['slp'])
        A(f's_mov_b32 s28, s{sOUT}')
        A(f's_mov_b32 s29, s{sOUT+1}')
        A('s_mov_b32 s30, 2560')
        A('s_mov_b32 s31, 0x20000')
        self.unpack(46, 44, 1)
        A('v_bfe_u32 v1, v0, 1, 3')
        A(f'v_lshlrev_b32 v2, 4, v22')
        A(f'v_lshl_add_u32 v2, v20, 5, v2')
        A('s_mul_i32 s10, s38, 1536')
        A(f's_add_u32 s10, s10, {H_ACT}')
        A('v_add_u32 v2, s10, v2')
        A('v_lshl_add_u32 v8, v1, 7, v2')
        A('v_and_b32 v1, 3, v1')
        A('v_lshl_add_u32 v9, v1, 7, v2')
        self.tail_begin('L_Dt')
        self.get_sel()

        def ld0():
            A('buffer_load_dword v40, v28, s[4:7], s47 offen sc1')

        pairs = [(0, 32), (8, 36), (2, 48), (4, 52), (6, 56), (10, 60)]
        sh = [f'v_mov_b32_dpp v{r+i}, v{32+4*(ks//8)+i} row_shl:{2*(ks%8)} {DPPM}' for ks, r in pairs[2:] for i in range(4)]

        def mf(n, e):
            ks, r = pairs[n]
            d = vr(96 + 4 * e, 4)
            return f'v_mfma_f32_16x16x32_bf16 {d}, {vr(self.WR+16*((ks+e)%3)+4*((ks+e)//3),4)}, {vr(r,4)}, {"0" if n == 0 else d}'
        self.spoll([('buffer_load_dwordx4 v[32:35], v8, s[4:7], s47 offen sc1', 32),
                    ('buffer_load_dwordx4 v[36:39], v9, s[4:7], s47 offen offset:1024 sc1', 36)],
                   [[mf(n, 0), mf(n, 1), sh[2 * n], sh[2 * n + 1]] for n in range(2)],
                   one=('buffer_load_dword v40, v28, s[4:7], s47 offen sc1', 40))
        self.stamp(3)
        sh = sh[4:]
        for n in range(2, 6):
            for e in range(2):
                A(mf(n, e))
                for i in range(2 if n > 2 or e else 4):
                    if sh:
                        A(sh.pop(0))
        self.unpack(42, 40, 1)
        for i in range(4):
            A(f'v_add_f32_dpp v{96+i}, v{100+i}, v{96+i} quad_perm:[2,3,0,1] {DPPM}')
        self.red_write_std(1)
        self.arrive('L_end', lambda: self.red_read(104), 4, True)
        A('s_waitcnt lgkmcnt(0)')
        self.red_sum(104)
        self.lastonly('L_end', True)
        self.pack(98, 104, 1)
        self.unpack(96, 98, 1)
        A('v_pk_mul_f32 v[96:97], v[96:97], v[46:47]')
        self.pack(98, 96, 1)
        self.unpack(96, 98, 1)
        A('v_pk_add_f32 v[96:97], v[96:97], v[42:43]')
        A('v_cvt_pk_bf16_f32 v2, v96, v97')
        A('s_mov_b64 exec, 0xffff')
        A(f'buffer_store_dword v2, v29, s[28:31], 0 offen')
        self.stamp(4)

        def late():
            self.dma_issue(3, 1280, '', 24, s0=ED, mid=(self.o['DL'], lambda: self.wake(128, add=False, both=False)))
            self.tr_read(3, 512, s0=ED)
        self.tail_end('L_Dt', T_D, self.o['WD'], late if ED < 3 else None, 64 if self.o['DL'] else self.o['WLD'])

    def build(self):
        self.entry()
        self.helper()
        self.stream()
        t = HEADER + f'; @launch grid=(256,1,1) block=(512,1,1) lds={L_END}\n' + self.A.text()
        t += '.p2align 8\n.type L_tab,@object\nL_tab:\n'
        w = job_table()
        for i in range(0, len(w), 8):
            t += '.long ' + ','.join('0x%08x' % x for x in w[i:i + 8]) + '\n'
        t += '.section .rodata,"a"\n.p2align 6\n' + kd(KN + '_kernel', 256, sgpr=102)
        return t


if __name__ == '__main__':
    import os
    os.makedirs('gen', exist_ok=True)
    names = []
    for spec in sys.argv[1:]:
        kw = {}
        for kv in spec.split(','):
            if not kv:
                continue
            k, v = kv.split('=')
            try:
                v = int(v, 0)
            except ValueError:
                v = v.replace('+', ' ')
            kw[k] = v
        nm = 'work/gen/v13_' + spec.replace('=', '').replace(',', '_') + '.s'
        open('code/' + nm, 'w').write(G(**kw).build())
        names.append(nm)
    print(' '.join(names))
```

```python
import sys, struct
sys.path.insert(0, 'work')
from asmlib import Asm, kd

KN = 'adaLN_cond__gqa_block_cached__swiglu_ffn__decode'
f2u = lambda x: '0x%08x' % struct.unpack('<I', struct.pack('<f', x))[0]
LOG2E = f2u(1.4426950408889634)
SCALE = f2u(192 ** -0.5)
PER = 196608
sX, sK, sV, sWQ, sWO, sWG, sWU, sWD, sC, sWM, sOUT, sDBG, sWS = 64, 66, 68, 70, 72, 76, 78, 80, 82, 84, 86, 88, 90
H_MOD, H_Q, H_TS, H_FLG, H_ML = 0, 0x4000, 0xA000, 0x12000, 0x14000
H_X2, H_ACT, H_Y, H_OP, H_CLR, H_END, H_PRB = 0x1C000, 0x20000, 0x24000, 0x34000, 0x64000, 0xF4000, 0xF4000
VORD = (7, 6, 5, 3, 2, 1, 4, 0)
OPI = 98304
L_STG, L_PART, L_RED, L_ST, L_CNT, L_MLL, L_GL, L_FL, L_END = 0, 98304, 147456, 153600, 153728, 153792, 154048, 154112, 154240
C_MRG, C_HBAR, C_SEL, C_HB, C_WK, C_KC, C_IC, C_RDY = 0, 12, 16, 24, 28, 32, 36, 40
SPIN = 1 << 15
DPPM = 'row_mask:0xf bank_mask:0xf'
T_M, T_Q, T_W, T_F, T_D = 1, 2, 3, 4, 5
STAMP0 = 0x2ff00000


def sp(n):
    return f's[{n}:{n+1}]'


def vr(n, c):
    return f'v[{n}:{n+c-1}]' if c > 1 else f'v{n}'


JT = 5
RN = 1
HV = 0


def job_table():
    J = {i: [] for i in range(256)}
    free = {x: [8 * r + x for r in range(32)] for x in range(8)}
    if JT in (1, 4, 5):
        fx = [f // 6 for f in range(48)]
        dx = [[0, 1, 2, 3, 4, 5, 6, 7, 2, 5][d // 4] for d in range(40)]
    elif JT == 2:
        fx = [[0, 3, 6][f // 16] for f in range(48)]
        dx = [[2, 5][d // 20] for d in range(40)]
    elif JT == 3:
        fx = [[0, 1, 2, 3][f // 12] for f in range(48)]
        dx = [[0, 1, 2, 3, 0, 1, 2, 3, 4, 4][d // 4] for d in range(40)]
    for f in range(48):
        J[free[fx[f]].pop(0)] = [(T_F, f)]
    for d in range(40):
        J[free[dx[d]].pop(0)] = [(T_D, d)]
    wl = []
    for w in range(80):
        i = free[w & 7].pop(0)
        J[i] = [(T_W, w)]
        wl.append(i)
    rest = sorted(i for x in free for i in free[x])
    m2 = list(range(20, 60)); q = list(range(96))
    k = 0
    if JT < 4:
        for m in range(20):
            J[rest[k]] = [(T_M, m), (T_M, m2.pop())]; k += 1
        for _ in range(20):
            J[rest[k]] = [(T_Q, q.pop()), (T_M, m2.pop())]; k += 1
    while k < len(rest):
        J[rest[k]] = [(T_Q, q.pop())]; k += 1
    k = 0
    if JT >= 4:
        for i in range(256):
            if J[i][0][0] == T_D:
                J[i] = [(T_Q, q.pop()) if JT == 5 and q else (T_M, m2.pop())] + J[i]
        while m2:
            J[wl[k]] = [(T_M, m2.pop())] + J[wl[k]]; k += 1
        for m in range(20):
            J[wl[k]] = [(T_M, m)] + J[wl[k]]; k += 1
    while q:
        J[wl[k]] = [(T_Q, q.pop())] + J[wl[k]]; k += 1
    singles = wl[k:]
    if RN:
        cq, c1, c2 = 0, 0, 20
        for i in sorted(range(256), key=lambda i: (i & 7, i)):
            for n, (ty, ix) in enumerate(J[i]):
                if ty == T_Q:
                    J[i][n] = (ty, cq); cq += 1
                elif ty == T_M and ix < 20:
                    J[i][n] = (ty, c1); c1 += 1
                elif ty == T_M:
                    J[i][n] = (ty, c2); c2 += 1
    clr = {singles[n]: n for n in range(10)}
    words = []
    for i in range(256):
        j = J[i] + [(0, 0)]
        v = j[0][0] | j[0][1] << 4 | j[1][0] << 12 | j[1][1] << 16
        if i in clr:
            v |= (16 | clr[i]) << 24
        last = J[i][-1][0]
        v |= (last == T_W) << 30 | (last == T_F) << 31
        t0, i0 = J[i][0]
        heavy = (len(J[i]) == 2 and last == T_W) or (t0 == T_F and (i0 >> 1) & 7 == 3)
        if HV >= 2:
            heavy = heavy or len(J[i]) == 2 or (t0 == T_Q and i0 & 7 == 3) or i in clr
        if HV >= 3:
            heavy = heavy or t0 == T_F
        v |= (heavy and HV > 0) << 29
        words.append(v)
    return words


HEADER = '''; adaLN -> cached attention -> adaLN -> SwiGLU, decode step (B=2, D=640, 32 heads x 192, 8192 keys).
; Written with my own generator script (work/gen_v13.py).  One persistent launch, one workgroup per CU.
;
;
; Hand-offs go through ws: slots are first set to 0xffffffff (flags in debug say when), writers never store that
;   value, readers poll with device-scope loads (bounded).  Stores write through, except inside a group whose 32
'''


class G:
    def __init__(self, **kw):
        self.o = dict(D=5, DX=7, BG=20, BO=25, NR=13, BI=0, bal=2, NF=24, NQ=0, stamps=0, clk=0, diag='',
                      prio=3, DQ=24, DF=24, FB=10, DD=1, DB=5, DM2=2, DW2=4, JT=5, RN=1, fast=1,
                      NP=12, sel=-1, slp=32, wks=1, EF=4, ED=1, PB=24, ND=20, U=4, N1=6,
                      WL=64, WLF=64, WLD=128, WF=64, WD=64, fsl=24, fs0=0, gw=1, TH=23, TV=0, NOM=335, xl=0, g3=1, gc=2, NG=24, qsl=8, xc=0, tp=0, ec=0, pp=0, psl=4, mh=0, cs=1, DL=2, t0=2, ssh=3, db=1, hv=1, DP=5, kc=-1, ms=90, CL=40, CP=24, RO=12, NSM=16, sm=1, iws=8, hold=20, ptm=3, TB=0, pw=1, BW=35, BF=12, w2=0, t7=0, pf=5, lin=1, dt=0, xf=0, pt=2, ca=0, p2=1, xo=0, xs=0, xg=0, pol='')
        self.o.update(kw)
        global JT, RN, HV
        JT, RN, HV = self.o['JT'], self.o['RN'], self.o['hv']
        self.A = Asm()
        self.nl = 0

    def lab(self, s):
        self.nl += 1
        return f'L{self.nl}_{s}'

    def stamp(self, i, alt=0):
        m = self.o['stamps']
        if (m in (1, 3) and not alt) or (m == 2 and (alt == 1 or i in (0, 6))) or (m == 3 and alt == 3):
            self.A(f'{"s_memtime" if self.o["clk"] else "s_memrealtime"} {sp(48+2*i)}')

    def dump_stamps(self, area):
        if not self.o['stamps'] or self.o['diag']:
            return
        A = self.A
        A('s_mov_b64 exec, 1')
        A('s_getreg_b32 s62, hwreg(HW_REG_XCC_ID)')
        A('s_mov_b32 s63, s3')
        A('s_waitcnt lgkmcnt(0)')
        A('s_lshl_b32 s8, s2, 7')
        A(f's_add_u32 s8, s8, {STAMP0 + area}')
        A('v_mov_b32 v1, s8')
        for i in range(16):
            A(f'v_mov_b32 v{112+i}, s{48+i}')
        for i in range(4):
            A(f'global_store_dwordx4 v1, {vr(112+4*i,4)}, {sp(sWS)} offset:{16*i}')

    def rbf(self, v):
        self.A(f'v_cvt_pk_bf16_f32 {v}, {v}, {v}')
        self.A(f'v_lshlrev_b32 {v}, 16, {v}')

    def unpack(self, dst, src, n):
        for i in range(n):
            self.A(f'v_and_b32 v{dst+2*i+1}, 0xffff0000, v{src+i}')
            self.A(f'v_lshlrev_b32 v{dst+2*i}, 16, v{src+i}')

    def pack(self, dst, src, n):
        for i in range(n):
            self.A(f'v_cvt_pk_bf16_f32 v{dst+i}, v{src+2*i}, v{src+2*i+1}')

    def rbf8(self, x, t):
        self.pack(t, x, 4)
        self.unpack(x, t, 4)

    def pk(self, op, d, a, b, n=4, bstep=2, mods=''):
        for i in range(n):
            self.A(f'v_pk_{op}_f32 {vr(d+2*i,2)}, {vr(a+2*i,2)}, {vr(b+bstep*i,2)} {mods}')

    def xrow(self, op, v, t):
        for sw in ('v_permlane16_swap_b32', 'v_permlane32_swap_b32'):
            self.A(f'v_mov_b32 {t}, {v}')
            self.A(f'{sw} {v}, {t}')
            self.A(f'{op} {v}, {v}, {t}')

    def rowred(self, op, v, modes):
        for m in modes:
            self.A(f'{op}_dpp {v}, {v}, {v} {m} {DPPM}')

    ROW16 = ('quad_perm:[1,0,3,2]', 'quad_perm:[2,3,0,1]', 'row_half_mirror', 'row_mirror')
    ROWPAR = ('quad_perm:[2,3,0,1]', 'row_ror:4', 'row_ror:8')

    def silu(self, v, t, u):
        A = self.A
        A(f'v_mul_f32 {t}, {LOG2E}, {v}')
        A(f'v_exp_f32 {t}, -{t}')
        A(f'v_add_f32 {t}, 1.0, {t}')
        A(f'v_rcp_f32 {u}, {t}')
        A(f'v_mul_f32 v2, {v}, {u}')
        A(f'v_fma_f32 v3, -v2, {t}, {v}')
        A(f'v_fma_f32 v2, v3, {u}, v2')
        A(f'v_div_fixup_f32 {v}, v2, {t}, {v}')

    def invalid(self, regs, t):
        A = self.A
        regs = list(regs)
        if len(regs) == 1:
            A(f'v_cmp_eq_u32 vcc, -1, v{regs[0]}')
            return
        cur = f'v{regs.pop(0)}'
        while regs:
            if len(regs) >= 2:
                A(f'v_max3_u32 {t}, {cur}, v{regs.pop(0)}, v{regs.pop(0)}')
            else:
                A(f'v_max_u32 {t}, {cur}, v{regs.pop(0)}')
            cur = t
        A(f'v_cmp_eq_u32 vcc, -1, {t}')

    def poll(self, loads, regs, t, sleep=0, cnt='s9', mask=False, fly=0):
        A = self.A
        top, done = self.lab('poll'), self.lab('pdone')
        A(f's_mov_b32 {cnt}, {SPIN}')
        A(f'{top}:')
        loads()
        A(f's_waitcnt vmcnt({fly})')
        self.invalid(regs, t)
        A(f's_cbranch_vccz {done}')
        if mask:
            A('s_mov_b64 exec, vcc')
        if sleep:
            A(f's_sleep {sleep}')
        A(f's_sub_u32 {cnt}, {cnt}, 1')
        A(f's_cbranch_scc0 {top}')
        A(f'{done}:')
        if mask:
            A('s_mov_b64 exec, -1')

    def spoll(self, loads, work, lanes=None, one=None):
        A = self.A
        top, done = self.lab('spoll'), self.lab('sdone')
        A(f's_mov_b32 s9, {SPIN}')
        A(f's_mov_b64 vcc, {lanes or -1}')
        A(f'{top}:')
        A('s_sub_u32 s9, s9, 1')
        A(f's_cbranch_scc1 {done}')
        A('s_mov_b64 exec, vcc')
        if one:
            A(one[0])
        for t, r in loads:
            A(t)
        A('s_mov_b64 exec, -1')
        for i, (t, r) in enumerate(loads):
            A(f's_waitcnt vmcnt({len(loads)-1-i})')
            if i == 0 and one:
                chk = [f'v_max3_u32 v1, v{one[1]}, v{r}, v{r+1}', f'v_max3_u32 v1, v1, v{r+2}, v{r+3}']
            elif i == 0:
                chk = [f'v_max3_u32 v1, v{r}, v{r+1}, v{r+2}', f'v_max_u32 v1, v1, v{r+3}']
            else:
                chk = [f'v_max3_u32 v1, v1, v{r}, v{r+1}', f'v_max3_u32 v1, v1, v{r+2}, v{r+3}']
            w = list(work[i])
            A(w.pop(0))
            for c in chk:
                A(c)
            if i + 1 == len(loads):
                A('v_cmp_eq_u32 vcc, -1, v1')
            for x in w:
                A(x)
        if lanes:
            A(f's_and_b64 vcc, vcc, {lanes}')
        A(f's_cbranch_vccnz {top}')
        A(f'{done}:')

    def flags_addr(self, va, both):
        A = self.A
        A(f'v_and_b32 {va}, 7, v0')
        if both:
            A('v_cmp_gt_u32 vcc, 32, v0')
            A(f'v_cndmask_b32 {va}, v0, {va}, vcc')
        A(f'v_lshlrev_b32 {va}, 2, {va}')

    def flags_wait(self, va, vd, cnt='s9'):
        A = self.A
        top, done = self.lab('flag'), self.lab('fdone')
        A(f's_mov_b32 {cnt}, {SPIN}')
        A(f'{top}:')
        A(f'global_load_dword {vd}, {va}, {sp(sDBG)} sc1')
        A('s_waitcnt vmcnt(0)')
        A(f'v_cmp_eq_u32 vcc, 0, {vd}')
        A(f's_cbranch_vccz {done}')
        A('s_sleep 8')
        A(f's_sub_u32 {cnt}, {cnt}, 1')
        A(f's_cbranch_scc0 {top}')
        A(f'{done}:')

    def op_addr(self, dst, rd, rdbase):
        A = self.A
        A('s_and_b32 s44, s2, 7')
        A('s_lshr_b32 s45, s2, 3') if dst == 'v57' else A('s_lshr_b32 s8, s2, 3')
        A('s_lshl_b32 s44, s44, 5')
        A(f's_add_u32 s44, s44, {"s45" if dst == "v57" else "s8"}')
        A('s_mul_i32 s44, s44, 384')
        A(f's_add_u32 s44, s44, {H_OP}')
        A('v_and_b32 v1, 0x31, v0')
        if self.o['lin']:
            A('v_bfe_u32 v2, v0, 2, 2')
            A('v_lshl_add_u32 v1, v2, 1, v1')
            A('v_bfe_u32 v2, v0, 1, 1')
            A('v_lshl_add_u32 v1, v2, 3, v1')
            A(f'v_lshl_add_u32 {dst}, v0, 3, s44')
        else:
            A('v_bfe_u32 v2, v0, 1, 2')
            A('v_lshl_add_u32 v1, v2, 2, v1')
            A('v_bfe_u32 v2, v0, 3, 1')
            A('v_lshl_add_u32 v1, v2, 1, v1')
            A(f'v_lshl_add_u32 {dst}, v1, 3, s44')
            A('v_mov_b32 v1, v0')
        A('v_min_u32 v1, 47, v1')
        A('v_lshlrev_b32 v1, 4, v1')
        A(f'v_add_u32 {rd}, {rdbase}, v1')

    def mode_store(self, text, mode):
        A = self.A
        thru, done = self.lab('thru'), self.lab('stored')
        A(f's_cmp_lg_u32 {mode}, 2')
        A(f's_cbranch_scc1 {thru}')
        A(text + ' ' + self.o['pol'])
        A(f's_branch {done}')
        A(f'{thru}:')
        A(text + ' sc1')
        A(f'{done}:')

    def lwait(self, off, test, sleep):
        A = self.A
        top, done = self.lab('lw'), self.lab('lwd')
        A(f'v_mov_b32 v1, {L_CNT}')
        A(f's_mov_b32 s9, {SPIN*8}')
        A(f'{top}:')
        A(f'ds_read_b32 v2, v1 offset:{off}')
        A('s_waitcnt lgkmcnt(0)')
        A('v_readfirstlane_b32 s8, v2')
        test()
        A(f's_cbranch_scc1 {done}')
        A(f's_sleep {sleep}')
        A('s_sub_u32 s9, s9, 1')
        A(f's_cbranch_scc0 {top}')
        A(f'{done}:')

    def item_wait(self, bit):
        self.lwait(C_IC, lambda: self.A(f's_bitcmp1_b32 s8, {bit}'), self.o['iws'])

    def ws_srd(self):
        A = self.A
        A(f's_mov_b32 s4, s{sWS}')
        A(f's_mov_b32 s5, s{sWS+1}')
        A(f's_mov_b32 s6, {H_END}')
        A('s_mov_b32 s7, 0x20000')

    RING, Q, S = 64, 16, 28

    def entry(self):
        A = self.A
        n = KN + '_kernel'
        A('.amdgcn_target "amdgcn-amd-amdhsa--gfx950"')
        A('.text')
        A(f'.globl {n}')
        A('.p2align 8')
        A(f'.type {n},@function')
        A(f'{n}:')
        A('s_cmp_ge_u32 s2, 256')
        A('s_cbranch_scc1 L_end')
        self.stamp(0)
        A('s_load_dwordx16 s[64:79], s[0:1], 0')
        A('v_lshrrev_b32 v1, 6, v0')
        A('s_load_dwordx8 s[80:87], s[0:1], 64')
        A('v_readfirstlane_b32 s3, v1')
        A('s_load_dwordx4 s[88:91], s[0:1], 96')
        A('v_and_b32 v0, 63, v0')
        A('s_cmp_ge_u32 s3, 4')
        A('s_cbranch_scc1 L_helper')
        A('s_and_b32 s13, s2, 7')
        A('s_lshr_b32 s14, s2, 4')
        A('s_lshl4_add_u32 s34, s13, s14')
        A(f's_mul_i32 s34, s34, {PER}')
        A('s_bfe_u32 s12, s2, 0x10003')
        A('s_lshl2_add_u32 s12, s12, s3')
        A('s_mul_i32 s36, s12, 392')
        A('s_lshr_b32 s36, s36, 10')
        A('s_mul_i32 s36, s36, 22')
        A('s_lshl3_add_u32 s36, s12, s36')
        A('s_mul_i32 s36, s36, 1536')
        A('v_and_b32 v1, 1, v0')
        A('v_lshrrev_b32 v2, 4, v0')
        A('v_lshl_add_u32 v1, v1, 2, v2')
        A('v_lshlrev_b32 v51, 4, v1')
        A('v_bfe_u32 v1, v0, 1, 2')
        A('v_bfe_u32 v2, v0, 3, 1')
        A('v_mul_u32_u24 v2, 84, v2')
        A('v_add_u32 v1, v1, v2')
        A('v_mul_u32_u24 v1, 384, v1')
        A('v_add_u32 v40, v1, v51')
        A(f's_mov_b32 s10, {PER}')
        A('s_mov_b32 s11, 0x20000')
        self.stamp(5, 1)
        A('s_waitcnt lgkmcnt(0)')
        self.stamp(1, 1)
        A(f's_add_u32 s8, s{sK}, s34')
        A(f's_addc_u32 s9, s{sK+1}, 0')
        for n in range(self.o['N1']):
            A(f'buffer_load_dwordx4 {vr(self.RING+4*n,4)}, v40, s[8:11], s36 offen offset:{1536*(n//3) + 128*(n%3)} nt')
        A('s_barrier')
        A('s_branch L_stream')

    def stream(self):
        A = self.A
        o = self.o
        D, bal = o['D'], o['bal']
        DX = o['DX'] if bal else D
        RING, Q, S = self.RING, self.Q, self.S
        A('L_stream:')
        for t in range(1, 8):
            A(f's_lshl3_add_u32 s44, s12, {t}')
            A('s_mul_i32 s45, s44, 49')
            A('s_lshr_b32 s45, s45, 10')
            A('s_mul_i32 s45, s45, 22')
            A('s_add_u32 s45, s45, s44')
            A(f's_mul_i32 s{36+t}, s45, 1536')
        A('s_cmp_eq_u32 s12, 7')
        A(f's_cselect_b32 s43, {42*1536}, s43')
        A(f's_cselect_b32 s44, {22*1536}, 0')
        A('v_bfe_u32 v1, v0, 3, 1')
        A('v_mad_u32_u24 v41, v1, s44, v40')
        A('v_bfe_u32 v1, v0, 3, 2')
        A('v_lshrrev_b32 v2, 5, v0')
        A('v_mul_u32_u24 v3, 84, v2')
        A('v_add_u32 v1, v1, v3')
        A('v_mul_u32_u24 v1, 384, v1')
        A('v_and_b32 v3, 7, v0')
        A('v_lshl_add_u32 v38, v3, 4, v1')
        A('v_mad_u32_u24 v39, v2, s44, v38')

        A('s_mov_b64 s[14:15], s[8:9]')
        A('s_mov_b32 s97, 0x07654321')

        def nxt_slice():
            A('s_and_b32 s46, s97, 7')
            A('s_lshr_b32 s97, s97, 4')
            A(f's_mul_i32 s46, s46, {128*PER}')
            A('s_add_u32 s8, s14, s46')
            A('s_addc_u32 s9, s15, 0')

        def load(n):
            k = n % 24
            t = k // 3
            A(f'buffer_load_dwordx4 {vr(RING+4*n,4)}, v{41 if t == 7 else 40}, s[8:11], s{36+t} offen offset:{128*(k%3)} nt')
            if k == 23:
                nxt_slice()

        def setup():
            self.ws_srd()
            A('s_getpc_b64 s[98:99]')
            A('L_pc2:')
            A('s_add_u32 s98, s98, L_tab-L_pc2')
            A('s_addc_u32 s99, s99, 0')
            A('s_lshl_b32 s44, s2, 2')
            A('s_load_dword s93, s[98:99], s44')
            A('s_mov_b32 s16, 0xff00ff00')
            A('s_mov_b32 s17, 0xff00ff00')
            for t in range(8):
                A(f's_mov_b32 s{18+2*t}, {0x01010101 << t}')
                A(f's_mov_b32 s{19+2*t}, {0x01010101 << t}')
            yield
            A('v_and_b32 v1, 1, v0')
            A('v_lshlrev_b32 v1, 4, v1')
            A('v_mov_b32 v2, 0xffff')
            A('v_lshlrev_b32 v1, v1, v2')
            A('v_bfe_u32 v2, v0, 1, 2')
            for w in range(4):
                A(f'v_cmp_eq_u32 vcc, {w}, v2')
                A(f'v_cndmask_b32 v{42+w}, 0, v1, vcc')
            yield
            A('v_bfe_u32 v1, v0, 3, 2')
            A('v_mul_u32_u24 v1, 6144, v1')
            A('v_lshrrev_b32 v2, 5, v0')
            A('v_lshl_add_u32 v1, v2, 7, v1')
            A('v_and_b32 v2, 7, v0')
            A('v_lshl_add_u32 v1, v2, 4, v1')
            A('s_mul_i32 s44, s13, 768')
            A(f's_add_u32 s44, s44, {H_Q}')
            A('v_add_u32 v50, s44, v1')
            A('s_mul_i32 s35, s3, 12288')
            A(f's_add_u32 s35, s35, {L_PART}')
            A('v_add_u32 v51, s35, v51')
            A('v_lshrrev_b32 v1, 4, v0')
            A('v_lshlrev_b32 v1, 5, v1')
            A(f's_lshl3_add_u32 s44, s3, {L_MLL}')
            A('v_add_u32 v52, s44, v1')
            self.flags_addr('v54', True)
            yield
            if bal:
                sh = 4 if o['NSM'] == 16 else 5
                A(f's_lshr_b32 s45, s2, {sh}')
                A(f's_and_b32 s44, s2, {(1 << sh) - 1}')
                A('s_xor_b32 s44, s44, s45')
                A('s_bfe_u32 s46, s2, 0x20001')
                A('s_xor_b32 s46, s46, s3')
                A('s_or_b32 s92, s44, s46')
                A('s_lshl_b32 s45, s45, 7')
                A(f's_add_u32 s45, s45, {H_TS}')
                A('v_mov_b32 v58, s45')
                A(f's_mov_b32 s100, {o["BI"]}')
                A(f's_add_u32 s64, s{sWS}, {H_TS}')
                A(f's_addc_u32 s65, s{sWS+1}, 0')
            yield
            A('s_waitcnt lgkmcnt(0)')
            b0 = o['BO'] + o['BG'] // 2 if bal == 1 else -o['TH']
            A(f's_mov_b32 s101, {16*b0}')
            A('s_bitcmp1_b32 s93, 30')
            A(f's_cselect_b32 s101, {16*(b0 + o["BW"])}, s101')
            A('s_bitcmp1_b32 s93, 31')
            A(f's_cselect_b32 s101, {16*(b0 + o["BF"])}, s101')
            A('v_lshrrev_b32 v1, 5, v0')
            A('v_mul_u32_u24 v1, 768, v1')
            A('v_bfe_u32 v2, v0, 4, 1')
            A('v_lshl_add_u32 v1, v2, 7, v1')
            A('v_and_b32 v2, 7, v0')
            A('v_lshl_add_u32 v1, v2, 4, v1')
            A('v_add_u32 v62, s35, v1')
            self.op_addr('v57', 'v56', L_PART + 7 * 1536)
            A('s_mov_b32 s94, 0x00ff00ff')
            A('s_mov_b32 s95, 0xff00ff00')
            A('v_mov_b32 v55, 1')
            A('v_mov_b32 v60, 1')
            A(f'v_mov_b32 v63, {L_CNT}')
            yield

        def qloads():
            for j in range(3):
                A(f'buffer_load_dwordx4 {vr(Q+4*j,4)}, v50, s[4:7], 0 offen offset:{256*j} sc1')
        DP = o['DP']
        NF, NQ = o['NF'], o['NQ'] or 47 - DP
        assert NQ - NF > DP + 1 and NF >= 13 and o['EF'] >= 1 and o['ED'] >= 1 and o['N1'] <= 6
        su = setup()
        for n in range(o['N1'], 48):
            ex = (1 if NF < n <= NF + DP else 0) + (3 if NQ < n <= NQ + DP else 0)
            if o['hv'] and n >= 18:
                if n in (18, NQ + 1):
                    A('s_bitcmp1_b32 s93, 29')
                    A('s_cselect_b64 vcc, -1, 0')
                l = self.lab('y')
                A(f's_waitcnt vmcnt({DX-1+ex})')
                A(f's_cbranch_vccnz {l}')
                A(f's_waitcnt vmcnt({DP-1+ex})')
                A(f'{l}:')
            else:
                A(f's_waitcnt vmcnt({DP-1+ex})')
            if n in (6, 10, 16):
                self.stamp({6: 2, 10: 3, 16: 4}[n], 1)
            load(n)
            if n >= 8 and n % 2 == 0:
                next(su, None)
            if n == o['NG']:
                assert n > 16
                A('s_mov_b64 exec, 1')
                A('ds_add_u32 v63, v55 offset:20')
                A('s_mov_b64 exec, -1')
            if n == NF:
                A(f'global_load_dword v53, v54, {sp(sDBG)} sc1')
            if n == NQ:
                ok = self.lab('fok')
                A('v_cmp_eq_u32 vcc, 0, v53')
                A(f's_cbranch_vccz {ok}')
                self.flags_wait('v54', 'v53', 's99')
                A(f'{ok}:')
                qloads()
        self.stamp(1)
        A(f's_waitcnt vmcnt({47-NQ})')
        ok = self.lab('qok')
        self.invalid(range(Q, Q + 12), 'v1')
        A(f's_cbranch_vccz {ok}')
        self.poll(qloads, range(Q, Q + 12), 'v1', cnt='s99')
        A(f'{ok}:')
        A('v_lshl_add_u32 v1, v0, 4, s35')
        for j in range(3):
            A(f'ds_write_b128 v1, {vr(Q+4*j,4)} offset:{1024*j}')
        for j in range(3):
            A(f'ds_read_b128 {vr(Q+4*j,4)}, v51 offset:{1024*j}')
        self.stamp(2)
        NR, PB, ND, U = o['NR'], o['PB'], o['ND'], o['U']
        NB = PB // U
        assert ND % U == 0 and ND <= PB and NR + 3 < ND

        def wait(n, extra=-100):
            ex = lambda d: 1 if extra < n <= extra + d else 0
            if not bal:
                A(f's_waitcnt vmcnt({D-1+ex(D)})')
                return
            if n % U == 0 and bal == 1:
                A(f's_bitcmp1_b32 s100, {((n - ND) // U) % NB}')
                A('s_cselect_b64 vcc, -1, 0')
            l = self.lab('x')
            A(f's_waitcnt vmcnt({DX-1+ex(DX)})')
            A(f's_cbranch_vccnz {l}')
            A(f's_waitcnt vmcnt({D-1+ex(D)})')
            A(f'{l}:')

        CP, RO, NSM = o['CP'], o['RO'], o['NSM']
        back = (U - 1 + RO) // CP
        if bal == 2:
            assert RO % U == 0 and CP % U == 0 and (U - 1 + RO) % CP + U < CP + (CP == 24) * 0 + 1
            assert (336 // CP + back) * NSM * 128 <= H_FLG - H_TS
            A('s_memrealtime s[0:1]')
            A(f's_mov_b32 s87, {16*o["NOM"]*U//24}')
            A('s_mov_b32 s86, 0')
            A(f's_mov_b32 s98, {1 + back}')
            A(f's_mov_b64 vcc, {o["BI"]}')
            A(f'v_add_u32 v58, {back*NSM*128}, v58')
            if o['kc'] >= 0:
                A('v_lshl_add_u32 v58, v0, 6, v58')
                A(f's_getreg_b32 s44, hwreg(HW_REG_HW_ID, {o["kc"]}, 1)')
                A('s_lshl_b32 s44, s44, 6')
                A('s_add_u32 s64, s64, s44')
                A('s_addc_u32 s65, s65, 0')
            A('s_waitcnt lgkmcnt(0)')
            A(f's_add_u32 s100, s0, {-100000 if o["BI"] else 100000}')
            if o['hv']:
                A('s_sub_u32 s44, s0, 60')
                A('s_bitcmp1_b32 s93, 29')
                A('s_cselect_b32 s100, s44, s100')
                A('s_cselect_b64 vcc, -1, 0')
            A('s_lshl_b32 s100, s100, 4')

        def balance2(n):
            n = n % CP
            if n % U == U - 2:
                A('s_memrealtime s[0:1]')
            if n % U == U - 1:
                A('s_waitcnt lgkmcnt(0)')
                A('s_lshl4_add_u32 s44, s0, s101')
                A('s_sub_u32 s44, s44, s100')
                A('s_add_u32 s100, s100, s87')
                A('s_cmp_gt_i32 s44, 0')
                A('s_cselect_b64 vcc, -1, 0')
            if o['tp'] and n == 2 * U - 1:
                l = self.lab('notp')
                A(f's_and_b32 s46, s2, {o["tp"] - 1 << 3}')
                A('s_or_b32 s46, s46, s3')
                A(f's_cbranch_scc1 {l}')
                A('s_and_b32 s46, s97, 7')
                A(f's_mul_i32 s46, s46, {128*PER}')
                A('s_add_u32 s46, s14, s46')
                A('s_addc_u32 s47, s15, 0')
                A('s_load_dword s13, s[46:47], 0')
                A(f'{l}:')
            if n == U - 1:
                l = self.lab('nopub')
                A('s_cmp_lg_u32 s92, 0')
                A(f's_cbranch_scc1 {l}')
                A('v_mov_b32 v59, s0')
                A(f's_mov_b64 exec, {3 if o["kc"] >= 0 else 1}')
                A('buffer_store_dword v59, v58, s[4:7], 0 offen sc1')
                A('s_mov_b64 exec, -1')
                A(f'v_add_u32 v58, {NSM*128}, v58')
                A(f'{l}:')
            if n == (U - 1 + RO) % CP:
                for i in range(NSM):
                    A(f's_load_dword s{70+i}, s[64:65], {128*i}')
            if n == (U - 1 + RO) % CP + U:
                A(f's_add_u32 s64, s64, {NSM*128}')
                A('s_addc_u32 s65, s65, 0')
                A('s_mov_b32 s45, 0')
                st = 's0'
                if o['ms']:
                    A('s_sub_u32 s47, s44, s101')
                    A('s_max_i32 s47, s47, 0')
                    A('s_lshr_b32 s47, s47, 4')
                    A(f's_add_u32 s47, s47, {o["ms"]}')
                    A('s_sub_u32 s47, s0, s47')
                    st = 's47'
                for i in range(NSM):
                    A(f's_cmp_eq_u32 s{70+i}, -1')
                    A(f's_cselect_b32 s{70+i}, {st}, s{70+i}')
                    A(f's_add_u32 s45, s45, s{70+i}')
                if NSM == 8:
                    A('s_lshl_b32 s45, s45, 1')
                A('s_sub_u32 s44, s45, s86')
                A('s_mov_b32 s86, s45')
                A(f's_mul_i32 s1, s87, {CP // U}')
                A('s_sub_u32 s44, s44, s1')
                A(f's_min_i32 s44, s44, {16*o["CL"]}')
                A(f's_max_i32 s44, s44, {-16*o["CL"]}')
                A(f's_mul_hi_i32 s44, s44, {(2**32 * U // CP) >> o["sm"]}')
                A('s_add_u32 s44, s44, s87')
                A('s_sub_u32 s98, s98, 1')
                A('s_cselect_b32 s87, s44, s87')
                A('s_cselect_b32 s98, 0, s98')
                A(f's_mul_i32 s44, s87, {RO//U + 2}')
                A('s_add_u32 s100, s45, s44')

        def balance(n, last=False):
            if not bal:
                return
            if bal == 2:
                return balance2(n)
            if last and n - n % PB + ND >= 48:
                return
            n = n % PB
            if n == 0:
                A('s_memrealtime s[0:1]')
            if n == 1:
                l = self.lab('nopub')
                A('s_cmp_lg_u32 s92, 0')
                A(f's_cbranch_scc1 {l}')
                A('s_waitcnt lgkmcnt(0)')
                A('v_mov_b32 v59, s0')
                A('s_mov_b64 exec, 1')
                A('buffer_store_dword v59, v58, s[4:7], 0 offen sc1')
                A('s_mov_b64 exec, -1')
                A('v_add_u32 v58, 2048, v58')
                A(f'{l}:')
            if n == NR:
                for i in range(16):
                    A(f's_load_dword s{70+i}, s[64:65], {128*i}')
            if n == ND - 2:
                A('s_waitcnt lgkmcnt(0)')
                A('s_add_u32 s64, s64, 2048')
                A('s_addc_u32 s65, s65, 0')
                A(f's_add_u32 s1, s0, {int(NR*13.8)+40}')
                A('s_lshl_b32 s86, s0, 4')
            if n in (ND - 2, ND - 1):
                for i in range(8 * (n - ND + 2), 8 * (n - ND + 3)):
                    A(f's_cmp_eq_u32 s{70+i}, -1')
                    A(f's_cselect_b32 s{70+i}, s1, s{70+i}')
                    A(f's_sub_u32 s86, s86, s{70+i}')
            if n == ND - 1:
                A('s_add_i32 s44, s86, s101')
                A('s_max_i32 s44, s44, 0')
                A(f's_mul_hi_u32 s44, s44, {2**32 // (16*o["BG"])}')
                A(f's_lshr_b32 s45, s100, {NB - ND // U}')
                A('s_bcnt1_i32_b32 s45, s45')
                A('s_sub_i32 s44, s44, s45')
                A('s_max_i32 s44, s44, 0')
                A(f's_min_i32 s44, s44, {NB}')
                A('s_bfm_b32 s100, s44, 0')

        def ldsadd(v):
            A(f'v_mov_b32 v7, {v}')
            A('s_mov_b64 exec, 1')
            A(f'ds_add_u32 v63, v7 offset:{C_WK}')
            A('s_mov_b64 exec, -1')
        A('s_mov_b32 s99, 0')
        A('L_kloop:')
        A('s_cmp_lg_u32 s99, 3')
        A('s_cbranch_scc1 L_knosw')
        A(f's_add_u32 s14, s{sV}, s34')
        A(f's_addc_u32 s15, s{sV+1}, 0')
        A(f's_mov_b32 s97, {sum(x << (4*i) for i, x in enumerate(VORD if not o["xo"] else range(8)))}')
        nxt_slice()
        A('v_mov_b32 v40, v38')
        A('v_mov_b32 v41, v39')
        ldsadd(1)
        if o['p2']:
            A('s_setprio 2')
        A('L_knosw:')

        def extract(t):
            d = 8 + 4 * (t & 1)
            A(f'v_cndmask_b32 v2, v{d}, v{d+2}, s[16:17]')
            A(f'v_cndmask_b32 v3, v{d+1}, v{d+3}, s[16:17]')
            if t & 1:
                A(f'v_add_f32_dpp v2, v2, v3 quad_perm:[1,0,3,2] {DPPM}')
            else:
                A(f'v_add_f32_dpp v2, v3, v2 quad_perm:[1,0,3,2] {DPPM}')
            A(f'v_cndmask_b32 v36, v36, v2, {sp(18+2*t)}')

        def score(i):
            self.rbf('v36')
            A(f'v_mul_f32 v36, {SCALE}, v36')
            A('v_cvt_pk_bf16_f32 v36, v36, v36')
            if i == 0:
                for x in range(6):
                    A(f'v_mov_b32 v{S+x}, v{S+x+2}')
            A(f'v_lshlrev_b32 v{S+6+i}, 16, v36')
        for n in range(48):
            k = n % 24
            t, j = k // 3, k % 3
            d = 8 + 4 * (t & 1)
            if k == 0:
                A('s_waitcnt lgkmcnt(0)')
            A(f'v_mfma_f32_16x16x32_bf16 {vr(d,4)}, {vr(RING+4*n,4)}, {vr(Q+4*j,4)}, {"0" if j == 0 else vr(d,4)}')
            if t == 7:
                A(f'ds_read_b128 {vr(Q+4*j,4)}, v51 offset:{1024*j + 128*(n//24 + 1)}')
            wait(n)
            load(n)
            balance(n)
            if o['TB'] and n == 24 + ND - 1:
                A('s_cmp_eq_u32 s99, 3')
                A(f's_cselect_b32 s44, {o["TB"]}, 0')
                A('s_or_b32 s100, s100, s44')
            if j == 0 and n > 0:
                extract((t - 1) & 7)
                if n == 24:
                    score(0)
        extract(7)
        score(1)
        A('v_add_u32 v51, 256, v51')
        A('s_add_u32 s99, s99, 1')
        A('s_cmp_lt_u32 s99, 4')
        A('s_cbranch_scc1 L_kloop')
        self.stamp(3)
        T = 8

        def tree(op, d0, d1):
            for a in (0, 1, 4, 5):
                A(f'v_permlane32_swap_b32 v{T+a}, v{T+a+2}')
            for a in (0, 1, 4, 5):
                A(f'{op} v{T+a}, v{T+a}, v{T+a+2}')
            for a in (0, 4):
                A(f'v_permlane16_swap_b32 v{T+a}, v{T+a+1}')
            A(f'{op} v{d0}, v{T}, v{T+1}')
            A(f'{op} v{d1}, v{T+4}, v{T+5}')
            for m in self.ROW16:
                for d in (d0, d1):
                    A(f'{op}_dpp v{d}, v{d}, v{d} {m} {DPPM}')
        for i in range(8):
            A(f'v_mov_b32 v{T+i}, v{S+VORD[i]}')
        tree('v_max_f32', 46, 48)
        for i in range(8):
            A(f'v_readlane_b32 s{70+i}, v{46+2*(i>>2)}, {16*(i&3)}')
        for i in range(8):
            A(f'v_subrev_f32 v{T+i}, s{70+i}, v{S+VORD[i]}')
        for i in range(8):
            A(f'v_mul_f32 v{T+i}, {LOG2E}, v{T+i}')
        for i in range(8):
            A(f'v_exp_f32 v{T+i}, v{T+i}')
        for i in range(8):
            A(f'v_cvt_pk_bf16_f32 v{S+i}, v{T+i}, v{T+i}')
        if o['t0'] >= 2:
            A(f'v_mov_b32 v61, v{T+7}')
        tree('v_add_f32', 47, 49)
        A('s_mov_b32 exec_lo, 0x00010001')
        A('s_mov_b32 exec_hi, 0x00010001')
        A('ds_write_b64 v52, v[46:47]')
        A('ds_write_b64 v52, v[48:49] offset:128')
        A('s_mov_b64 exec, 1')
        A(f'ds_add_u32 v63, v55 offset:{C_KC}')
        A('s_mov_b64 exec, -1')
        A('s_waitcnt lgkmcnt(0)')

        def pv(c):
            t = (c % 24) // 3
            b = 8 + 4 * (t & 1)
            A(f'v_mov_b32_dpp v6, v{S+c//24} row_newbcast:{t} row_mask:0xf bank_mask:0x3')
            A(f'v_mov_b32_dpp v37, v{S+c//24} row_newbcast:{8+t} row_mask:0xf bank_mask:0xc')
            A('v_or_b32 v5, v6, v37')
            for w in range(4):
                A(f'v_and_b32 v{b+w}, v5, v{42+w}')

        def pm(c):
            t, j = (c % 24) // 3, c % 3
            b = 8 + 4 * (t & 1)
            A(f'v_mfma_f32_16x16x32_bf16 {vr(Q+4*j,4)}, {vr(RING+4*(c%48),4)}, {vr(b,4)}, {"0" if t == 0 else vr(Q+4*j,4)}')

        def flush():
            A('s_mov_b64 exec, s[94:95]')
            for j in range(3):
                A(f'ds_write_b128 v62, {vr(Q+4*j,4)} offset:{256*j}')
            A('s_mov_b64 exec, 1')
            A(f'ds_add_u32 v63, v60 offset:{C_IC}')
            A('s_mov_b64 exec, -1')
            A('v_add_u32 v62, 1536, v62')
            A('v_lshlrev_b32 v60, 4, v60')

        def factor(cnt='s99'):
            top, done = self.lab('rdy'), self.lab('rdyd')
            A(f's_lshl2_add_u32 s44, s3, {L_FL + 7*16}')
            A('v_mov_b32 v2, s44')
            A(f's_mov_b32 {cnt}, {SPIN*8}')
            A(f'{top}:')
            A(f'ds_read_b32 v1, v63 offset:{C_RDY}')
            A('ds_read_b32 v46, v2')
            A('s_waitcnt lgkmcnt(0)')
            A('v_readfirstlane_b32 s96, v1')
            A('s_cmp_lg_u32 s96, 0')
            A(f's_cbranch_scc1 {done}')
            A(f's_sub_u32 {cnt}, {cnt}, 1')
            A(f's_cbranch_scc0 {top}')
            A(f'{done}:')
        A('v_mov_b32 v6, 0')
        A('v_mov_b32 v37, 0')
        LAG = 9
        assert LAG > DX

        def consume(c):
            if c % 24 == 0 and c:
                flush()
            if c % 3 == 0:
                pv(c)
            pm(c)
        c = 0
        for n in range(48):
            while c < min(2 * n + 2, 49 + n - LAG):
                consume(c)
                c += 1
            wait(n)
            load(n)
            balance(n)
        assert c == 96 - LAG
        A('s_mov_b32 s99, 0')
        A('L_vloop:')
        for i in range(6):
            A(f'v_mov_b32 v{S+i}, v{S+i+2}')
        for n in range(48):
            consume(48 + n - LAG)
            wait(n)
            load(n)
            balance(n)
            if o['t0'] >= 2 and n == 24:
                A('s_cmp_eq_u32 s99, 0')
                A('s_cbranch_scc1 L_nofac')
                factor('s47')
                A('v_mul_f32 v61, v61, v46')
                A(f'v_cvt_pk_bf16_f32 v{S+3}, v61, v61')
                A('L_nofac:')
        if o['TV']:
            A(f's_sub_u32 s101, s101, {16*o["TV"]}')
        A('s_add_u32 s99, s99, 1')
        A('s_cmp_lt_u32 s99, 2')
        A('s_cbranch_scc1 L_vloop')
        ldsadd(16)
        if o['t0'] < 2:
            factor()
        self.stamp(4)
        nxt = (c + 2) // 3
        while c < 96:
            while nxt < 32 and nxt <= (c + 2) // 3:
                pv(3 * nxt)
                nxt += 1
            if 95 - c < DX:
                A(f's_waitcnt vmcnt({95-c})')
            pm(c)
            c += 1
        self.stamp(5)
        A('s_mov_b64 exec, s[94:95]')
        for j in range(3):
            for h in range(2 if o['t0'] < 2 else 0):
                A(f'v_pk_mul_f32 {vr(Q+4*j+2*h,2)}, {vr(Q+4*j+2*h,2)}, v[46:47] op_sel_hi:[1,0]')
            A(f'ds_write_b128 v62, {vr(Q+4*j,4)} offset:{256*j}')
        A('s_mov_b64 exec, 1')
        A('ds_add_rtn_u32 v1, v63, v55')
        A('s_mov_b32 exec_lo, -1')
        A('s_mov_b32 exec_hi, 0xffff')
        for w in range(4):
            for h in range(2):
                A(f'ds_read_b128 {vr(64+8*w+4*h,4)}, v56 offset:{12288*w + 768*h}')
        A('s_waitcnt lgkmcnt(0)' if o['stamps'] else 's_waitcnt lgkmcnt(8)')
        A('v_readfirstlane_b32 s44, v1')
        if not o['t0']:
            A('s_cmp_lg_u32 s44, 3')
            A('s_cbranch_scc1 L_end')
        for w in range(4):
            A(f's_waitcnt lgkmcnt({6-2*w})')
            self.pk('add', 64 + 8 * w, 64 + 8 * w, 68 + 8 * w, n=2)
            if w:
                self.pk('add', 64, 64, 64 + 8 * w, n=2)
            elif o['t0']:
                A('s_cmp_lg_u32 s44, 3')
                A('s_cbranch_scc1 L_end')
        self.pack(2, 64, 2)
        A('v_min_u32 v2, -2, v2')
        A('v_min_u32 v3, -2, v3')
        self.mode_store('buffer_store_dwordx2 v[2:3], v57, s[4:7], 0 offen', 's96')
        ldsadd(64)
        self.stamp(6)
        if o['diag']:
            dg = o['diag']
            A('s_waitcnt lgkmcnt(0)')
            A('s_cmp_lg_u32 s2, 200')
            A('s_cbranch_scc1 L_end')
            A(f's_sub_u32 s44, s{48+2*int(dg[1])}, s{48+2*int(dg[2])}')
            A(f's_mul_i32 s44, s44, {dg[3]}')
            A('s_add_u32 s44, s44, 10000')
            A('L_dg:')
            A('s_memrealtime s[46:47]')
            A('s_waitcnt lgkmcnt(0)')
            A('s_sub_u32 s46, s46, s48')
            A('s_cmp_lt_u32 s46, s44')
            A('s_cbranch_scc1 L_dg')
        self.dump_stamps(0)
        A('L_end:')
        A('s_endpgm')

    WR = 128

    def dma_addr(self, ptr, rowbase_s, stride, colb_s):
        A = self.A
        A(f's_mul_i32 s10, {rowbase_s}, {stride}')
        A(f's_add_u32 s10, s10, {colb_s}')
        A(f's_add_u32 s10, s{ptr}, s10')
        A(f's_addc_u32 s11, s{ptr+1}, 0')
        A(f'v_mul_u32_u24 v1, {stride}, v18')
        A('v_lshl_add_u32 v10, v19, 4, v1')
        A('v_xor_b32 v2, 4, v19')
        A('v_lshl_add_u32 v12, v2, 4, v1')
        A(f'v_add_u32 v12, {8*stride}, v12')
        A('v_mov_b32 v11, 0')
        A('v_mov_b32 v13, 0')
        A('v_lshl_add_u64 v[10:11], v[10:11], 0, s[10:11]')
        A('v_lshl_add_u64 v[12:13], v[12:13], 0, s[10:11]')

    def dma_issue(self, NS, stride, pol, DH, burst=0, cond=0, s0=0, jump=None, hold=0, mid=(0, None), nobar=None):
        A = self.A
        A(f's_mov_b32 s10, {16*stride}')
        A('s_mov_b32 s11, 0')
        self.stamp(4, 1)
        A(f's_add_u32 m0, s37, {4096*s0}')
        for i in range(4 * (NS - s0)):
            a = 10 + 2 * (i & 1)
            if i and i == mid[0]:
                mid[1]()
            if jump and i + 4 * s0 in (16, 17):
                A(f'v_lshl_add_u64 {vr(a,2)}, {vr(a,2)}, 0, {jump}')
            if i >= DH and i >= burst:
                if cond:
                    l = self.lab('np')
                    A(f's_cbranch_vccz {l}')
                A(f's_waitcnt vmcnt({DH-1})')
                if cond:
                    A(f'{l}:')
            A(f'global_load_lds_dwordx4 {vr(a,2)}, off {pol}')
            A('s_add_u32 m0, m0, 1024')
            A(f'v_lshl_add_u64 {vr(a,2)}, {vr(a,2)}, 0, s[10:11]')
            if self.o['hold'] and s0 == 0 and i + 1 == min(hold or self.o['hold'], 4 * NS):
                l = self.lab('nb')
                A(nobar or f's_cmp_lg_u32 s39, {L_RED}')
                A(f's_cbranch_scc1 {l}')
                A('s_barrier')
                A(f'{l}:')

    def tr_addr(self, worder):
        A = self.A
        A('v_bfe_u32 v1, v0, 2, 2')
        A('v_and_b32 v2, 3, v0')
        if worder == 2:
            A('v_lshl_add_u32 v3, v20, 2, v1')
            A('v_lshrrev_b32 v4, 1, v1')
            A('v_lshrrev_b32 v5, 1, v20')
        elif not worder:
            A('v_lshl_add_u32 v3, v20, 3, v1')
            A('v_lshrrev_b32 v4, 1, v1')
            A('v_and_b32 v5, 1, v20')
        else:
            A('v_lshlrev_b32 v3, 1, v20')
            A('v_lshl_add_u32 v3, v1, 3, v3')
            A('v_and_b32 v4, 1, v20')
            A('v_and_b32 v5, 1, v1')
        A('v_lshl_add_u32 v4, v5, 1, v4')
        A('v_lshlrev_b32 v3, 7, v3')
        A('v_lshl_add_u32 v3, v2, 3, v3')
        A('v_add_u32 v3, s37, v3')
        for ct in range(4):
            A(f'v_xor_b32 v5, {ct}, v4')
            A(f'v_lshl_add_u32 v{14+ct}, v5, 5, v3')

    def tr_read(self, NS, hfoff, extra=0, s0=0, WR=128):
        A = self.A
        self.stamp(1, 1)
        for s in range(s0, NS):
            A(f's_waitcnt vmcnt({4*(NS-1-s)+extra})')
            if s in (0, NS - 1):
                self.stamp(2 if s == 0 else 3, 1)
            for ct in range(4):
                for hf in range(2):
                    A(f'ds_read_b64_tr_b16 {vr(WR+16*s+4*ct+2*hf,2)}, v{14+ct} offset:{4096*s+hfoff*hf}')
        A('s_waitcnt lgkmcnt(0)')

    def dense_addr(self, dst, base, esz, k='v23'):
        A = self.A
        sh = 1 if esz == 2 else 2
        A(f'v_lshrrev_b32 v1, 6, {k}')
        A('v_lshl_add_u32 v1, v1, 1, v22')
        A('v_lshlrev_b32 v1, 6, v1')
        A(f'v_and_b32 v2, 63, {k}')
        A(f'v_add_lshl_u32 {dst}, v1, v2, {sh}')
        if base:
            A(f'v_add_u32 {dst}, {base}, {dst}')

    def mfma_std(self, act, NS=5, shadow=(), per=2):
        A = self.A
        shadow = list(shadow)
        for s in range(NS):
            cur = act if s == 0 else 112 + 4 * (s & 1)
            for ct in range(4):
                d = vr(96 + 4 * ct, 4)
                A(f'v_mfma_f32_16x16x32_bf16 {d}, {vr(self.WR+16*s+4*ct,4)}, {vr(cur,4)}, {"0" if s == 0 else d}')
                if s + 1 < NS and ct < 2:
                    for i in (2 * ct, 2 * ct + 1):
                        A(f'v_mov_b32_dpp v{112+4*((s+1)&1)+i}, v{act+i} row_shl:{2*(s+1)} {DPPM}')
                else:
                    for i in range(1 if s + 1 == NS and len(shadow) < 5 else per):
                        if shadow:
                            A(shadow.pop(0))
        for x in shadow:
            A(x)

    def red_addr(self):
        A = self.A
        A('s_lshl_b32 s10, s38, 9')
        A('s_add_u32 s10, s10, s39')
        A('v_lshlrev_b32 v1, 8, v22')
        A('v_lshl_add_u32 v1, v20, 4, v1')
        A('v_add_u32 v24, s10, v1')
        A('v_lshl_add_u32 v25, v0, 3, s39')
        A('s_lshr_b32 s10, s39, 9')
        A(f's_add_u32 s10, s10, {L_CNT + 4 - (L_RED >> 9)}')
        A('v_mov_b32 v26, s10')
        A('v_mov_b32 v27, 1')
        A('s_mov_b32 s45, 3')

    def arrive(self, notlast, reads=None, nreads=0, defer=False):
        A = self.A
        A('s_mov_b64 exec, 1')
        A('ds_add_rtn_u32 v1, v26, v27')
        A('s_mov_b64 exec, -1')
        if reads:
            reads()
        A(f's_waitcnt lgkmcnt({0 if self.o["stamps"] else nreads})')
        A('v_readfirstlane_b32 s8, v1')
        if not (defer and self.o['db']):
            self.lastonly(notlast)

    def lastonly(self, notlast, deferred=False):
        if deferred and not self.o['db']:
            return
        self.A('s_cmp_lg_u32 s8, s45')
        self.A(f's_cbranch_scc1 {notlast}')

    def probe(self):
        A = self.A
        if self.o['sel'] >= 0:
            return
        skip, top = self.lab('noprobe'), self.lab('probe')
        A('s_cmp_lg_u32 s38, 0')
        A(f's_cbranch_scc1 {skip}')
        A('s_lshr_b32 s10, s2, 6')
        A('s_lshl_b32 s10, s10, 14')
        A('s_and_b32 s11, s2, 63')
        A('s_lshl_b32 s11, s11, 7')
        A('s_add_u32 s10, s10, s11')
        A(f's_add_u32 s10, s10, {H_PRB}')
        A(f's_add_u32 s10, s{sWS}, s10')
        A(f's_addc_u32 s11, s{sWS+1}, 0')
        A('s_mov_b32 s12, -1')
        A('s_mov_b32 s13, -1')
        A(f's_mov_b32 s9, {self.o["NP"]}')
        A(f'{top}:')
        for c in range(2):
            A('s_memtime s[32:33]')
            A('s_waitcnt lgkmcnt(0)')
            A(f's_load_dword s8, s[10:11], {8192*c} glc')
            A('s_waitcnt lgkmcnt(0)')
            A('s_memtime s[34:35]')
            A('s_waitcnt lgkmcnt(0)')
            A('s_sub_u32 s8, s34, s32')
            A(f's_min_u32 s{12+c}, s{12+c}, s8')
        A('s_sub_u32 s9, s9, 1')
        A('s_cmp_lg_u32 s9, 0')
        A(f's_cbranch_scc1 {top}')
        A('s_cmp_lt_u32 s13, s12')
        A('s_cselect_b32 s8, 8192, 0')
        A(f'v_mov_b32 v1, {L_CNT+16}')
        A('v_mov_b32 v2, s8')
        A('ds_write_b32 v1, v2')
        A(f'{skip}:')

    def get_sel(self):
        A = self.A
        if self.o['sel'] >= 0:
            A(f's_mov_b32 s47, {8192*self.o["sel"]}')
            return
        A(f'v_mov_b32 v1, {L_CNT+16}')
        A('ds_read_b32 v1, v1')
        A('s_waitcnt lgkmcnt(0)')
        A('v_readfirstlane_b32 s47, v1')
        A('s_and_b32 s47, s47, 8192')
        if self.o['stamps']:
            A('s_mov_b32 s60, s47')

    def wake(self, level, add=True, both=True, sleep=None):
        A = self.A
        top, done = self.lab('wake'), self.lab('awake')
        A(f'v_mov_b32 v1, {L_CNT+24}')
        if add:
            A('v_mov_b32 v2, 1')
            A('s_mov_b64 exec, 1')
            A('ds_add_u32 v1, v2')
            A('s_mov_b64 exec, -1')
        A(f's_mov_b32 s9, {SPIN*8}')
        A(f'{top}:')
        A('ds_read_b64 v[2:3], v1')
        A('s_waitcnt lgkmcnt(0)')
        if both:
            A('v_lshrrev_b32 v2, 2, v2')
            A('v_mul_u32_u24 v3, v2, v3')
        A(f'v_cmp_gt_u32 vcc, {level}, v3')
        A(f's_cbranch_vccz {done}')
        A(f's_sleep {sleep or self.o["wks"]}')
        A('s_sub_u32 s9, s9, 1')
        A(f's_cbranch_scc0 {top}')
        A(f'{done}:')

    def midwait(self):
        if self.o['p2']:
            self.A('s_setprio 0')
        self.wake(1, add=False, both=False, sleep=16)
        self.flags_addr('v8', True)
        self.flags_wait('v8', 'v9')

    def tail_begin(self, name):
        A = self.A
        A('s_mov_b32 s46, 8192')
        self.stamp(1)
        A('s_mov_b32 s6, 0')
        A('s_mov_b32 s30, 0')
        A('s_mov_b32 s45, 0')
        A('v_mov_b32 v27, 0')
        A(f'{name}:')
        self.stamp(2)

    def hbar(self, sleep=0):
        A = self.A
        top, done = self.lab('hbar'), self.lab('hbard')
        A(f'v_mov_b32 v1, {L_CNT+12}')
        A('v_mov_b32 v2, 1')
        A('s_mov_b64 exec, 1')
        A('ds_add_u32 v1, v2')
        A('s_mov_b64 exec, -1')
        A(f's_mov_b32 s9, {SPIN*8}')
        A(f'{top}:')
        A('ds_read_b32 v2, v1')
        A('s_waitcnt lgkmcnt(0)')
        A('v_cmp_ne_u32 vcc, 4, v2')
        A(f's_cbranch_vccz {done}')
        if sleep:
            A(f's_sleep {sleep}')
        A('s_sub_u32 s9, s9, 1')
        A(f's_cbranch_scc0 {top}')
        A(f'{done}:')

    def merge_call(self, ty):
        A = self.A
        A(f's_mov_b32 s24, {ty}')
        A('s_cmp_eq_u32 s38, 3')
        A('s_cbranch_scc1 L_merge')
        A(f'L_back{ty}:')

    def tail_end(self, name, ty, level, late=None, llevel=128):
        A = self.A
        l = self.lab('real')
        A('s_cmp_lg_u32 s45, 0')
        A(f's_cbranch_scc1 {l}')
        A('s_mov_b64 exec, -1')
        A(f's_mov_b32 s6, {H_END}')
        A('s_mov_b32 s30, 2560')
        A('s_mov_b32 s45, 3')
        A('v_mov_b32 v27, 1')
        A('s_waitcnt vmcnt(0)')
        self.merge_call(ty)
        if late:
            self.wake(llevel)
            self.stamp(1)
            late()
        else:
            self.wake(level)
        A(f's_branch {name}')
        A(f'{l}:')
        self.dump_stamps(0x20000)
        A('s_endpgm')

    def red_write_std(self, nt=4, off=0):
        A = self.A
        A('s_mov_b32 exec_lo, 0x00030003')
        A('s_mov_b32 exec_hi, 0x00030003')
        for ct in range(nt):
            A(f'ds_write_b128 v24, {vr(96+4*ct,4)} offset:{64*ct+off}')

    def red_read(self, dst, addr='v25', off=0):
        A = self.A
        for w in range(4):
            A(f'ds_read_b64 {vr(dst+2*w,2)}, {addr} offset:{512*w+off}')

    def red_sum(self, dst):
        self.pk('add', dst, dst, dst + 4, n=2)
        self.pk('add', dst, dst, dst + 2, n=1)

    def publish_bf16(self, base):
        A = self.A
        self.red_read(96)
        A('s_lshl_b32 s10, s40, 8')
        A(f's_add_u32 s10, s10, {base}')
        A('v_lshl_add_u32 v1, v0, 2, s10')
        A('s_waitcnt lgkmcnt(0)')
        self.red_sum(96)
        A('v_cvt_pk_bf16_f32 v2, v96, v97')
        A('v_min_u32 v2, -2, v2')
        A('buffer_store_dword v2, v1, s[4:7], 0 offen sc1')
        A('s_mov_b64 exec, 1')
        A('ds_add_u32 v26, v27')
        A('s_mov_b64 exec, -1')

    def ln_scalars(self, mean, var):
        A = self.A
        A(f'v_cvt_pk_bf16_f32 v1, {mean}, {var}')
        A(f'v_and_b32 {var}, 0xffff0000, v1')
        A(f'v_add_f32 {var}, {f2u(1e-5)}, {var}')
        self.rbf(var)
        A(f'v_sqrt_f32 {var}, {var}')
        A(f'v_lshlrev_b32 {mean}, 16, v1')
        self.rbf(var)
        A(f'v_rcp_f32 {var}, {var}')

    def helper(self):
        A = self.A
        A('L_helper:')
        if self.o['ec']:
            A(f's_setprio {self.o["prio"]}')
            A('s_lshl_b32 s10, s3, 8')
            A('s_add_u32 s10, s10, s2')
            A('s_sub_u32 s10, s10, 1024')
            A('s_cmp_lt_u32 s10, 40')
            A('s_cbranch_scc1 L_clear')
            A('L_help2:')
        A('s_getpc_b64 s[92:93]')
        A('L_pc:')
        A('s_lshr_b32 s8, s2, 3')
        A('s_lshl2_add_u32 s8, s8, s3')
        A(f's_lshl_b32 s8, s8, {6 if self.o["pf"] > 2 else 7}')
        for i in range(self.o['pf']):
            if i:
                A(f's_add_u32 s8, s8, {8192 if self.o["pf"] > 2 else 16384}')
                A('s_min_u32 s8, s8, L_tab-L_pc')
            A('s_load_dword s9, s[92:93], s8')
        A('s_add_u32 s92, s92, L_tab-L_pc')
        A('s_addc_u32 s93, s93, 0')
        A('s_lshl_b32 s8, s2, 2')
        A('s_load_dword s36, s[92:93], s8')
        A(f's_setprio {self.o["prio"]}')
        A('s_sub_u32 s38, s3, 4')
        A('s_mul_i32 s37, s38, 24576')
        A(f's_mov_b32 s39, {L_RED}')
        A(f'v_mov_b32 v1, {L_CNT}')
        A('v_mov_b32 v2, 0')
        A('v_mov_b32 v3, 0')
        A('ds_write_b64 v1, v[2:3]')
        for o in (8, 16, 24, 32, 40):
            A(f'ds_write_b64 v1, v[2:3] offset:{o}')
        A('v_lshrrev_b32 v18, 3, v0')
        A('v_lshrrev_b32 v20, 4, v0')
        A('v_and_b32 v1, 1, v20')
        A('v_lshlrev_b32 v1, 1, v1')
        A('v_and_b32 v2, 7, v0')
        A('v_xor_b32 v19, v1, v2')
        A('v_and_b32 v22, 1, v0')
        A('v_bfe_u32 v1, v0, 1, 3')
        A('v_min_u32 v1, 4, v1')
        A('v_lshlrev_b32 v1, 5, v1')
        A('v_lshl_add_u32 v21, v20, 3, v1')
        A('s_mul_i32 s41, s38, 160')
        A('v_add_u32 v23, s41, v21')
        A('s_mov_b32 s16, 0x03ff03ff')
        A('s_mov_b32 s17, 0x03ff03ff')
        A('s_waitcnt lgkmcnt(0)')
        if not self.o['hold']:
            A('s_barrier')
        self.ws_srd()
        if not self.o['ec']:
            A('s_bitcmp1_b32 s36, 28')
            A('s_cbranch_scc1 L_clear')
        A('L_job:')
        A('s_and_b32 s10, s36, 15')
        A('s_bfe_u32 s40, s36, 0x80004')
        A('s_lshr_b32 s36, s36, 12')
        A('s_and_b32 s36, s36, 0xfff')
        for ty, l in ((T_M, 'L_M'), (T_Q, 'L_Q'), (T_W, 'L_W'), (T_F, 'L_F'), (T_D, 'L_D')):
            A(f's_cmp_eq_u32 s10, {ty}')
            A(f's_cbranch_scc1 {l}')
        A('s_branch L_idle')
        A('L_next:')
        if self.o['pw']:
            A('s_cmp_eq_u32 s36, 0')
            A('s_cbranch_scc1 L_idle')
            self.lwait(4, lambda: A('s_cmp_ge_u32 s8, 5'), 2)
        A('s_add_u32 s39, s39, 2048')
        A('s_branch L_job')
        A('L_clear:')
        if self.o['ec']:
            A('s_waitcnt lgkmcnt(0)')
            self.ws_srd()
        else:
            A('s_bfe_u32 s10, s36, 0x40018')
            A('s_lshl2_add_u32 s10, s10, s38')
        for i in range(4):
            A(f'v_mov_b32 v{4+i}, -1')
        A('s_mov_b32 s11, 4096')
        A('s_cmp_ge_u32 s10, 8')
        A('s_cbranch_scc1 L_clrB')
        A('s_mul_i32 s12, s10, 5120')
        A('v_lshl_add_u32 v1, v0, 4, s12')
        for k in range(0 if self.o['xc'] & 1 else 5):
            A(f'buffer_store_dwordx4 v[4:7], v1, s[4:7], {"s11" if k >= 4 else "0"} offen offset:{1024*(k&3)} sc1')
        A('s_branch L_clrF')
        A('L_clrB:')
        assert H_TS == 8 * 5120 and H_CLR - H_TS <= 12 * 32768
        A('s_add_u32 s12, s10, 32')
        A('s_lshl_b32 s12, s12, 10')
        A('v_lshl_add_u32 v1, v0, 4, s12')
        A(f's_mov_b32 s6, {H_END if self.o["ca"] else H_CLR}')
        used = lambda kb: not (H_X2 <= kb * 1024 < H_OP) or (kb & 7) < (3 if kb * 1024 < H_ACT else 6 if kb * 1024 < H_Y else 5)
        for i in range(30 if self.o['ca'] else 1 if self.o['xc'] & 2 else 12):
            m = sum(used(40 + 32 * i + c) << c for c in range(32))
            if self.o['cs'] and m != 0xffffffff:
                l = self.lab('nc')
                A('s_sub_u32 s12, s10, 8')
                A(f's_bitcmp1_b32 {m}, s12')
                A(f's_cbranch_scc0 {l}')
                A('buffer_store_dwordx4 v[4:7], v1, s[4:7], 0 offen sc1')
                A(f'{l}:')
            else:
                A('buffer_store_dwordx4 v[4:7], v1, s[4:7], 0 offen sc1')
            A('v_add_u32 v1, 32768, v1')
        A('s_add_u32 s10, s10, 24')
        A(f's_mov_b32 s6, {H_END}')
        A('L_clrF:')
        A('s_lshl_b32 s10, s10, 2')
        A('v_mov_b32 v1, s10')
        A('s_waitcnt vmcnt(0)')
        A('s_mov_b64 exec, 1')
        A(f'global_store_dword v1, v4, {sp(sDBG)} sc1')
        A('s_mov_b64 exec, -1')
        A('s_branch L_help2' if self.o['ec'] else 's_branch L_job')

        A('L_M:')
        A('v_mul_u32_u24 v1, 640, v22')
        A('v_add_lshl_u32 v1, v1, v23, 1')
        A(f'global_load_dwordx4 v[28:31], v1, {sp(sC)}')
        A('s_lshl_b32 s12, s40, 7')
        self.dma_addr(sWM, 's41', 7680, 's12')
        A(f's_cmp_lg_u32 s39, {L_RED}')
        A('s_cselect_b64 vcc, -1, 0')
        self.dma_issue(5, 7680, 'nt', self.o['DM2'], cond=1, nobar='s_cmp_lt_u32 s40, 20' if self.o['mh'] else None)
        self.tr_addr(False)
        self.red_addr()
        A('s_waitcnt vmcnt(20)')
        self.unpack(32, 28, 4)
        for i in range(8):
            self.silu(f'v{32+i}', 'v4', 'v5')
        self.pack(28, 32, 4)
        self.flags_addr('v8', False)
        A(f'global_load_dword v9, v8, {sp(sDBG)} sc1')
        self.tr_read(5, 512, extra=1)
        self.stamp(1)
        self.mfma_std(28)
        self.red_write_std()
        self.arrive('L_Mdone')
        ok = self.lab('fok')
        A('s_waitcnt vmcnt(0)')
        A('v_cmp_eq_u32 vcc, 0, v9')
        A(f's_cbranch_vccz {ok}')
        self.flags_wait('v8', 'v9')
        A(f'{ok}:')
        self.publish_bf16(H_MOD)
        if self.o['stamps']:
            self.stamp(2)
            A('s_cmp_lt_u32 s40, 20')
            A('s_cbranch_scc0 L_next')
            self.dump_stamps(0x10000)
            A('s_mov_b64 exec, -1')
        A('L_Mdone:')
        if self.o['mh']:
            assert JT == 5 and self.o['hold']
            A('s_cmp_lt_u32 s40, 20')
            A('s_cbranch_scc0 L_next')
            A('s_barrier')
        A('s_branch L_next')

        A('L_Q:')
        xl = self.o['xl']

        def xload():
            A('v_mul_u32_u24 v1, 640, v22')
            A('v_add_lshl_u32 v2, v1, v23, 1')
            A('v_add_lshl_u32 v1, v1, v21, 1')
            A(f'global_load_dwordx4 v[28:31], v2, {sp(sX)}')
            for w in range(4):
                A(f'global_load_dwordx4 {vr(32+4*w,4)}, v1, {sp(sX)} offset:{320*w}')
        if not xl:
            xload()
        A('s_lshl_b32 s12, s40, 7')
        self.dma_addr(sWQ, 's41', 12288, 's12')
        self.dma_issue(5, 12288, 'nt', self.o['DQ'], mid=(xl, xload))
        self.tr_addr(False)
        self.red_addr()
        A(f's_waitcnt vmcnt({20-xl})')
        self.unpack(48, 32, 16)
        self.unpack(32, 28, 4)
        self.pk('add', 80, 48, 64, n=8)
        self.pk('add', 80, 80, 88, n=4)
        self.pk('add', 80, 80, 84, n=2)
        self.pk('add', 80, 80, 82, n=1)
        A('v_add_f32 v6, v80, v81')
        A('v_cndmask_b32 v6, 0, v6, s[16:17]')
        self.rowred('v_add_f32', 'v6', self.ROWPAR)
        self.xrow('v_add_f32', 'v6', 'v1')
        A(f'v_mul_f32 v6, {f2u(1/640)}, v6')
        A('v_mov_b32 v8, 0')
        for i in range(32):
            A(f'v_sub_f32 v1, v{48+i}, v6')
            A('v_fmac_f32 v8, v1, v1')
        A('v_cndmask_b32 v8, 0, v8, s[16:17]')
        self.rowred('v_add_f32', 'v8', self.ROWPAR)
        self.xrow('v_add_f32', 'v8', 'v1')
        A(f'v_mul_f32 v8, {f2u(1/640)}, v8')
        self.ln_scalars('v6', 'v8')
        self.pk('add', 32, 32, 6, bstep=0, mods='op_sel_hi:[1,0] neg_lo:[0,1] neg_hi:[0,1]')
        self.rbf8(32, 28)
        self.pk('mul', 32, 32, 8, bstep=0, mods='op_sel_hi:[1,0]')
        self.rbf8(32, 28)
        self.flags_addr('v8', False)
        A(f'global_load_dword v9, v8, {sp(sDBG)} sc1')
        self.tr_read(5, 512, extra=1)
        ok = self.lab('fok')
        A('s_waitcnt vmcnt(0)')
        A('v_cmp_eq_u32 vcc, 0, v9')
        A(f's_cbranch_vccz {ok}')
        self.flags_wait('v8', 'v9')
        A(f'{ok}:')
        self.dense_addr('v8', H_MOD, 2)
        self.stamp(1)
        if self.o['NG']:
            if self.o['g3']:
                A('s_and_b32 s10, s40, 7')
                A('s_cmp_eq_u32 s10, 3')
                A('s_cbranch_scc1 L_Qgo')
            self.lwait(20, lambda: A(f's_cmp_ge_u32 s8, {self.o["gc"]}'), 4)
            A('L_Qgo:')

        def ld():
            A('buffer_load_dwordx4 v[40:43], v8, s[4:7], 0 offen sc1')
            A('buffer_load_dwordx4 v[44:47], v8, s[4:7], 0 offen offset:2560 sc1')
        if self.o['pp']:
            for r in range(40, 48):
                A(f'v_mov_b32 v{r}, -1')
            self.poll(ld, range(40, 48), 'v1', mask=True, sleep=self.o['psl'], fly=2 * self.o['pp'])
        else:
            self.poll(ld, range(40, 48), 'v1', mask=True, sleep=self.o['qsl'])
        self.stamp(2)
        self.unpack(56, 44, 4)
        for i in range(4):
            A(f'v_pk_add_f32 {vr(56+2*i,2)}, {vr(56+2*i,2)}, 1.0 op_sel_hi:[1,0]')
        self.rbf8(56, 28)
        self.pk('mul', 32, 32, 56)
        self.rbf8(32, 28)
        self.unpack(48, 40, 4)
        self.pk('add', 32, 32, 48)
        self.pack(28, 32, 4)
        self.mfma_std(28)
        self.red_write_std()
        self.arrive('L_next')
        self.publish_bf16(H_Q)
        if self.o['stamps']:
            self.stamp(3)
            self.dump_stamps(0x10000)
            A('s_mov_b64 exec, -1')
        A('s_branch L_next')

        A('L_W:')
        EF, ED = self.o['EF'], self.o['ED']
        WP, WS = 64, 160
        A('s_and_b32 s42, s40, 7')
        A('s_lshr_b32 s43, s40, 3')
        A('s_sub_u32 s13, 3, s38')
        A('s_lshl3_add_u32 s13, s13, s42')
        A('s_mul_i32 s13, s13, 192')
        A('s_lshl_b32 s12, s43, 7')
        self.dma_addr(sWO, 's13', 1280, 's12')
        A(f's_cmp_lg_u32 s39, {L_RED}')
        A('s_cselect_b64 vcc, -1, 0')
        self.dma_issue(6, 1280, 'nt', self.o['DW2'], cond=1)
        self.tr_addr(1)
        self.red_addr()
        A('s_mul_i32 s10, s42, 12288')
        A(f's_add_u32 s10, s10, {H_OP}')
        A('v_bfe_u32 v1, v0, 1, 3')
        A('v_mul_u32_u24 v1, 384, v1')
        A('v_lshl_add_u32 v1, v22, 4, v1')
        A('v_lshl_add_u32 v1, v20, 5, v1')
        A('v_add_u32 v28, s10, v1')
        A('s_lshl_b32 s10, s38, 9')
        A('s_add_u32 s10, s10, s39')
        A('v_lshl_add_u32 v24, v0, 2, s10')
        A('s_lshr_b32 s10, s42, 1')
        A('s_lshl_b32 s10, s10, 14')
        A('s_and_b32 s11, s42, 1')
        A('s_mul_i32 s11, s11, 2560')
        A('s_add_u32 s10, s10, s11')
        A('s_lshl_b32 s11, s43, 8')
        A('s_add_u32 s10, s10, s11')
        A(f's_add_u32 s10, s10, {H_Y}')
        A('v_bfe_u32 v1, v0, 2, 2')
        A('v_bfe_u32 v3, v0, 4, 1')
        A('v_lshl_add_u32 v1, v1, 1, v3')
        A('v_lshrrev_b32 v3, 5, v0')
        A('v_lshl_add_u32 v1, v1, 1, v3')
        A('v_and_b32 v3, 3, v0')
        A('v_lshl_add_u32 v1, v1, 2, v3')
        A('v_lshl_add_u32 v29, v1, 2, s10')
        A('s_lshl_b32 s10, s42, 10')
        A(f's_add_u32 s10, s10, {H_FLG}')
        A('v_and_b32 v1, 31, v0')
        A('v_lshl_add_u32 v30, v1, 2, s10')
        self.tr_read(6, 128, WR=WP)
        self.hbar(sleep=8)
        AF = 8
        dq = lambda ct, p: 32 + 8 * ct + 4 * p

        def post(ct):
            d = 32 + 8 * ct
            r = [f'v_add_f32 v{d}, v{d}, v{d+2}', f'v_add_f32 v{d+5}, v{d+5}, v{d+7}', f'v_add_f32 v{d}, v{d}, v{d+5}']
            if ct & 1:
                r += [f'v_permlane16_swap_b32 v{d-8}, v{d}', f'v_add_f32 v{d}, v{d-8}, v{d}']
            return r
        A('s_mov_b32 s46, 8192')
        A('s_mov_b32 s6, 0')
        A('s_mov_b32 s45, 0')
        A('s_mov_b32 s44, 0')
        A('s_mov_b32 s47, 0')
        A('v_mov_b32 v27, 0')
        A('L_Wt:')
        self.stamp(2)

        def mf(ct, s):
            d = vr(dq(ct, s & 1), 4)
            return f'v_mfma_f32_16x16x32_bf16 {d}, {vr(AF+4*(s>>1),4)}, {vr(WS+16*s+4*ct,4)}, {"0" if s < 2 else d}'
        self.spoll([(f'buffer_load_dwordx4 {vr(AF+4*u,4)}, v28, s[4:7], s47 offen offset:{128*u} sc1', AF + 4 * u) for u in range(3)],
                   [[mf(0, 2 * u), mf(0, 2 * u + 1)] for u in range(3)])
        self.stamp(3)
        sh = []
        for ct in range(1, 4):
            for s in range(6):
                A(mf(ct, s))
                if s == 1 and ct >= 2:
                    sh += post(ct - 2)
                if sh:
                    A(sh.pop(0))
        for x in sh + post(2) + post(3):
            A(x)
        A(f's_sub_u32 s47, s47, {OPI}')
        A('s_sub_u32 s44, s44, 1')
        A('v_permlane32_swap_b32 v40, v56')
        A('v_add_f32 v40, v40, v56')
        A('v_add_f32 v40, v40, v4')
        A('ds_write_b32 v24, v40')
        A('v_mov_b32 v4, v5')
        A('v_subrev_u32 v24, 256, v24')
        A('s_cbranch_scc0 L_Wt2')
        self.arrive('L_end', lambda: self.red_read(AF), 4, True)
        A('s_waitcnt lgkmcnt(0)')
        self.red_sum(AF)
        self.lastonly('L_end', True)
        A(f'v_cvt_pk_bf16_f32 v2, v{AF}, v{AF+1}')
        A('v_min_u32 v2, -2, v2')
        A('buffer_store_dword v2, v29, s[4:7], 0 offen sc1')
        A('buffer_store_dword v2, v29, s[4:7], s46 offen sc1')
        self.stamp(4)
        A('s_cmp_lg_u32 s45, 0')
        A('s_cbranch_scc1 L_Wend')
        A(f's_mov_b32 s6, {H_END}')
        A('s_mov_b32 s45, 3')
        A('v_mov_b32 v27, 1')
        A('v_add_u32 v24, 512, v24')
        A('v_mov_b32 v4, 0')
        A('v_mov_b32 v5, 0')
        self.midwait()
        self.merge_call(T_W)
        A('s_cmp_eq_u32 s38, 3')
        A('s_cbranch_scc1 L_Wsh')
        if self.o['xg']:
            A('s_branch L_Wsh')
        A('s_mov_b32 s44, s38')
        A('L_Wp:')
        A('s_lshl2_add_u32 s12, s44, 2')
        self.item_wait('s12')
        self.stamp(1, 3)
        if self.o['fs0']:
            A(f's_sleep {self.o["fs0"]}')
        A('s_lshl_b32 s12, s44, 7')
        if self.o['xf'] != 1:
            self.poll(lambda: A('buffer_load_dword v2, v30, s[4:7], s12 offen sc1'), [2], 'v1', sleep=self.o['fsl'])
        self.stamp(2, 3)
        if self.o['xf'] == 2:
            A('s_mov_b32 s6, 0')
        A('s_sub_u32 s47, 7, s44')
        A(f's_mul_i32 s20, s47, {OPI}')
        for r in range(1, 4):
            A(f's_add_u32 s{20+r}, s20, {3072*r}')
        NB = 12
        pl = lambda i: A(f'buffer_load_dwordx4 {vr(WS+4*(i%NB),4)}, v28, s[4:7], s{20+i//3} offen offset:{128*(i%3)} sc1')
        for i in range(NB):
            pl(i)
        for i in range(12):
            A(f's_waitcnt vmcnt({min(NB-1, 11-i)})')
            for ct in range(4):
                for p in range(2):
                    d = vr(dq(ct, p), 4)
                    A(f'v_mfma_f32_16x16x32_bf16 {d}, {vr(WS+4*(i%NB),4)}, {vr(WP+16*(2*(i%3)+p)+4*ct,4)}, {"0" if i == 0 else d}')
            if i + NB < 12:
                pl(i + NB)
        for ct in range(4):
            for x in post(ct):
                A(x)
        A('v_permlane32_swap_b32 v40, v56')
        A('v_mov_b32 v4, v5')
        A('v_add_f32 v5, v40, v56')
        A(f's_mov_b32 s6, {H_END}')
        A('s_add_u32 s44, s44, 3')
        A('s_cmp_lt_u32 s44, 6')
        A('s_cbranch_scc1 L_Wp')
        if self.o['stamps'] == 3:
            self.stamp(3, 3)
            A('s_cmp_lg_u32 s38, 2')
            A('s_cbranch_scc1 L_Wsh')
            self.dump_stamps(0x10000)
            A('s_mov_b64 exec, -1')
        A('L_Wsh:')
        A('v_mov_b32 v6, v4')
        A('v_mov_b32 v7, v5')
        A(f's_mov_b32 s37, {3*24576}')
        self.tr_addr(1)
        self.tr_read(6, 128, WR=WS)
        A('v_mov_b32 v4, v6')
        A('v_mov_b32 v5, v7')
        self.stamp(1)
        self.wake(self.o['WL'])
        A('s_mul_i32 s47, s38, 3072')
        A(f's_add_u32 s47, s47, {OPI}')
        A('s_mov_b32 s44, 1')
        A('s_branch L_Wt')
        A('L_Wt2:')
        if self.o['w2']:
            self.wake(128, add=False, both=False, sleep=self.o['w2'])
        A('s_branch L_Wt')
        A('L_Wend:')
        self.dump_stamps(0x20000)
        A('s_endpgm')

        A('L_idle:')
        A('s_cmp_lg_u32 s38, 3')
        A('s_cbranch_scc1 L_end')
        self.midwait()
        A('s_mov_b32 s24, 0')
        A('L_merge:')
        if self.o['pt'] == 1:
            A('s_and_b32 s10, s2, 7')
            A('s_lshr_b32 s11, s2, 3')
            A('s_lshl_b32 s10, s10, 5')
            A('s_add_u32 s10, s10, s11')
            A('s_mul_i32 s10, s10, 384')
            A(f's_add_u32 s10, s{sWS}, s10')
            A(f's_addc_u32 s11, s{sWS+1}, 0')
            for j in range(2, 8):
                for k in range(3):
                    A(f's_load_dword s8, s[10:11], {H_OP + j*OPI + 128*k}')
                A('s_waitcnt lgkmcnt(0)')
        self.lwait(C_KC, lambda: A('s_cmp_eq_u32 s8, 4'), 8)
        A('v_and_b32 v96, 31, v0')
        A('v_lshlrev_b32 v1, 3, v96')
        A(f'v_add_u32 v1, {L_MLL}, v1')
        A('ds_read_b64 v[98:99], v1')
        A('s_and_b32 s34, s2, 7')
        A('s_lshr_b32 s35, s2, 3')
        A('s_lshl_b32 s10, s34, 12')
        A(f's_add_u32 s10, s10, {H_ML}')
        A('v_lshrrev_b32 v1, 1, v0')
        A('v_lshlrev_b32 v1, 7, v1')
        A('v_add_u32 v97, s10, v1')
        A('s_lshl_b32 s11, s35, 7')
        A('s_add_u32 s10, s10, s11')
        A('v_lshl_add_u32 v1, v0, 1, s10')
        A('s_getreg_b32 s32, hwreg(HW_REG_XCC_ID, 0, 4)')
        A('s_waitcnt lgkmcnt(0)')
        A('v_mov_b32 v100, v98')
        self.rowred('v_max_f32', 'v100', self.ROW16[:2])
        A('v_sub_f32 v101, v98, v100')
        A(f'v_mul_f32 v101, {LOG2E}, v101')
        A('v_exp_f32 v101, v101')
        A('v_mul_f32 v101, v101, v99')
        self.rowred('v_add_f32', 'v101', self.ROW16[:2])
        A('v_min_u32 v100, -2, v100')
        A('v_min_u32 v101, -2, v101')
        A('v_writelane_b32 v100, s32, 32')
        A('s_mov_b32 exec_lo, 0x11111111')
        A('s_mov_b32 exec_hi, 1')
        A('buffer_store_dwordx2 v[100:101], v1, s[4:7], 0 offen sc1')
        A('s_mov_b64 exec, -1')
        self.item_wait(2 + 4 * self.o['gw'])
        A('v_and_b32 v1, 1, v0')
        A('v_lshl_add_u32 v3, v1, 5, v97')

        def ld():
            A('buffer_load_dwordx4 v[48:51], v3, s[4:7], 0 offen sc1')
            A('buffer_load_dwordx4 v[52:55], v3, s[4:7], 0 offen offset:16 sc1')
            A('buffer_load_dword v56, v97, s[4:7], 0 offen offset:64 sc1')
        self.poll(ld, range(48, 57), 'v1', sleep=self.o['fsl'], mask=True)
        A('v_cmp_ne_u32 vcc, s32, v56')
        A('s_cmp_eq_u64 vcc, 0')
        A(f's_cselect_b32 s32, {2 if self.o["fast"] else 1}, 1')
        for i in range(4):
            A(f'v_mov_b32 v{64+2*i}, v{48+2*i}')

        def par(op, off):
            for m in self.ROWPAR:
                for i in range(4):
                    A(f'{op}_dpp v{off+2*i}, v{off+2*i}, v{off+2*i} {m} {DPPM}')
            for sw in ('v_permlane16_swap_b32', 'v_permlane32_swap_b32'):
                for i in range(4):
                    A(f'v_mov_b32 v{72+i}, v{off+2*i}')
                for i in range(4):
                    A(f'{sw} v{off+2*i}, v{72+i}')
                for i in range(4):
                    A(f'{op} v{off+2*i}, v{off+2*i}, v{72+i}')
        par('v_max_f32', 64)
        for i in range(4):
            A(f'v_sub_f32 v{48+2*i}, v{48+2*i}, v{64+2*i}')
            A(f'v_mul_f32 v{48+2*i}, {LOG2E}, v{48+2*i}')
            A(f'v_exp_f32 v{48+2*i}, v{48+2*i}')
            A(f'v_mul_f32 v{65+2*i}, v{48+2*i}, v{49+2*i}')
        par('v_add_f32', 65)
        A('v_lshlrev_b32 v1, 5, v0')
        A(f'v_add_u32 v1, {L_GL}, v1')
        A('s_mov_b64 exec, 3')
        A('ds_write_b128 v1, v[64:67]')
        A('ds_write_b128 v1, v[68:71] offset:16')
        A('s_mov_b64 exec, -1')
        A('v_lshrrev_b32 v1, 2, v96')
        A('v_lshlrev_b32 v1, 3, v1')
        A(f'v_add_u32 v1, {L_GL}, v1')
        A('ds_read_b64 v[100:101], v1')
        A('v_lshlrev_b32 v1, 2, v96')
        A(f'v_add_u32 v1, {L_FL}, v1')
        A(f'v_mov_b32 v2, {L_CNT}')
        A('v_mov_b32 v3, s32')
        A('s_waitcnt lgkmcnt(0)')
        A('v_sub_f32 v98, v98, v100')
        A(f'v_mul_f32 v98, {LOG2E}, v98')
        A('v_exp_f32 v98, v98')
        A('v_rcp_f32 v101, v101')
        A('v_mul_f32 v98, v98, v101')
        A('ds_write_b32 v1, v98')
        A(f'ds_write_b32 v2, v3 offset:{C_RDY}')
        self.op_addr('v102', 'v103', L_PART)
        if True:
            A(f's_add_u32 s12, s{sWS}, s44')
            A(f's_addc_u32 s13, s{sWS+1}, 0')
        A(f'v_mov_b32 v104, {L_FL}')
        A('s_lshl_b32 s10, s34, 10')
        A('s_lshl2_add_u32 s10, s35, s10')
        A(f's_add_u32 s10, s10, {H_FLG}')
        A('v_mov_b32 v105, s10')
        A('s_mov_b32 s34, 2')
        A(f's_mov_b32 s35, {7*OPI}')
        A('L_mitem:')
        def touch():
            for k in range(6):
                A(f's_add_u32 s10, s35, {64*k}')
                A('s_load_dword s11, s[12:13], s10')
        if self.o['pt'] == 2:
            A(f's_cmp_gt_u32 s35, {self.o["ptm"]*OPI}')
            A('s_cbranch_scc1 L_notouch')
            touch()
            A('L_notouch:')
        if self.o['pt'] == 4:
            A('s_sub_u32 s44, s34, 2')
            self.lwait(C_IC, lambda: (A('s_lshr_b32 s8, s8, s44'), A('s_and_b32 s8, s8, 7')), 8)
            touch()
        self.item_wait('s34')
        A('ds_read_b128 v[108:111], v104')
        for w in range(4):
            for h in range(2):
                A(f'ds_read_b128 {vr(48+8*w+4*h,4)}, v103 offset:{12288*w + 768*h}')
        A('s_waitcnt lgkmcnt(0)')
        for w in range(4):
            self.pk('add', 48 + 8 * w, 48 + 8 * w, 52 + 8 * w, n=2)
            f = vr(108 + (w & 2), 2)
            for h in range(2):
                if w == 0:
                    A(f'v_pk_mul_f32 {vr(48+2*h,2)}, {vr(48+2*h,2)}, {f} op_sel_hi:[1,0]')
                else:
                    m = 'op_sel:[0,1,0] op_sel_hi:[1,1,1]' if w & 1 else 'op_sel_hi:[1,0,1]'
                    A(f'v_pk_fma_f32 {vr(48+2*h,2)}, {vr(48+8*w+2*h,2)}, {f}, {vr(48+2*h,2)} {m}')
        self.pack(2, 48, 2)
        A('v_min_u32 v2, -2, v2')
        A('v_min_u32 v3, -2, v3')
        A('s_mov_b32 exec_hi, 0xffff')
        if self.o['xs']:
            A(f's_mov_b32 s6, {H_CLR}')
        if self.o['dt']:
            A('buffer_store_dwordx2 v[2:3], v102, s[4:7], s35 offen sc1')
        else:
            self.mode_store('buffer_store_dwordx2 v[2:3], v102, s[4:7], s35 offen', 's32')
        A(f's_mov_b32 s6, {H_END}')
        A('s_mov_b64 exec, 1')
        if self.o['pt'] == 3:
            touch()
        A('s_waitcnt vmcnt(0) lgkmcnt(0)')
        self.mode_store('buffer_store_dword v0, v105, s[4:7], 0 offen', 's32')
        A('s_mov_b64 exec, -1')
        A('v_add_u32 v103, 1536, v103')
        A('v_add_u32 v104, 16, v104')
        A('v_add_u32 v105, 128, v105')
        A('s_add_u32 s34, s34, 4')
        A(f's_sub_u32 s35, s35, {OPI}')
        A('s_cmp_lg_u32 s35, 0')
        A('s_cbranch_scc1 L_mitem')
        if self.o['t7']:
            touch()
            A('s_waitcnt lgkmcnt(0)')
        for ty in (T_W, T_F, T_D):
            A(f's_cmp_eq_u32 s24, {ty}')
            A(f's_cbranch_scc1 L_back{ty}')
        A('s_endpgm')

        A('L_F:')
        XF, GA, C1, PV, SEL = 224, 232, 240, 248, 88
        ly = 1
        A('v_lshlrev_b32 v1, 2, v20')
        if ly:
            A('s_lshl_b32 s41, s38, 7')
            A('s_mul_i32 s14, s38, -96')
            A('s_add_u32 s14, s14, 384')
            A('v_lshrrev_b32 v2, 7, v21')
            A('v_mad_u32_u24 v23, v2, s14, v21')
            A('v_add_u32 v23, s41, v23')
            A('s_mul_i32 s14, s14, 3072')
            A('s_mov_b32 s15, 0')
        A('v_sub_u32 v23, v23, v1')

        def xload():
            A('v_mul_u32_u24 v1, 640, v22')
            A('v_add_lshl_u32 v2, v1, v23, 1')
            A('v_add_lshl_u32 v1, v1, v21, 1')
            A(f'global_load_dwordx2 v[28:29], v2, {sp(sX)}')
            A(f'global_load_dwordx2 v[30:31], v2, {sp(sX)} offset:32')
            for w in range(4):
                A(f'global_load_dwordx4 {vr(32+4*w,4)}, v1, {sp(sX)} offset:{320*w}')
        if not xl:
            xload()
        A('s_mul_i32 s10, s41, 3072')
        A('s_lshl_b32 s11, s40, 6')
        A('s_add_u32 s10, s10, s11')
        A('v_mul_u32_u24 v1, 3072, v18')
        A('v_and_b32 v2, 3, v19')
        A('v_lshl_add_u32 v1, v2, 4, v1')
        A('v_add_u32 v1, s10, v1')
        A(f'v_add_u32 v2, {8*3072}, v1')
        A(f'v_mov_b32 v4, s{sWG}')
        A(f'v_mov_b32 v5, s{sWG+1}')
        A(f'v_mov_b32 v6, s{sWU}')
        A(f'v_mov_b32 v7, s{sWU+1}')
        A('v_cmp_gt_u32 vcc, 4, v19')
        A('v_cndmask_b32 v10, v6, v4, vcc')
        A('v_cndmask_b32 v11, v7, v5, vcc')
        A('v_cndmask_b32 v12, v4, v6, vcc')
        A('v_cndmask_b32 v13, v5, v7, vcc')
        A('v_add_co_u32 v10, vcc, v10, v1')
        A('v_addc_co_u32 v11, vcc, 0, v11, vcc')
        A('v_add_co_u32 v12, vcc, v12, v2')
        A('v_addc_co_u32 v13, vcc, 0, v13, vcc')
        self.dma_issue(EF, 3072, '', self.o['DF'], burst=self.o['FB'], jump='s[14:15]' if ly else None, hold=(self.o['hold'] + 1) // 2)
        self.tr_addr(2)
        self.red_addr()
        self.tr_read(EF, 2048)
        if xl:
            xload()
        A('s_waitcnt vmcnt(0)')
        self.unpack(48, 32, 16)
        self.unpack(XF, 28, 4)
        self.pk('add', 80, 48, 64, n=8)
        self.pk('add', 80, 80, 88, n=4)
        self.pk('add', 80, 80, 84, n=2)
        self.pk('add', 80, 80, 82, n=1)
        A('v_add_f32 v6, v80, v81')
        A('v_cndmask_b32 v6, 0, v6, s[16:17]')
        self.rowred('v_add_f32', 'v6', self.ROWPAR)
        self.xrow('v_add_f32', 'v6', 'v1')
        A(f'v_mul_f32 v{PV}, {f2u(1/640)}, v6')
        A(f'v_readlane_b32 s10, v{PV}, 0')
        A(f'v_readlane_b32 s11, v{PV}, 1')
        A('s_mov_b32 s18, 0')
        A('s_mov_b32 s19, -1')
        A('v_mov_b32 v1, s10')
        A('v_mov_b32 v2, s11')
        A(f'v_cndmask_b32 v{PV+2}, v1, v2, s[18:19]')
        self.probe()
        self.midwait()
        self.dense_addr('v8', H_MOD + 20 * 256, 2)
        A('v_add_u32 v9, 5120, v8')

        def ld():
            for h in range(2):
                A(f'buffer_load_dwordx2 {vr(40+2*h,2)}, v8, s[4:7], 0 offen offset:{32*h} sc1')
                A(f'buffer_load_dwordx2 {vr(44+2*h,2)}, v8, s[4:7], 0 offen offset:{2560+32*h} sc1')
                A(f'buffer_load_dwordx2 {vr(48+2*h,2)}, v9, s[4:7], 0 offen offset:{32*h} sc1')
        self.poll(ld, range(40, 52), 'v1', sleep=self.o['slp'])
        self.unpack(GA, 40, 4)
        self.unpack(C1, 48, 4)
        for i in range(4):
            A(f'v_pk_add_f32 {vr(C1+2*i,2)}, {vr(C1+2*i,2)}, 1.0 op_sel_hi:[1,0]')
        self.rbf8(C1, 80)
        X1 = 120
        self.pk('add', XF, XF, PV, bstep=0, mods='op_sel_hi:[1,0] neg_lo:[0,1] neg_hi:[0,1]')
        self.pk('mul', X1, XF, C1)
        self.pk('mul', C1, C1, GA)
        for i in range(4):
            A(f'v_mov_b32 v{84+i}, v{44+i}')

        def consts():
            for act, off in ((80, 2048), (84, 4096)):
                self.mfma_std(act)
                self.red_write_std(off=off)
                A('s_mov_b64 exec, -1')
                A('s_waitcnt lgkmcnt(0)')
        if EF == 5:
            consts()
        if ly:
            A('v_lshrrev_b32 v1, 6, v23')
            A('v_lshlrev_b32 v1, 8, v1')
            A('v_and_b32 v2, 32, v23')
            A('v_lshl_add_u32 v2, v22, 4, v2')
            A(f'v_add_u32 v1, {H_Y}, v1')
            A('v_add_u32 v208, v1, v2')
        else:
            A('v_and_b32 v3, 0xffe0, v23')
            self.dense_addr('v208', H_Y, 2, k='v3')
        A('v_lshrrev_b32 v1, 1, v20')
        A('v_lshl_add_u32 v208, v1, 14, v208')
        A('v_and_b32 v1, 1, v20')
        A('v_mul_u32_u24 v1, 2560, v1')
        A('v_add_u32 v208, v1, v208')
        A('v_lshlrev_b32 v1, 4, v22')
        A('v_mov_b32 v2, 0x3f80')
        A('v_lshlrev_b32 v1, v1, v2')
        A('v_bfe_u32 v2, v0, 1, 3')
        for w in range(8):
            A(f'v_cmp_eq_u32 vcc, {w}, v2')
            A(f'v_cndmask_b32 v{SEL+w}, 0, v1, vcc')
        self.dense_addr('v209', H_X2, 2)
        A('v_lshrrev_b32 v1, 5, v0')
        A('v_lshl_add_u32 v2, v22, 3, v1')
        A('v_lshlrev_b32 v2, 2, v2')
        A(f's_lshl3_add_u32 s10, s38, {L_ST}')
        A('v_add_u32 v210, s10, v2')
        A('v_lshlrev_b32 v2, 5, v1')
        A(f'v_add_u32 v211, {L_ST}, v2')
        A('v_and_b32 v2, 31, v0')
        A('v_lshlrev_b32 v3, 8, v1')
        A('v_lshl_add_u32 v3, v2, 2, v3')
        A('v_add_u32 v25, s39, v3')
        A('v_add_u32 v213, 1024, v25')
        A('s_lshl_b32 s10, s40, 7')
        A(f's_add_u32 s10, s10, {H_ACT}')
        A('v_lshrrev_b32 v3, 3, v2')
        A('v_lshl_add_u32 v3, v3, 1, v1')
        A('v_and_b32 v2, 7, v2')
        A('v_lshl_add_u32 v3, v3, 3, v2')
        A('v_lshl_add_u32 v212, v3, 1, s10')
        self.tail_begin('L_Ft')
        self.get_sel()
        A('s_add_u32 s20, s47, 32768')
        AC = 214

        def rd2(dst, a0, a1):
            for w in range(4):
                A(f'ds_read2_b32 {vr(dst+2*w,2)}, {a1 if w >> 1 else a0} offset0:{128*(w&1)} offset1:{128*(w&1)+32}')
        for n in range(2):
            A(f'v_add_u32 v2, {2048*(n+1)}, v25')
            A(f'v_add_u32 v3, {2048*(n+1)}, v213')
            rd2(96, 'v2', 'v3')
            A('s_waitcnt lgkmcnt(0)')
            self.pk('add', 96, 96, 100, n=2)
            A(f'v_pk_add_f32 {vr(AC+2*n,2)}, v[96:97], v[98:99]')
        Y, YL = 32, 48
        order = (0, 2, 1, 3, 4, 6, 5, 7)
        lds, work = [], []
        for n in order:
            lds.append((f'buffer_load_dwordx4 {vr(YL+4*n,4)}, v208, s[4:7], {"s20" if n >= 4 else "s47"} offen offset:{64*(n&3)} sc1', YL + 4 * n))
            d = vr(Y + 4 * ((n >> 1) & 1), 4)
            work.append([f'v_mfma_f32_16x16x32_bf16 {d}, {vr(SEL+4*(n&1),4)}, {vr(YL+4*n,4)}, {"0" if n in (0, 2) else d}'])
        self.spoll(lds, work, 's[16:17]')
        self.stamp(3)
        for i in range(4):
            A(f'v_pk_fma_f32 {vr(40+2*i,2)}, {vr(Y+2*i,2)}, {vr(C1+2*i,2)}, {vr(X1+2*i,2)}')
        self.pack(28, 40, 4)
        self.stamp(4)
        sh = [f'v_pk_fma_f32 {vr(Y+2*i,2)}, {vr(Y+2*i,2)}, {vr(GA+2*i,2)}, {vr(XF+2*i,2)}' for i in range(4)]
        sh += [f'v_pk_mul_f32 v[56:57], {vr(Y,2)}, {vr(Y,2)}', f'v_pk_add_f32 v[58:59], {vr(Y,2)}, {vr(Y+2,2)}']
        for i in range(1, 4):
            sh.append(f'v_pk_fma_f32 v[56:57], {vr(Y+2*i,2)}, {vr(Y+2*i,2)}, v[56:57]')
            if i > 1:
                sh.append(f'v_pk_add_f32 v[58:59], v[58:59], {vr(Y+2*i,2)}')
        if self.o['ssh']:
            sh = []
            for i in range(8):
                sh.append(f'v_fma_f32 v{Y+i}, v{Y+i}, v{GA+i}, v{XF+i}')
                sh.append(f'v_mul_f32 v56, v{Y}, v{Y}' if i == 0 else f'v_fmac_f32 v56, v{Y+i}, v{Y+i}')
                if i:
                    sh.append(f'v_add_f32 v58, v{Y+i}, {"v58" if i > 1 else f"v{Y}"}')
        else:
            sh += ['v_add_f32 v56, v56, v57', 'v_add_f32 v58, v58, v59']
        sh += ['s_nop 0',
               'v_permlane32_swap_b32 v58, v56', 'v_add_f32 v56, v56, v58', 'v_cndmask_b32 v56, 0, v56, s[16:17]']
        sh += [f'v_add_f32_dpp v56, v56, v56 {m} {DPPM}' for m in self.ROWPAR]
        self.mfma_std(28, shadow=sh, per=self.o['ssh'] or 2)
        if self.o['clk']:
            self.stamp(1)
        A('v_mov_b32 v57, v56')
        A('v_permlane16_swap_b32 v56, v57')
        A('v_add_f32 v56, v56, v57')
        self.red_write_std()
        A('ds_write_b32 v210, v56')

        def rd():
            A('ds_read_b128 v[56:59], v211')
            A('ds_read_b128 v[60:63], v211 offset:16')
            rd2(64, 'v25', 'v213')
            A('s_cmp_lg_u32 s40, 0')
            A('s_cbranch_scc1 L_Fnox')
            self.pk('add', 40, Y, PV, bstep=0, mods='op_sel_hi:[1,0]')
            self.pack(48, 40, 4)
            for i in range(4):
                A(f'v_min_u32 v{48+i}, -2, v{48+i}')
            A('s_mov_b64 exec, s[16:17]')
            for so in ('0', 's46'):
                A(f'buffer_store_dwordx2 v[48:49], v209, s[4:7], {so} offen sc1')
                A(f'buffer_store_dwordx2 v[50:51], v209, s[4:7], {so} offen offset:32 sc1')
            A('s_mov_b64 exec, -1')
            A('L_Fnox:')
        self.arrive('L_end', rd, 4, True)
        if self.o['clk']:
            self.stamp(2)
        A('v_pk_add_f32 v[56:57], v[56:57], v[58:59]')
        A('v_pk_add_f32 v[60:61], v[60:61], v[62:63]')
        A('v_pk_add_f32 v[56:57], v[56:57], v[60:61]')
        A(f'v_mul_f32 v56, {f2u(1/640)}, v56')
        A(f'v_mul_f32 v8, {f2u(1/640)}, v57')
        A(f'v_add_f32 v6, v{PV+2}, v56')
        A('v_fma_f32 v8, -v56, v56, v8')
        A('v_max_f32 v8, 0, v8')
        self.ln_scalars('v6', 'v8')
        A(f'v_sub_f32 v6, v{PV+2}, v6')
        A('s_waitcnt lgkmcnt(0)')
        self.red_sum(64)
        A(f'v_pk_fma_f32 v[96:97], {vr(AC,2)}, v[6:7], v[64:65] op_sel_hi:[1,0,1]')
        A(f'v_pk_fma_f32 v[96:97], v[96:97], v[8:9], {vr(AC+2,2)} op_sel_hi:[1,0,1]')
        A('v_cvt_pk_bf16_f32 v98, v96, v97')
        A('v_lshlrev_b32 v100, 16, v98')
        A(f'v_mul_f32 v4, {LOG2E}, v100')
        A('v_exp_f32 v4, -v4')
        self.lastonly('L_end', True)
        A('v_and_b32 v101, 0xffff0000, v98')
        A('v_add_f32 v4, 1.0, v4')
        A('v_rcp_f32 v4, v4')
        A('s_mov_b32 s10, 0x55555555')
        A('v_mul_f32 v2, v100, v4')
        self.rbf('v2')
        A('v_mul_f32 v2, v2, v101')
        A('s_mov_b32 s11, 0x55555555')
        A(f'v_mov_b32_dpp v3, v2 quad_perm:[1,0,3,2] {DPPM}')
        A('s_mov_b64 exec, s[10:11]')
        A('v_cvt_pk_bf16_f32 v2, v2, v3')
        A('v_min_u32 v2, -2, v2')
        A('buffer_store_dword v2, v212, s[4:7], 0 offen sc1')
        A('buffer_store_dword v2, v212, s[4:7], s46 offen sc1')
        self.stamp(5)

        def late():
            self.dma_issue(5, 3072, '', 24, s0=EF, jump='s[14:15]' if ly else None)
            self.tr_read(5, 2048, s0=EF)
            consts()
            self.hbar()
        self.tail_end('L_Ft', T_F, self.o['WF'], late if EF < 5 else None, self.o['WLF'])

        A('L_D:')
        A(f's_mul_i32 s10, s38, {384*1280}')
        A('s_lshl_b32 s11, s40, 5')
        A('s_add_u32 s10, s10, s11')
        A(f's_add_u32 s10, s{sWD}, s10')
        A(f's_addc_u32 s11, s{sWD+1}, 0')
        for a, x in ((10, 0), (12, 4)):
            A(f'v_xor_b32 v1, {x}, v19')
            A('v_lshrrev_b32 v2, 1, v1')
            A('v_mul_u32_u24 v2, 96, v2')
            A('v_add_u32 v2, v2, v18')
            if x:
                A('v_add_u32 v2, 8, v2')
            A('v_mul_u32_u24 v2, 1280, v2')
            A('v_and_b32 v1, 1, v1')
            A(f'v_lshl_add_u32 v{a}, v1, 4, v2')
            A(f'v_mov_b32 v{a+1}, 0')
            A(f'v_lshl_add_u64 {vr(a,2)}, {vr(a,2)}, 0, s[10:11]')
        self.dma_issue(ED, 1280, '', self.o['DD'], burst=self.o['DB'])
        self.tr_addr(False)
        self.red_addr()
        self.tr_read(ED, 512)
        self.probe()
        self.midwait()
        A('v_bfe_u32 v30, v0, 3, 1')
        A('v_and_b32 v1, 7, v0')
        A('v_lshlrev_b32 v2, 8, v30')
        A('v_lshl_add_u32 v2, v1, 3, v2')
        A('v_add_u32 v25, s39, v2')
        A('s_lshl_b32 s10, s40, 4')
        A('v_lshl_add_u32 v31, v1, 1, s10')
        A('v_mul_u32_u24 v3, 640, v30')
        A('v_add_lshl_u32 v29, v3, v31, 1')
        A('v_mov_b32 v4, v22')
        A('v_mov_b32 v22, v30')
        self.dense_addr('v28', H_X2, 2, k='v31')
        A('v_mov_b32 v22, v4')
        A(f'v_add_u32 v8, {H_MOD + 50*256 - H_X2}, v28')

        def ld():
            A('buffer_load_dword v44, v8, s[4:7], 0 offen sc1')
        self.poll(ld, [44], 'v1', sleep=self.o['slp'])
        A(f's_mov_b32 s28, s{sOUT}')
        A(f's_mov_b32 s29, s{sOUT+1}')
        A('s_mov_b32 s30, 2560')
        A('s_mov_b32 s31, 0x20000')
        self.unpack(46, 44, 1)
        A('v_bfe_u32 v1, v0, 1, 3')
        A(f'v_lshlrev_b32 v2, 4, v22')
        A(f'v_lshl_add_u32 v2, v20, 5, v2')
        A('s_mul_i32 s10, s38, 1536')
        A(f's_add_u32 s10, s10, {H_ACT}')
        A('v_add_u32 v2, s10, v2')
        A('v_lshl_add_u32 v8, v1, 7, v2')
        A('v_and_b32 v1, 3, v1')
        A('v_lshl_add_u32 v9, v1, 7, v2')
        self.tail_begin('L_Dt')
        self.get_sel()

        def ld0():
            A('buffer_load_dword v40, v28, s[4:7], s47 offen sc1')

        pairs = [(0, 32), (8, 36), (2, 48), (4, 52), (6, 56), (10, 60)]
        sh = [f'v_mov_b32_dpp v{r+i}, v{32+4*(ks//8)+i} row_shl:{2*(ks%8)} {DPPM}' for ks, r in pairs[2:] for i in range(4)]

        def mf(n, e):
            ks, r = pairs[n]
            d = vr(96 + 4 * e, 4)
            return f'v_mfma_f32_16x16x32_bf16 {d}, {vr(self.WR+16*((ks+e)%3)+4*((ks+e)//3),4)}, {vr(r,4)}, {"0" if n == 0 else d}'
        self.spoll([('buffer_load_dwordx4 v[32:35], v8, s[4:7], s47 offen sc1', 32),
                    ('buffer_load_dwordx4 v[36:39], v9, s[4:7], s47 offen offset:1024 sc1', 36)],
                   [[mf(n, 0), mf(n, 1), sh[2 * n], sh[2 * n + 1]] for n in range(2)],
                   one=('buffer_load_dword v40, v28, s[4:7], s47 offen sc1', 40))
        self.stamp(3)
        sh = sh[4:]
        for n in range(2, 6):
            for e in range(2):
                A(mf(n, e))
                for i in range(2 if n > 2 or e else 4):
                    if sh:
                        A(sh.pop(0))
        self.unpack(42, 40, 1)
        for i in range(4):
            A(f'v_add_f32_dpp v{96+i}, v{100+i}, v{96+i} quad_perm:[2,3,0,1] {DPPM}')
        self.red_write_std(1)
        self.arrive('L_end', lambda: self.red_read(104), 4, True)
        A('s_waitcnt lgkmcnt(0)')
        self.red_sum(104)
        self.lastonly('L_end', True)
        self.pack(98, 104, 1)
        self.unpack(96, 98, 1)
        A('v_pk_mul_f32 v[96:97], v[96:97], v[46:47]')
        self.pack(98, 96, 1)
        self.unpack(96, 98, 1)
        A('v_pk_add_f32 v[96:97], v[96:97], v[42:43]')
        A('v_cvt_pk_bf16_f32 v2, v96, v97')
        A('s_mov_b64 exec, 0xffff')
        A(f'buffer_store_dword v2, v29, s[28:31], 0 offen')
        self.stamp(4)

        def late():
            self.dma_issue(3, 1280, '', 24, s0=ED, mid=(self.o['DL'], lambda: self.wake(128, add=False, both=False)))
            self.tr_read(3, 512, s0=ED)
        self.tail_end('L_Dt', T_D, self.o['WD'], late if ED < 3 else None, 64 if self.o['DL'] else self.o['WLD'])

    def build(self):
        self.entry()
        self.helper()
        self.stream()
        t = HEADER + f'; @launch grid=(256,1,1) block=(512,1,1) lds={L_END}\n' + self.A.text()
        t += '.p2align 8\n.type L_tab,@object\nL_tab:\n'
        w = job_table()
        for i in range(0, len(w), 8):
            t += '.long ' + ','.join('0x%08x' % x for x in w[i:i + 8]) + '\n'
        t += '.section .rodata,"a"\n.p2align 6\n' + kd(KN + '_kernel', 256, sgpr=102)
        return t


if __name__ == '__main__':
    import os
    os.makedirs('gen', exist_ok=True)
    names = []
    for spec in sys.argv[1:]:
        kw = {}
        for kv in spec.split(','):
            if not kv:
                continue
            k, v = kv.split('=')
            try:
                v = int(v, 0)
            except ValueError:
                v = v.replace('+', ' ')
            kw[k] = v
        nm = 'work/gen/v13_' + spec.replace('=', '').replace(',', '_') + '.s'
        open('code/' + nm, 'w').write(G(**kw).build())
        names.append(nm)
    print(' '.join(names))
```

```python
import sys, struct
sys.path.insert(0, 'work')
from asmlib import Asm, kd

KN = 'adaLN_cond__gqa_block_cached__swiglu_ffn__decode'
f2u = lambda x: '0x%08x' % struct.unpack('<I', struct.pack('<f', x))[0]
LOG2E = f2u(1.4426950408889634)
SCALE = f2u(192 ** -0.5)
PER = 196608
sX, sK, sV, sWQ, sWO, sWG, sWU, sWD, sC, sWM, sOUT, sDBG, sWS = 64, 66, 68, 70, 72, 76, 78, 80, 82, 84, 86, 88, 90
H_MOD, H_Q, H_TS, H_FLG, H_ML = 0, 0x4000, 0xA000, 0x12000, 0x14000
H_X2, H_ACT, H_Y, H_OP, H_CLR, H_END, H_PRB = 0x1C000, 0x20000, 0x24000, 0x34000, 0x64000, 0xF4000, 0xF4000
VORD = (7, 6, 5, 3, 2, 1, 4, 0)
OPI = 98304
L_STG, L_PART, L_RED, L_ST, L_CNT, L_MLL, L_GL, L_FL, L_END = 0, 98304, 147456, 153600, 153728, 153792, 154048, 154112, 154240
C_MRG, C_HBAR, C_SEL, C_HB, C_WK, C_KC, C_IC, C_RDY = 0, 12, 16, 24, 28, 32, 36, 40
SPIN = 1 << 15
DPPM = 'row_mask:0xf bank_mask:0xf'
T_M, T_Q, T_W, T_F, T_D = 1, 2, 3, 4, 5
STAMP0 = 0x2ff00000


def sp(n):
    return f's[{n}:{n+1}]'


def vr(n, c):
    return f'v[{n}:{n+c-1}]' if c > 1 else f'v{n}'


JT = 5
RN = 1
HV = 0


def job_table():
    J = {i: [] for i in range(256)}
    free = {x: [8 * r + x for r in range(32)] for x in range(8)}
    if JT in (1, 4, 5):
        fx = [f // 6 for f in range(48)]
        dx = [[0, 1, 2, 3, 4, 5, 6, 7, 2, 5][d // 4] for d in range(40)]
    elif JT == 2:
        fx = [[0, 3, 6][f // 16] for f in range(48)]
        dx = [[2, 5][d // 20] for d in range(40)]
    elif JT == 3:
        fx = [[0, 1, 2, 3][f // 12] for f in range(48)]
        dx = [[0, 1, 2, 3, 0, 1, 2, 3, 4, 4][d // 4] for d in range(40)]
    for f in range(48):
        J[free[fx[f]].pop(0)] = [(T_F, f)]
    for d in range(40):
        J[free[dx[d]].pop(0)] = [(T_D, d)]
    wl = []
    for w in range(80):
        i = free[w & 7].pop(0)
        J[i] = [(T_W, w)]
        wl.append(i)
    rest = sorted(i for x in free for i in free[x])
    m2 = list(range(20, 60)); q = list(range(96))
    k = 0
    if JT < 4:
        for m in range(20):
            J[rest[k]] = [(T_M, m), (T_M, m2.pop())]; k += 1
        for _ in range(20):
            J[rest[k]] = [(T_Q, q.pop()), (T_M, m2.pop())]; k += 1
    while k < len(rest):
        J[rest[k]] = [(T_Q, q.pop())]; k += 1
    k = 0
    if JT >= 4:
        for i in range(256):
            if J[i][0][0] == T_D:
                J[i] = [(T_Q, q.pop()) if JT == 5 and q else (T_M, m2.pop())] + J[i]
        while m2:
            J[wl[k]] = [(T_M, m2.pop())] + J[wl[k]]; k += 1
        for m in range(20):
            J[wl[k]] = [(T_M, m)] + J[wl[k]]; k += 1
    while q:
        J[wl[k]] = [(T_Q, q.pop())] + J[wl[k]]; k += 1
    singles = wl[k:]
    if RN:
        cq, c1, c2 = 0, 0, 20
        for i in sorted(range(256), key=lambda i: (i & 7, i)):
            for n, (ty, ix) in enumerate(J[i]):
                if ty == T_Q:
                    J[i][n] = (ty, cq); cq += 1
                elif ty == T_M and ix < 20:
                    J[i][n] = (ty, c1); c1 += 1
                elif ty == T_M:
                    J[i][n] = (ty, c2); c2 += 1
    clr = {singles[n]: n for n in range(10)}
    words = []
    for i in range(256):
        j = J[i] + [(0, 0)]
        v = j[0][0] | j[0][1] << 4 | j[1][0] << 12 | j[1][1] << 16
        if i in clr:
            v |= (16 | clr[i]) << 24
        last = J[i][-1][0]
        v |= (last == T_W) << 30 | (last == T_F) << 31
        t0, i0 = J[i][0]
        heavy = (len(J[i]) == 2 and last == T_W) or (t0 == T_F and (i0 >> 1) & 7 == 3)
        if HV >= 2:
            heavy = heavy or len(J[i]) == 2 or (t0 == T_Q and i0 & 7 == 3) or i in clr
        if HV >= 3:
            heavy = heavy or t0 == T_F
        v |= (heavy and HV > 0) << 29
        words.append(v)
    return words


HEADER = '''; adaLN -> cached attention -> adaLN -> SwiGLU, decode step (B=2, D=640, 32 heads x 192, 8192 keys).
; Written with my own generator script (work/gen_v13.py).  One persistent launch, one workgroup per CU.
;
;
; Hand-offs go through ws: slots are first set to 0xffffffff (flags in debug say when), writers never store that
;   value, readers poll with device-scope loads (bounded).  Stores write through, except inside a group whose 32
'''


class G:
    def __init__(self, **kw):
        self.o = dict(D=5, DX=7, BG=20, BO=25, NR=13, BI=0, bal=2, NF=24, NQ=0, stamps=0, clk=0, diag='',
                      prio=3, DQ=24, DF=24, FB=10, DD=1, DB=5, DM2=2, DW2=4, JT=5, RN=1, fast=1,
                      NP=12, sel=-1, slp=32, wks=1, EF=4, ED=1, PB=24, ND=20, U=4, N1=6,
                      WL=64, WLF=64, WLD=128, WF=64, WD=64, fsl=24, fs0=0, gw=1, TH=23, TV=0, NOM=335, wt=0, ft=0, xd=0, fsp=0, dsp=0, dg=1, xl=0, g3=1, gc=2, NG=24, qsl=8, xc=0, tp=0, ec=0, pp=0, psl=4, mh=0, cs=1, DL=2, t0=2, ssh=3, db=1, hv=1, DP=5, kc=-1, ms=90, CL=40, CP=24, RO=12, NSM=16, sm=1, iws=8, hold=20, ptm=3, TB=0, pw=1, BW=35, BF=12, w2=0, t7=0, pf=5, lin=1, dt=0, xf=0, pt=2, ca=0, p2=1, xo=0, xs=0, xg=0, pol='')
        self.o.update(kw)
        global JT, RN, HV
        JT, RN, HV = self.o['JT'], self.o['RN'], self.o['hv']
        self.A = Asm()
        self.nl = 0

    def lab(self, s):
        self.nl += 1
        return f'L{self.nl}_{s}'

    def stamp(self, i, alt=0):
        m = self.o['stamps']
        if (m in (1, 3) and not alt) or (m == 2 and (alt == 1 or i in (0, 6))) or (m == 3 and alt == 3):
            self.A(f'{"s_memtime" if self.o["clk"] else "s_memrealtime"} {sp(48+2*i)}')

    def dump_stamps(self, area):
        if not self.o['stamps'] or self.o['diag']:
            return
        A = self.A
        A('s_mov_b64 exec, 1')
        A('s_getreg_b32 s62, hwreg(HW_REG_XCC_ID)')
        A('s_mov_b32 s63, s3')
        A('s_waitcnt lgkmcnt(0)')
        A('s_lshl_b32 s8, s2, 7')
        A(f's_add_u32 s8, s8, {STAMP0 + area}')
        A('v_mov_b32 v1, s8')
        for i in range(16):
            A(f'v_mov_b32 v{112+i}, s{48+i}')
        for i in range(4):
            A(f'global_store_dwordx4 v1, {vr(112+4*i,4)}, {sp(sWS)} offset:{16*i}')

    def rbf(self, v):
        self.A(f'v_cvt_pk_bf16_f32 {v}, {v}, {v}')
        self.A(f'v_lshlrev_b32 {v}, 16, {v}')

    def unpack(self, dst, src, n):
        for i in range(n):
            self.A(f'v_and_b32 v{dst+2*i+1}, 0xffff0000, v{src+i}')
            self.A(f'v_lshlrev_b32 v{dst+2*i}, 16, v{src+i}')

    def pack(self, dst, src, n):
        for i in range(n):
            self.A(f'v_cvt_pk_bf16_f32 v{dst+i}, v{src+2*i}, v{src+2*i+1}')

    def rbf8(self, x, t):
        self.pack(t, x, 4)
        self.unpack(x, t, 4)

    def pk(self, op, d, a, b, n=4, bstep=2, mods=''):
        for i in range(n):
            self.A(f'v_pk_{op}_f32 {vr(d+2*i,2)}, {vr(a+2*i,2)}, {vr(b+bstep*i,2)} {mods}')

    def xrow(self, op, v, t):
        for sw in ('v_permlane16_swap_b32', 'v_permlane32_swap_b32'):
            self.A(f'v_mov_b32 {t}, {v}')
            self.A(f'{sw} {v}, {t}')
            self.A(f'{op} {v}, {v}, {t}')

    def rowred(self, op, v, modes):
        for m in modes:
            self.A(f'{op}_dpp {v}, {v}, {v} {m} {DPPM}')

    ROW16 = ('quad_perm:[1,0,3,2]', 'quad_perm:[2,3,0,1]', 'row_half_mirror', 'row_mirror')
    ROWPAR = ('quad_perm:[2,3,0,1]', 'row_ror:4', 'row_ror:8')

    def silu(self, v, t, u):
        A = self.A
        A(f'v_mul_f32 {t}, {LOG2E}, {v}')
        A(f'v_exp_f32 {t}, -{t}')
        A(f'v_add_f32 {t}, 1.0, {t}')
        A(f'v_rcp_f32 {u}, {t}')
        A(f'v_mul_f32 v2, {v}, {u}')
        A(f'v_fma_f32 v3, -v2, {t}, {v}')
        A(f'v_fma_f32 v2, v3, {u}, v2')
        A(f'v_div_fixup_f32 {v}, v2, {t}, {v}')

    def invalid(self, regs, t):
        A = self.A
        regs = list(regs)
        if len(regs) == 1:
            A(f'v_cmp_eq_u32 vcc, -1, v{regs[0]}')
            return
        cur = f'v{regs.pop(0)}'
        while regs:
            if len(regs) >= 2:
                A(f'v_max3_u32 {t}, {cur}, v{regs.pop(0)}, v{regs.pop(0)}')
            else:
                A(f'v_max_u32 {t}, {cur}, v{regs.pop(0)}')
            cur = t
        A(f'v_cmp_eq_u32 vcc, -1, {t}')

    def poll(self, loads, regs, t, sleep=0, cnt='s9', mask=False, fly=0):
        A = self.A
        top, done = self.lab('poll'), self.lab('pdone')
        A(f's_mov_b32 {cnt}, {SPIN}')
        A(f'{top}:')
        loads()
        A(f's_waitcnt vmcnt({fly})')
        self.invalid(regs, t)
        A(f's_cbranch_vccz {done}')
        if mask:
            A('s_mov_b64 exec, vcc')
        if sleep:
            A(f's_sleep {sleep}')
        A(f's_sub_u32 {cnt}, {cnt}, 1')
        A(f's_cbranch_scc0 {top}')
        A(f'{done}:')
        if mask:
            A('s_mov_b64 exec, -1')

    def spoll(self, loads, work, lanes=None, one=None, sleep=0):
        A = self.A
        top, done = self.lab('spoll'), self.lab('sdone')
        A(f's_mov_b32 s9, {SPIN}')
        A(f's_mov_b64 vcc, {lanes or -1}')
        A(f'{top}:')
        if sleep:
            A(f's_sleep {sleep}')
        A('s_sub_u32 s9, s9, 1')
        A(f's_cbranch_scc1 {done}')
        A('s_mov_b64 exec, vcc')
        if one:
            A(one[0])
        for t, r in loads:
            A(t)
        A('s_mov_b64 exec, -1')
        for i, (t, r) in enumerate(loads):
            A(f's_waitcnt vmcnt({len(loads)-1-i})')
            if i == 0 and one:
                chk = [f'v_max3_u32 v1, v{one[1]}, v{r}, v{r+1}', f'v_max3_u32 v1, v1, v{r+2}, v{r+3}']
            elif i == 0:
                chk = [f'v_max3_u32 v1, v{r}, v{r+1}, v{r+2}', f'v_max_u32 v1, v1, v{r+3}']
            else:
                chk = [f'v_max3_u32 v1, v1, v{r}, v{r+1}', f'v_max3_u32 v1, v1, v{r+2}, v{r+3}']
            w = list(work[i])
            A(w.pop(0))
            for c in chk:
                A(c)
            if i + 1 == len(loads):
                A('v_cmp_eq_u32 vcc, -1, v1')
            for x in w:
                A(x)
        if lanes:
            A(f's_and_b64 vcc, vcc, {lanes}')
        A(f's_cbranch_vccnz {top}')
        A(f'{done}:')

    def flags_addr(self, va, both):
        A = self.A
        A(f'v_and_b32 {va}, 7, v0')
        if both:
            A('v_cmp_gt_u32 vcc, 32, v0')
            A(f'v_cndmask_b32 {va}, v0, {va}, vcc')
        A(f'v_lshlrev_b32 {va}, 2, {va}')

    def flags_wait(self, va, vd, cnt='s9'):
        A = self.A
        top, done = self.lab('flag'), self.lab('fdone')
        A(f's_mov_b32 {cnt}, {SPIN}')
        A(f'{top}:')
        A(f'global_load_dword {vd}, {va}, {sp(sDBG)} sc1')
        A('s_waitcnt vmcnt(0)')
        A(f'v_cmp_eq_u32 vcc, 0, {vd}')
        A(f's_cbranch_vccz {done}')
        A('s_sleep 8')
        A(f's_sub_u32 {cnt}, {cnt}, 1')
        A(f's_cbranch_scc0 {top}')
        A(f'{done}:')

    def op_addr(self, dst, rd, rdbase):
        A = self.A
        A('s_and_b32 s44, s2, 7')
        A('s_lshr_b32 s45, s2, 3') if dst == 'v57' else A('s_lshr_b32 s8, s2, 3')
        A('s_lshl_b32 s44, s44, 5')
        A(f's_add_u32 s44, s44, {"s45" if dst == "v57" else "s8"}')
        A('s_mul_i32 s44, s44, 384')
        A(f's_add_u32 s44, s44, {H_OP}')
        A('v_and_b32 v1, 0x31, v0')
        if self.o['lin']:
            A('v_bfe_u32 v2, v0, 2, 2')
            A('v_lshl_add_u32 v1, v2, 1, v1')
            A('v_bfe_u32 v2, v0, 1, 1')
            A('v_lshl_add_u32 v1, v2, 3, v1')
            A(f'v_lshl_add_u32 {dst}, v0, 3, s44')
        else:
            A('v_bfe_u32 v2, v0, 1, 2')
            A('v_lshl_add_u32 v1, v2, 2, v1')
            A('v_bfe_u32 v2, v0, 3, 1')
            A('v_lshl_add_u32 v1, v2, 1, v1')
            A(f'v_lshl_add_u32 {dst}, v1, 3, s44')
            A('v_mov_b32 v1, v0')
        A('v_min_u32 v1, 47, v1')
        A('v_lshlrev_b32 v1, 4, v1')
        A(f'v_add_u32 {rd}, {rdbase}, v1')

    def mode_store(self, text, mode):
        A = self.A
        thru, done = self.lab('thru'), self.lab('stored')
        A(f's_cmp_lg_u32 {mode}, 2')
        A(f's_cbranch_scc1 {thru}')
        A(text + ' ' + self.o['pol'])
        A(f's_branch {done}')
        A(f'{thru}:')
        A(text + ' sc1')
        A(f'{done}:')

    def lwait(self, off, test, sleep):
        A = self.A
        top, done = self.lab('lw'), self.lab('lwd')
        A(f'v_mov_b32 v1, {L_CNT}')
        A(f's_mov_b32 s9, {SPIN*8}')
        A(f'{top}:')
        A(f'ds_read_b32 v2, v1 offset:{off}')
        A('s_waitcnt lgkmcnt(0)')
        A('v_readfirstlane_b32 s8, v2')
        test()
        A(f's_cbranch_scc1 {done}')
        A(f's_sleep {sleep}')
        A('s_sub_u32 s9, s9, 1')
        A(f's_cbranch_scc0 {top}')
        A(f'{done}:')

    def item_wait(self, bit):
        self.lwait(C_IC, lambda: self.A(f's_bitcmp1_b32 s8, {bit}'), self.o['iws'])

    def ws_srd(self):
        A = self.A
        A(f's_mov_b32 s4, s{sWS}')
        A(f's_mov_b32 s5, s{sWS+1}')
        A(f's_mov_b32 s6, {H_END}')
        A('s_mov_b32 s7, 0x20000')

    RING, Q, S = 64, 16, 28

    def entry(self):
        A = self.A
        n = KN + '_kernel'
        A('.amdgcn_target "amdgcn-amd-amdhsa--gfx950"')
        A('.text')
        A(f'.globl {n}')
        A('.p2align 8')
        A(f'.type {n},@function')
        A(f'{n}:')
        A('s_cmp_ge_u32 s2, 256')
        A('s_cbranch_scc1 L_end')
        self.stamp(0)
        A('s_load_dwordx16 s[64:79], s[0:1], 0')
        A('v_lshrrev_b32 v1, 6, v0')
        A('s_load_dwordx8 s[80:87], s[0:1], 64')
        A('v_readfirstlane_b32 s3, v1')
        A('s_load_dwordx4 s[88:91], s[0:1], 96')
        A('v_and_b32 v0, 63, v0')
        A('s_cmp_ge_u32 s3, 4')
        A('s_cbranch_scc1 L_helper')
        A('s_and_b32 s13, s2, 7')
        A('s_lshr_b32 s14, s2, 4')
        A('s_lshl4_add_u32 s34, s13, s14')
        A(f's_mul_i32 s34, s34, {PER}')
        A('s_bfe_u32 s12, s2, 0x10003')
        A('s_lshl2_add_u32 s12, s12, s3')
        A('s_mul_i32 s36, s12, 392')
        A('s_lshr_b32 s36, s36, 10')
        A('s_mul_i32 s36, s36, 22')
        A('s_lshl3_add_u32 s36, s12, s36')
        A('s_mul_i32 s36, s36, 1536')
        A('v_and_b32 v1, 1, v0')
        A('v_lshrrev_b32 v2, 4, v0')
        A('v_lshl_add_u32 v1, v1, 2, v2')
        A('v_lshlrev_b32 v51, 4, v1')
        A('v_bfe_u32 v1, v0, 1, 2')
        A('v_bfe_u32 v2, v0, 3, 1')
        A('v_mul_u32_u24 v2, 84, v2')
        A('v_add_u32 v1, v1, v2')
        A('v_mul_u32_u24 v1, 384, v1')
        A('v_add_u32 v40, v1, v51')
        A(f's_mov_b32 s10, {PER}')
        A('s_mov_b32 s11, 0x20000')
        self.stamp(5, 1)
        A('s_waitcnt lgkmcnt(0)')
        self.stamp(1, 1)
        A(f's_add_u32 s8, s{sK}, s34')
        A(f's_addc_u32 s9, s{sK+1}, 0')
        for n in range(self.o['N1']):
            A(f'buffer_load_dwordx4 {vr(self.RING+4*n,4)}, v40, s[8:11], s36 offen offset:{1536*(n//3) + 128*(n%3)} nt')
        A('s_barrier')
        A('s_branch L_stream')

    def stream(self):
        A = self.A
        o = self.o
        D, bal = o['D'], o['bal']
        DX = o['DX'] if bal else D
        RING, Q, S = self.RING, self.Q, self.S
        A('L_stream:')
        for t in range(1, 8):
            A(f's_lshl3_add_u32 s44, s12, {t}')
            A('s_mul_i32 s45, s44, 49')
            A('s_lshr_b32 s45, s45, 10')
            A('s_mul_i32 s45, s45, 22')
            A('s_add_u32 s45, s45, s44')
            A(f's_mul_i32 s{36+t}, s45, 1536')
        A('s_cmp_eq_u32 s12, 7')
        A(f's_cselect_b32 s43, {42*1536}, s43')
        A(f's_cselect_b32 s44, {22*1536}, 0')
        A('v_bfe_u32 v1, v0, 3, 1')
        A('v_mad_u32_u24 v41, v1, s44, v40')
        A('v_bfe_u32 v1, v0, 3, 2')
        A('v_lshrrev_b32 v2, 5, v0')
        A('v_mul_u32_u24 v3, 84, v2')
        A('v_add_u32 v1, v1, v3')
        A('v_mul_u32_u24 v1, 384, v1')
        A('v_and_b32 v3, 7, v0')
        A('v_lshl_add_u32 v38, v3, 4, v1')
        A('v_mad_u32_u24 v39, v2, s44, v38')

        A('s_mov_b64 s[14:15], s[8:9]')
        A('s_mov_b32 s97, 0x07654321')

        def nxt_slice():
            A('s_and_b32 s46, s97, 7')
            A('s_lshr_b32 s97, s97, 4')
            A(f's_mul_i32 s46, s46, {128*PER}')
            A('s_add_u32 s8, s14, s46')
            A('s_addc_u32 s9, s15, 0')

        def load(n):
            k = n % 24
            t = k // 3
            A(f'buffer_load_dwordx4 {vr(RING+4*n,4)}, v{41 if t == 7 else 40}, s[8:11], s{36+t} offen offset:{128*(k%3)} nt')
            if k == 23:
                nxt_slice()

        def setup():
            self.ws_srd()
            A('s_getpc_b64 s[98:99]')
            A('L_pc2:')
            A('s_add_u32 s98, s98, L_tab-L_pc2')
            A('s_addc_u32 s99, s99, 0')
            A('s_lshl_b32 s44, s2, 2')
            A('s_load_dword s93, s[98:99], s44')
            A('s_mov_b32 s16, 0xff00ff00')
            A('s_mov_b32 s17, 0xff00ff00')
            for t in range(8):
                A(f's_mov_b32 s{18+2*t}, {0x01010101 << t}')
                A(f's_mov_b32 s{19+2*t}, {0x01010101 << t}')
            yield
            A('v_and_b32 v1, 1, v0')
            A('v_lshlrev_b32 v1, 4, v1')
            A('v_mov_b32 v2, 0xffff')
            A('v_lshlrev_b32 v1, v1, v2')
            A('v_bfe_u32 v2, v0, 1, 2')
            for w in range(4):
                A(f'v_cmp_eq_u32 vcc, {w}, v2')
                A(f'v_cndmask_b32 v{42+w}, 0, v1, vcc')
            yield
            A('v_bfe_u32 v1, v0, 3, 2')
            A('v_mul_u32_u24 v1, 6144, v1')
            A('v_lshrrev_b32 v2, 5, v0')
            A('v_lshl_add_u32 v1, v2, 7, v1')
            A('v_and_b32 v2, 7, v0')
            A('v_lshl_add_u32 v1, v2, 4, v1')
            A('s_mul_i32 s44, s13, 768')
            A(f's_add_u32 s44, s44, {H_Q}')
            A('v_add_u32 v50, s44, v1')
            A('s_mul_i32 s35, s3, 12288')
            A(f's_add_u32 s35, s35, {L_PART}')
            A('v_add_u32 v51, s35, v51')
            A('v_lshrrev_b32 v1, 4, v0')
            A('v_lshlrev_b32 v1, 5, v1')
            A(f's_lshl3_add_u32 s44, s3, {L_MLL}')
            A('v_add_u32 v52, s44, v1')
            self.flags_addr('v54', True)
            yield
            if bal:
                sh = 4 if o['NSM'] == 16 else 5
                A(f's_lshr_b32 s45, s2, {sh}')
                A(f's_and_b32 s44, s2, {(1 << sh) - 1}')
                A('s_xor_b32 s44, s44, s45')
                A('s_bfe_u32 s46, s2, 0x20001')
                A('s_xor_b32 s46, s46, s3')
                A('s_or_b32 s92, s44, s46')
                A('s_lshl_b32 s45, s45, 7')
                A(f's_add_u32 s45, s45, {H_TS}')
                A('v_mov_b32 v58, s45')
                A(f's_mov_b32 s100, {o["BI"]}')
                A(f's_add_u32 s64, s{sWS}, {H_TS}')
                A(f's_addc_u32 s65, s{sWS+1}, 0')
            yield
            A('s_waitcnt lgkmcnt(0)')
            b0 = o['BO'] + o['BG'] // 2 if bal == 1 else -o['TH']
            A(f's_mov_b32 s101, {16*b0}')
            A('s_bitcmp1_b32 s93, 30')
            A(f's_cselect_b32 s101, {16*(b0 + o["BW"])}, s101')
            A('s_bitcmp1_b32 s93, 31')
            A(f's_cselect_b32 s101, {16*(b0 + o["BF"])}, s101')
            A('v_lshrrev_b32 v1, 5, v0')
            A('v_mul_u32_u24 v1, 768, v1')
            A('v_bfe_u32 v2, v0, 4, 1')
            A('v_lshl_add_u32 v1, v2, 7, v1')
            A('v_and_b32 v2, 7, v0')
            A('v_lshl_add_u32 v1, v2, 4, v1')
            A('v_add_u32 v62, s35, v1')
            self.op_addr('v57', 'v56', L_PART + 7 * 1536)
            A('s_mov_b32 s94, 0x00ff00ff')
            A('s_mov_b32 s95, 0xff00ff00')
            A('v_mov_b32 v55, 1')
            A('v_mov_b32 v60, 1')
            A(f'v_mov_b32 v63, {L_CNT}')
            yield

        def qloads():
            for j in range(3):
                A(f'buffer_load_dwordx4 {vr(Q+4*j,4)}, v50, s[4:7], 0 offen offset:{256*j} sc1')
        DP = o['DP']
        NF, NQ = o['NF'], o['NQ'] or 47 - DP
        assert NQ - NF > DP + 1 and NF >= 13 and o['EF'] >= 1 and o['ED'] >= 1 and o['N1'] <= 6
        su = setup()
        for n in range(o['N1'], 48):
            ex = (1 if NF < n <= NF + DP else 0) + (3 if NQ < n <= NQ + DP else 0)
            if o['hv'] and n >= 18:
                if n in (18, NQ + 1):
                    A('s_bitcmp1_b32 s93, 29')
                    A('s_cselect_b64 vcc, -1, 0')
                l = self.lab('y')
                A(f's_waitcnt vmcnt({DX-1+ex})')
                A(f's_cbranch_vccnz {l}')
                A(f's_waitcnt vmcnt({DP-1+ex})')
                A(f'{l}:')
            else:
                A(f's_waitcnt vmcnt({DP-1+ex})')
            if n in (6, 10, 16):
                self.stamp({6: 2, 10: 3, 16: 4}[n], 1)
            load(n)
            if n >= 8 and n % 2 == 0:
                next(su, None)
            if n == o['NG']:
                assert n > 16
                A('s_mov_b64 exec, 1')
                A('ds_add_u32 v63, v55 offset:20')
                A('s_mov_b64 exec, -1')
            if n == NF:
                A(f'global_load_dword v53, v54, {sp(sDBG)} sc1')
            if n == NQ:
                ok = self.lab('fok')
                A('v_cmp_eq_u32 vcc, 0, v53')
                A(f's_cbranch_vccz {ok}')
                self.flags_wait('v54', 'v53', 's99')
                A(f'{ok}:')
                qloads()
        self.stamp(1)
        A(f's_waitcnt vmcnt({47-NQ})')
        ok = self.lab('qok')
        self.invalid(range(Q, Q + 12), 'v1')
        A(f's_cbranch_vccz {ok}')
        self.poll(qloads, range(Q, Q + 12), 'v1', cnt='s99')
        A(f'{ok}:')
        A('v_lshl_add_u32 v1, v0, 4, s35')
        for j in range(3):
            A(f'ds_write_b128 v1, {vr(Q+4*j,4)} offset:{1024*j}')
        for j in range(3):
            A(f'ds_read_b128 {vr(Q+4*j,4)}, v51 offset:{1024*j}')
        self.stamp(2)
        NR, PB, ND, U = o['NR'], o['PB'], o['ND'], o['U']
        NB = PB // U
        assert ND % U == 0 and ND <= PB and NR + 3 < ND

        def wait(n, extra=-100):
            ex = lambda d: 1 if extra < n <= extra + d else 0
            if not bal:
                A(f's_waitcnt vmcnt({D-1+ex(D)})')
                return
            if n % U == 0 and bal == 1:
                A(f's_bitcmp1_b32 s100, {((n - ND) // U) % NB}')
                A('s_cselect_b64 vcc, -1, 0')
            l = self.lab('x')
            A(f's_waitcnt vmcnt({DX-1+ex(DX)})')
            A(f's_cbranch_vccnz {l}')
            A(f's_waitcnt vmcnt({D-1+ex(D)})')
            A(f'{l}:')

        CP, RO, NSM = o['CP'], o['RO'], o['NSM']
        back = (U - 1 + RO) // CP
        if bal == 2:
            assert RO % U == 0 and CP % U == 0 and (U - 1 + RO) % CP + U < CP + (CP == 24) * 0 + 1
            assert (336 // CP + back) * NSM * 128 <= H_FLG - H_TS
            A('s_memrealtime s[0:1]')
            A(f's_mov_b32 s87, {16*o["NOM"]*U//24}')
            A('s_mov_b32 s86, 0')
            A(f's_mov_b32 s98, {1 + back}')
            A(f's_mov_b64 vcc, {o["BI"]}')
            A(f'v_add_u32 v58, {back*NSM*128}, v58')
            if o['kc'] >= 0:
                A('v_lshl_add_u32 v58, v0, 6, v58')
                A(f's_getreg_b32 s44, hwreg(HW_REG_HW_ID, {o["kc"]}, 1)')
                A('s_lshl_b32 s44, s44, 6')
                A('s_add_u32 s64, s64, s44')
                A('s_addc_u32 s65, s65, 0')
            A('s_waitcnt lgkmcnt(0)')
            A(f's_add_u32 s100, s0, {-100000 if o["BI"] else 100000}')
            if o['hv']:
                A('s_sub_u32 s44, s0, 60')
                A('s_bitcmp1_b32 s93, 29')
                A('s_cselect_b32 s100, s44, s100')
                A('s_cselect_b64 vcc, -1, 0')
            A('s_lshl_b32 s100, s100, 4')

        def balance2(n):
            n = n % CP
            if n % U == U - 2:
                A('s_memrealtime s[0:1]')
            if n % U == U - 1:
                A('s_waitcnt lgkmcnt(0)')
                A('s_lshl4_add_u32 s44, s0, s101')
                A('s_sub_u32 s44, s44, s100')
                A('s_add_u32 s100, s100, s87')
                A('s_cmp_gt_i32 s44, 0')
                A('s_cselect_b64 vcc, -1, 0')
            if o['tp'] and n == 2 * U - 1:
                l = self.lab('notp')
                A(f's_and_b32 s46, s2, {o["tp"] - 1 << 3}')
                A('s_or_b32 s46, s46, s3')
                A(f's_cbranch_scc1 {l}')
                A('s_and_b32 s46, s97, 7')
                A(f's_mul_i32 s46, s46, {128*PER}')
                A('s_add_u32 s46, s14, s46')
                A('s_addc_u32 s47, s15, 0')
                A('s_load_dword s13, s[46:47], 0')
                A(f'{l}:')
            if n == U - 1:
                l = self.lab('nopub')
                A('s_cmp_lg_u32 s92, 0')
                A(f's_cbranch_scc1 {l}')
                A('v_mov_b32 v59, s0')
                A(f's_mov_b64 exec, {3 if o["kc"] >= 0 else 1}')
                A('buffer_store_dword v59, v58, s[4:7], 0 offen sc1')
                A('s_mov_b64 exec, -1')
                A(f'v_add_u32 v58, {NSM*128}, v58')
                A(f'{l}:')
            if n == (U - 1 + RO) % CP:
                for i in range(NSM):
                    A(f's_load_dword s{70+i}, s[64:65], {128*i}')
            if n == (U - 1 + RO) % CP + U:
                A(f's_add_u32 s64, s64, {NSM*128}')
                A('s_addc_u32 s65, s65, 0')
                A('s_mov_b32 s45, 0')
                st = 's0'
                if o['ms']:
                    A('s_sub_u32 s47, s44, s101')
                    A('s_max_i32 s47, s47, 0')
                    A('s_lshr_b32 s47, s47, 4')
                    A(f's_add_u32 s47, s47, {o["ms"]}')
                    A('s_sub_u32 s47, s0, s47')
                    st = 's47'
                for i in range(NSM):
                    A(f's_cmp_eq_u32 s{70+i}, -1')
                    A(f's_cselect_b32 s{70+i}, {st}, s{70+i}')
                    A(f's_add_u32 s45, s45, s{70+i}')
                if NSM == 8:
                    A('s_lshl_b32 s45, s45, 1')
                A('s_sub_u32 s44, s45, s86')
                A('s_mov_b32 s86, s45')
                A(f's_mul_i32 s1, s87, {CP // U}')
                A('s_sub_u32 s44, s44, s1')
                A(f's_min_i32 s44, s44, {16*o["CL"]}')
                A(f's_max_i32 s44, s44, {-16*o["CL"]}')
                A(f's_mul_hi_i32 s44, s44, {(2**32 * U // CP) >> o["sm"]}')
                A('s_add_u32 s44, s44, s87')
                A('s_sub_u32 s98, s98, 1')
                A('s_cselect_b32 s87, s44, s87')
                A('s_cselect_b32 s98, 0, s98')
                A(f's_mul_i32 s44, s87, {RO//U + 2}')
                A('s_add_u32 s100, s45, s44')

        def balance(n, last=False):
            if not bal:
                return
            if bal == 2:
                return balance2(n)
            if last and n - n % PB + ND >= 48:
                return
            n = n % PB
            if n == 0:
                A('s_memrealtime s[0:1]')
            if n == 1:
                l = self.lab('nopub')
                A('s_cmp_lg_u32 s92, 0')
                A(f's_cbranch_scc1 {l}')
                A('s_waitcnt lgkmcnt(0)')
                A('v_mov_b32 v59, s0')
                A('s_mov_b64 exec, 1')
                A('buffer_store_dword v59, v58, s[4:7], 0 offen sc1')
                A('s_mov_b64 exec, -1')
                A('v_add_u32 v58, 2048, v58')
                A(f'{l}:')
            if n == NR:
                for i in range(16):
                    A(f's_load_dword s{70+i}, s[64:65], {128*i}')
            if n == ND - 2:
                A('s_waitcnt lgkmcnt(0)')
                A('s_add_u32 s64, s64, 2048')
                A('s_addc_u32 s65, s65, 0')
                A(f's_add_u32 s1, s0, {int(NR*13.8)+40}')
                A('s_lshl_b32 s86, s0, 4')
            if n in (ND - 2, ND - 1):
                for i in range(8 * (n - ND + 2), 8 * (n - ND + 3)):
                    A(f's_cmp_eq_u32 s{70+i}, -1')
                    A(f's_cselect_b32 s{70+i}, s1, s{70+i}')
                    A(f's_sub_u32 s86, s86, s{70+i}')
            if n == ND - 1:
                A('s_add_i32 s44, s86, s101')
                A('s_max_i32 s44, s44, 0')
                A(f's_mul_hi_u32 s44, s44, {2**32 // (16*o["BG"])}')
                A(f's_lshr_b32 s45, s100, {NB - ND // U}')
                A('s_bcnt1_i32_b32 s45, s45')
                A('s_sub_i32 s44, s44, s45')
                A('s_max_i32 s44, s44, 0')
                A(f's_min_i32 s44, s44, {NB}')
                A('s_bfm_b32 s100, s44, 0')

        def ldsadd(v):
            A(f'v_mov_b32 v7, {v}')
            A('s_mov_b64 exec, 1')
            A(f'ds_add_u32 v63, v7 offset:{C_WK}')
            A('s_mov_b64 exec, -1')
        A('s_mov_b32 s99, 0')
        A('L_kloop:')
        A('s_cmp_lg_u32 s99, 3')
        A('s_cbranch_scc1 L_knosw')
        A(f's_add_u32 s14, s{sV}, s34')
        A(f's_addc_u32 s15, s{sV+1}, 0')
        A(f's_mov_b32 s97, {sum(x << (4*i) for i, x in enumerate(VORD if not o["xo"] else range(8)))}')
        nxt_slice()
        A('v_mov_b32 v40, v38')
        A('v_mov_b32 v41, v39')
        ldsadd(1)
        if o['p2']:
            A('s_setprio 2')
        A('L_knosw:')

        def extract(t):
            d = 8 + 4 * (t & 1)
            A(f'v_cndmask_b32 v2, v{d}, v{d+2}, s[16:17]')
            A(f'v_cndmask_b32 v3, v{d+1}, v{d+3}, s[16:17]')
            if t & 1:
                A(f'v_add_f32_dpp v2, v2, v3 quad_perm:[1,0,3,2] {DPPM}')
            else:
                A(f'v_add_f32_dpp v2, v3, v2 quad_perm:[1,0,3,2] {DPPM}')
            A(f'v_cndmask_b32 v36, v36, v2, {sp(18+2*t)}')

        def score(i):
            self.rbf('v36')
            A(f'v_mul_f32 v36, {SCALE}, v36')
            A('v_cvt_pk_bf16_f32 v36, v36, v36')
            if i == 0:
                for x in range(6):
                    A(f'v_mov_b32 v{S+x}, v{S+x+2}')
            A(f'v_lshlrev_b32 v{S+6+i}, 16, v36')
        for n in range(48):
            k = n % 24
            t, j = k // 3, k % 3
            d = 8 + 4 * (t & 1)
            if k == 0:
                A('s_waitcnt lgkmcnt(0)')
            A(f'v_mfma_f32_16x16x32_bf16 {vr(d,4)}, {vr(RING+4*n,4)}, {vr(Q+4*j,4)}, {"0" if j == 0 else vr(d,4)}')
            if t == 7:
                A(f'ds_read_b128 {vr(Q+4*j,4)}, v51 offset:{1024*j + 128*(n//24 + 1)}')
            wait(n)
            load(n)
            balance(n)
            if o['TB'] and n == 24 + ND - 1:
                A('s_cmp_eq_u32 s99, 3')
                A(f's_cselect_b32 s44, {o["TB"]}, 0')
                A('s_or_b32 s100, s100, s44')
            if j == 0 and n > 0:
                extract((t - 1) & 7)
                if n == 24:
                    score(0)
        extract(7)
        score(1)
        A('v_add_u32 v51, 256, v51')
        A('s_add_u32 s99, s99, 1')
        A('s_cmp_lt_u32 s99, 4')
        A('s_cbranch_scc1 L_kloop')
        self.stamp(3)
        T = 8

        def tree(op, d0, d1):
            for a in (0, 1, 4, 5):
                A(f'v_permlane32_swap_b32 v{T+a}, v{T+a+2}')
            for a in (0, 1, 4, 5):
                A(f'{op} v{T+a}, v{T+a}, v{T+a+2}')
            for a in (0, 4):
                A(f'v_permlane16_swap_b32 v{T+a}, v{T+a+1}')
            A(f'{op} v{d0}, v{T}, v{T+1}')
            A(f'{op} v{d1}, v{T+4}, v{T+5}')
            for m in self.ROW16:
                for d in (d0, d1):
                    A(f'{op}_dpp v{d}, v{d}, v{d} {m} {DPPM}')
        for i in range(8):
            A(f'v_mov_b32 v{T+i}, v{S+VORD[i]}')
        tree('v_max_f32', 46, 48)
        for i in range(8):
            A(f'v_readlane_b32 s{70+i}, v{46+2*(i>>2)}, {16*(i&3)}')
        for i in range(8):
            A(f'v_subrev_f32 v{T+i}, s{70+i}, v{S+VORD[i]}')
        for i in range(8):
            A(f'v_mul_f32 v{T+i}, {LOG2E}, v{T+i}')
        for i in range(8):
            A(f'v_exp_f32 v{T+i}, v{T+i}')
        for i in range(8):
            A(f'v_cvt_pk_bf16_f32 v{S+i}, v{T+i}, v{T+i}')
        if o['t0'] >= 2:
            A(f'v_mov_b32 v61, v{T+7}')
        tree('v_add_f32', 47, 49)
        A('s_mov_b32 exec_lo, 0x00010001')
        A('s_mov_b32 exec_hi, 0x00010001')
        A('ds_write_b64 v52, v[46:47]')
        A('ds_write_b64 v52, v[48:49] offset:128')
        A('s_mov_b64 exec, 1')
        A(f'ds_add_u32 v63, v55 offset:{C_KC}')
        A('s_mov_b64 exec, -1')
        A('s_waitcnt lgkmcnt(0)')

        def pv(c):
            t = (c % 24) // 3
            b = 8 + 4 * (t & 1)
            A(f'v_mov_b32_dpp v6, v{S+c//24} row_newbcast:{t} row_mask:0xf bank_mask:0x3')
            A(f'v_mov_b32_dpp v37, v{S+c//24} row_newbcast:{8+t} row_mask:0xf bank_mask:0xc')
            A('v_or_b32 v5, v6, v37')
            for w in range(4):
                A(f'v_and_b32 v{b+w}, v5, v{42+w}')

        def pm(c):
            t, j = (c % 24) // 3, c % 3
            b = 8 + 4 * (t & 1)
            A(f'v_mfma_f32_16x16x32_bf16 {vr(Q+4*j,4)}, {vr(RING+4*(c%48),4)}, {vr(b,4)}, {"0" if t == 0 else vr(Q+4*j,4)}')

        def flush():
            A('s_mov_b64 exec, s[94:95]')
            for j in range(3):
                A(f'ds_write_b128 v62, {vr(Q+4*j,4)} offset:{256*j}')
            A('s_mov_b64 exec, 1')
            A(f'ds_add_u32 v63, v60 offset:{C_IC}')
            A('s_mov_b64 exec, -1')
            A('v_add_u32 v62, 1536, v62')
            A('v_lshlrev_b32 v60, 4, v60')

        def factor(cnt='s99'):
            top, done = self.lab('rdy'), self.lab('rdyd')
            A(f's_lshl2_add_u32 s44, s3, {L_FL + 7*16}')
            A('v_mov_b32 v2, s44')
            A(f's_mov_b32 {cnt}, {SPIN*8}')
            A(f'{top}:')
            A(f'ds_read_b32 v1, v63 offset:{C_RDY}')
            A('ds_read_b32 v46, v2')
            A('s_waitcnt lgkmcnt(0)')
            A('v_readfirstlane_b32 s96, v1')
            A('s_cmp_lg_u32 s96, 0')
            A(f's_cbranch_scc1 {done}')
            A(f's_sub_u32 {cnt}, {cnt}, 1')
            A(f's_cbranch_scc0 {top}')
            A(f'{done}:')
        A('v_mov_b32 v6, 0')
        A('v_mov_b32 v37, 0')
        LAG = 9
        assert LAG > DX

        def consume(c):
            if c % 24 == 0 and c:
                flush()
            if c % 3 == 0:
                pv(c)
            pm(c)
        c = 0
        for n in range(48):
            while c < min(2 * n + 2, 49 + n - LAG):
                consume(c)
                c += 1
            wait(n)
            load(n)
            balance(n)
        assert c == 96 - LAG
        A('s_mov_b32 s99, 0')
        A('L_vloop:')
        for i in range(6):
            A(f'v_mov_b32 v{S+i}, v{S+i+2}')
        for n in range(48):
            consume(48 + n - LAG)
            wait(n)
            load(n)
            balance(n)
            if o['t0'] >= 2 and n == 24:
                A('s_cmp_eq_u32 s99, 0')
                A('s_cbranch_scc1 L_nofac')
                factor('s47')
                A('v_mul_f32 v61, v61, v46')
                A(f'v_cvt_pk_bf16_f32 v{S+3}, v61, v61')
                A('L_nofac:')
        if o['TV']:
            A(f's_sub_u32 s101, s101, {16*o["TV"]}')
        A('s_add_u32 s99, s99, 1')
        A('s_cmp_lt_u32 s99, 2')
        A('s_cbranch_scc1 L_vloop')
        ldsadd(16)
        if o['t0'] < 2:
            factor()
        self.stamp(4)
        nxt = (c + 2) // 3
        while c < 96:
            while nxt < 32 and nxt <= (c + 2) // 3:
                pv(3 * nxt)
                nxt += 1
            if 95 - c < DX:
                A(f's_waitcnt vmcnt({95-c})')
            pm(c)
            c += 1
        self.stamp(5)
        A('s_mov_b64 exec, s[94:95]')
        for j in range(3):
            for h in range(2 if o['t0'] < 2 else 0):
                A(f'v_pk_mul_f32 {vr(Q+4*j+2*h,2)}, {vr(Q+4*j+2*h,2)}, v[46:47] op_sel_hi:[1,0]')
            A(f'ds_write_b128 v62, {vr(Q+4*j,4)} offset:{256*j}')
        A('s_mov_b64 exec, 1')
        A('ds_add_rtn_u32 v1, v63, v55')
        A('s_mov_b32 exec_lo, -1')
        A('s_mov_b32 exec_hi, 0xffff')
        for w in range(4):
            for h in range(2):
                A(f'ds_read_b128 {vr(64+8*w+4*h,4)}, v56 offset:{12288*w + 768*h}')
        A('s_waitcnt lgkmcnt(0)' if o['stamps'] else 's_waitcnt lgkmcnt(8)')
        A('v_readfirstlane_b32 s44, v1')
        if not o['t0']:
            A('s_cmp_lg_u32 s44, 3')
            A('s_cbranch_scc1 L_end')
        for w in range(4):
            A(f's_waitcnt lgkmcnt({6-2*w})')
            self.pk('add', 64 + 8 * w, 64 + 8 * w, 68 + 8 * w, n=2)
            if w:
                self.pk('add', 64, 64, 64 + 8 * w, n=2)
            elif o['t0']:
                A('s_cmp_lg_u32 s44, 3')
                A('s_cbranch_scc1 L_end')
        self.pack(2, 64, 2)
        A('v_min_u32 v2, -2, v2')
        A('v_min_u32 v3, -2, v3')
        self.mode_store('buffer_store_dwordx2 v[2:3], v57, s[4:7], 0 offen', 's96')
        ldsadd(64)
        self.stamp(6)
        if o['diag']:
            dg = o['diag']
            A('s_waitcnt lgkmcnt(0)')
            A('s_cmp_lg_u32 s2, 200')
            A('s_cbranch_scc1 L_end')
            A(f's_sub_u32 s44, s{48+2*int(dg[1])}, s{48+2*int(dg[2])}')
            A(f's_mul_i32 s44, s44, {dg[3]}')
            A('s_add_u32 s44, s44, 10000')
            A('L_dg:')
            A('s_memrealtime s[46:47]')
            A('s_waitcnt lgkmcnt(0)')
            A('s_sub_u32 s46, s46, s48')
            A('s_cmp_lt_u32 s46, s44')
            A('s_cbranch_scc1 L_dg')
        self.dump_stamps(0)
        A('L_end:')
        A('s_endpgm')

    WR = 128

    def dma_addr(self, ptr, rowbase_s, stride, colb_s):
        A = self.A
        A(f's_mul_i32 s10, {rowbase_s}, {stride}')
        A(f's_add_u32 s10, s10, {colb_s}')
        A(f's_add_u32 s10, s{ptr}, s10')
        A(f's_addc_u32 s11, s{ptr+1}, 0')
        A(f'v_mul_u32_u24 v1, {stride}, v18')
        A('v_lshl_add_u32 v10, v19, 4, v1')
        A('v_xor_b32 v2, 4, v19')
        A('v_lshl_add_u32 v12, v2, 4, v1')
        A(f'v_add_u32 v12, {8*stride}, v12')
        A('v_mov_b32 v11, 0')
        A('v_mov_b32 v13, 0')
        A('v_lshl_add_u64 v[10:11], v[10:11], 0, s[10:11]')
        A('v_lshl_add_u64 v[12:13], v[12:13], 0, s[10:11]')

    def dma_issue(self, NS, stride, pol, DH, burst=0, cond=0, s0=0, jump=None, hold=0, mid=(0, None), nobar=None):
        A = self.A
        A(f's_mov_b32 s10, {16*stride}')
        A('s_mov_b32 s11, 0')
        self.stamp(4, 1)
        A(f's_add_u32 m0, s37, {4096*s0}')
        for i in range(4 * (NS - s0)):
            a = 10 + 2 * (i & 1)
            if i and i == mid[0]:
                mid[1]()
            if jump and i + 4 * s0 in (16, 17):
                A(f'v_lshl_add_u64 {vr(a,2)}, {vr(a,2)}, 0, {jump}')
            if i >= DH and i >= burst:
                if cond:
                    l = self.lab('np')
                    A(f's_cbranch_vccz {l}')
                A(f's_waitcnt vmcnt({DH-1})')
                if cond:
                    A(f'{l}:')
            A(f'global_load_lds_dwordx4 {vr(a,2)}, off {pol}')
            A('s_add_u32 m0, m0, 1024')
            A(f'v_lshl_add_u64 {vr(a,2)}, {vr(a,2)}, 0, s[10:11]')
            if self.o['hold'] and s0 == 0 and i + 1 == min(hold or self.o['hold'], 4 * NS):
                l = self.lab('nb')
                A(nobar or f's_cmp_lg_u32 s39, {L_RED}')
                A(f's_cbranch_scc1 {l}')
                A('s_barrier')
                A(f'{l}:')

    def tr_addr(self, worder):
        A = self.A
        A('v_bfe_u32 v1, v0, 2, 2')
        A('v_and_b32 v2, 3, v0')
        if worder == 2:
            A('v_lshl_add_u32 v3, v20, 2, v1')
            A('v_lshrrev_b32 v4, 1, v1')
            A('v_lshrrev_b32 v5, 1, v20')
        elif not worder:
            A('v_lshl_add_u32 v3, v20, 3, v1')
            A('v_lshrrev_b32 v4, 1, v1')
            A('v_and_b32 v5, 1, v20')
        else:
            A('v_lshlrev_b32 v3, 1, v20')
            A('v_lshl_add_u32 v3, v1, 3, v3')
            A('v_and_b32 v4, 1, v20')
            A('v_and_b32 v5, 1, v1')
        A('v_lshl_add_u32 v4, v5, 1, v4')
        A('v_lshlrev_b32 v3, 7, v3')
        A('v_lshl_add_u32 v3, v2, 3, v3')
        A('v_add_u32 v3, s37, v3')
        for ct in range(4):
            A(f'v_xor_b32 v5, {ct}, v4')
            A(f'v_lshl_add_u32 v{14+ct}, v5, 5, v3')

    def tr_read(self, NS, hfoff, extra=0, s0=0, WR=128):
        A = self.A
        self.stamp(1, 1)
        for s in range(s0, NS):
            A(f's_waitcnt vmcnt({4*(NS-1-s)+extra})')
            if s in (0, NS - 1):
                self.stamp(2 if s == 0 else 3, 1)
            for ct in range(4):
                for hf in range(2):
                    A(f'ds_read_b64_tr_b16 {vr(WR+16*s+4*ct+2*hf,2)}, v{14+ct} offset:{4096*s+hfoff*hf}')
        A('s_waitcnt lgkmcnt(0)')

    def dense_addr(self, dst, base, esz, k='v23'):
        A = self.A
        sh = 1 if esz == 2 else 2
        A(f'v_lshrrev_b32 v1, 6, {k}')
        A('v_lshl_add_u32 v1, v1, 1, v22')
        A('v_lshlrev_b32 v1, 6, v1')
        A(f'v_and_b32 v2, 63, {k}')
        A(f'v_add_lshl_u32 {dst}, v1, v2, {sh}')
        if base:
            A(f'v_add_u32 {dst}, {base}, {dst}')

    def mfma_std(self, act, NS=5, shadow=(), per=2, hook=(0, None)):
        A = self.A
        shadow = list(shadow)
        for s in range(NS):
            cur = act if s == 0 else 112 + 4 * (s & 1)
            for ct in range(4):
                d = vr(96 + 4 * ct, 4)
                A(f'v_mfma_f32_16x16x32_bf16 {d}, {vr(self.WR+16*s+4*ct,4)}, {vr(cur,4)}, {"0" if s == 0 else d}')
                if 4 * s + ct + 1 == hook[0]:
                    hook[1]()
                if s + 1 < NS and ct < 2:
                    for i in (2 * ct, 2 * ct + 1):
                        A(f'v_mov_b32_dpp v{112+4*((s+1)&1)+i}, v{act+i} row_shl:{2*(s+1)} {DPPM}')
                else:
                    for i in range(1 if s + 1 == NS and len(shadow) < 5 else per):
                        if shadow:
                            A(shadow.pop(0))
        for x in shadow:
            A(x)

    def red_addr(self):
        A = self.A
        A('s_lshl_b32 s10, s38, 9')
        A('s_add_u32 s10, s10, s39')
        A('v_lshlrev_b32 v1, 8, v22')
        A('v_lshl_add_u32 v1, v20, 4, v1')
        A('v_add_u32 v24, s10, v1')
        A('v_lshl_add_u32 v25, v0, 3, s39')
        A('s_lshr_b32 s10, s39, 9')
        A(f's_add_u32 s10, s10, {L_CNT + 4 - (L_RED >> 9)}')
        A('v_mov_b32 v26, s10')
        A('v_mov_b32 v27, 1')
        A('s_mov_b32 s45, 3')

    def arrive(self, notlast, reads=None, nreads=0, defer=False):
        A = self.A
        A('s_mov_b64 exec, 1')
        A('ds_add_rtn_u32 v1, v26, v27')
        A('s_mov_b64 exec, -1')
        if reads:
            reads()
        A(f's_waitcnt lgkmcnt({0 if self.o["stamps"] else nreads})')
        A('v_readfirstlane_b32 s8, v1')
        if not (defer and self.o['db']):
            self.lastonly(notlast)

    def lastonly(self, notlast, deferred=False):
        if deferred and not self.o['db']:
            return
        self.A('s_cmp_lg_u32 s8, s45')
        self.A(f's_cbranch_scc1 {notlast}')

    def probe(self):
        A = self.A
        if self.o['sel'] >= 0:
            return
        skip, top = self.lab('noprobe'), self.lab('probe')
        A('s_cmp_lg_u32 s38, 0')
        A(f's_cbranch_scc1 {skip}')
        A('s_lshr_b32 s10, s2, 6')
        A('s_lshl_b32 s10, s10, 14')
        A('s_and_b32 s11, s2, 63')
        A('s_lshl_b32 s11, s11, 7')
        A('s_add_u32 s10, s10, s11')
        A(f's_add_u32 s10, s10, {H_PRB}')
        A(f's_add_u32 s10, s{sWS}, s10')
        A(f's_addc_u32 s11, s{sWS+1}, 0')
        A('s_mov_b32 s12, -1')
        A('s_mov_b32 s13, -1')
        A(f's_mov_b32 s9, {self.o["NP"]}')
        A(f'{top}:')
        for c in range(2):
            A('s_memtime s[32:33]')
            A('s_waitcnt lgkmcnt(0)')
            A(f's_load_dword s8, s[10:11], {8192*c} glc')
            A('s_waitcnt lgkmcnt(0)')
            A('s_memtime s[34:35]')
            A('s_waitcnt lgkmcnt(0)')
            A('s_sub_u32 s8, s34, s32')
            A(f's_min_u32 s{12+c}, s{12+c}, s8')
        A('s_sub_u32 s9, s9, 1')
        A('s_cmp_lg_u32 s9, 0')
        A(f's_cbranch_scc1 {top}')
        A('s_cmp_lt_u32 s13, s12')
        A('s_cselect_b32 s8, 8192, 0')
        A(f'v_mov_b32 v1, {L_CNT+16}')
        A('v_mov_b32 v2, s8')
        A('ds_write_b32 v1, v2')
        A(f'{skip}:')

    def get_sel(self):
        A = self.A
        if self.o['sel'] >= 0:
            A(f's_mov_b32 s47, {8192*self.o["sel"]}')
            return
        A(f'v_mov_b32 v1, {L_CNT+16}')
        A('ds_read_b32 v1, v1')
        A('s_waitcnt lgkmcnt(0)')
        A('v_readfirstlane_b32 s47, v1')
        A('s_and_b32 s47, s47, 8192')
        if self.o['stamps']:
            A('s_mov_b32 s60, s47')

    def wake(self, level, add=True, both=True, sleep=None):
        A = self.A
        top, done = self.lab('wake'), self.lab('awake')
        A(f'v_mov_b32 v1, {L_CNT+24}')
        if add:
            A('v_mov_b32 v2, 1')
            A('s_mov_b64 exec, 1')
            A('ds_add_u32 v1, v2')
            A('s_mov_b64 exec, -1')
        A(f's_mov_b32 s9, {SPIN*8}')
        A(f'{top}:')
        A('ds_read_b64 v[2:3], v1')
        A('s_waitcnt lgkmcnt(0)')
        if both:
            A('v_lshrrev_b32 v2, 2, v2')
            A('v_mul_u32_u24 v3, v2, v3')
        A(f'v_cmp_gt_u32 vcc, {level}, v3')
        A(f's_cbranch_vccz {done}')
        A(f's_sleep {sleep or self.o["wks"]}')
        A('s_sub_u32 s9, s9, 1')
        A(f's_cbranch_scc0 {top}')
        A(f'{done}:')

    def midwait(self):
        if self.o['p2']:
            self.A('s_setprio 0')
        self.wake(1, add=False, both=False, sleep=16)
        self.flags_addr('v8', True)
        self.flags_wait('v8', 'v9')

    def tail_begin(self, name):
        A = self.A
        A('s_mov_b32 s46, 8192')
        self.stamp(1)
        A('s_mov_b32 s6, 0')
        A('s_mov_b32 s30, 0')
        A('s_mov_b32 s45, 0')
        A('v_mov_b32 v27, 0')
        A(f'{name}:')
        self.stamp(2)

    def hbar(self, sleep=0):
        A = self.A
        top, done = self.lab('hbar'), self.lab('hbard')
        A(f'v_mov_b32 v1, {L_CNT+12}')
        A('v_mov_b32 v2, 1')
        A('s_mov_b64 exec, 1')
        A('ds_add_u32 v1, v2')
        A('s_mov_b64 exec, -1')
        A(f's_mov_b32 s9, {SPIN*8}')
        A(f'{top}:')
        A('ds_read_b32 v2, v1')
        A('s_waitcnt lgkmcnt(0)')
        A('v_cmp_ne_u32 vcc, 4, v2')
        A(f's_cbranch_vccz {done}')
        if sleep:
            A(f's_sleep {sleep}')
        A('s_sub_u32 s9, s9, 1')
        A(f's_cbranch_scc0 {top}')
        A(f'{done}:')

    def merge_call(self, ty):
        A = self.A
        A(f's_mov_b32 s24, {ty}')
        A('s_cmp_eq_u32 s38, 3')
        A('s_cbranch_scc1 L_merge')
        A(f'L_back{ty}:')

    def tail_end(self, name, ty, level, late=None, llevel=128):
        A = self.A
        l = self.lab('real')
        A('s_cmp_lg_u32 s45, 0')
        A(f's_cbranch_scc1 {l}')
        A('s_mov_b64 exec, -1')
        A(f's_mov_b32 s6, {H_END}')
        A('s_mov_b32 s30, 2560')
        A('s_mov_b32 s45, 3')
        A('v_mov_b32 v27, 1')
        A('s_waitcnt vmcnt(0)')
        self.merge_call(ty)
        if late:
            self.wake(llevel)
            self.stamp(1)
            late()
        else:
            self.wake(level)
        A(f's_branch {name}')
        A(f'{l}:')
        self.dump_stamps(0x20000)
        A('s_endpgm')

    def red_write_std(self, nt=4, off=0):
        A = self.A
        A('s_mov_b32 exec_lo, 0x00030003')
        A('s_mov_b32 exec_hi, 0x00030003')
        for ct in range(nt):
            A(f'ds_write_b128 v24, {vr(96+4*ct,4)} offset:{64*ct+off}')

    def red_read(self, dst, addr='v25', off=0):
        A = self.A
        for w in range(4):
            A(f'ds_read_b64 {vr(dst+2*w,2)}, {addr} offset:{512*w+off}')

    def red_sum(self, dst):
        self.pk('add', dst, dst, dst + 4, n=2)
        self.pk('add', dst, dst, dst + 2, n=1)

    def publish_bf16(self, base):
        A = self.A
        self.red_read(96)
        A('s_lshl_b32 s10, s40, 8')
        A(f's_add_u32 s10, s10, {base}')
        A('v_lshl_add_u32 v1, v0, 2, s10')
        A('s_waitcnt lgkmcnt(0)')
        self.red_sum(96)
        A('v_cvt_pk_bf16_f32 v2, v96, v97')
        A('v_min_u32 v2, -2, v2')
        A('buffer_store_dword v2, v1, s[4:7], 0 offen sc1')
        A('s_mov_b64 exec, 1')
        A('ds_add_u32 v26, v27')
        A('s_mov_b64 exec, -1')

    def ln_scalars(self, mean, var):
        A = self.A
        A(f'v_cvt_pk_bf16_f32 v1, {mean}, {var}')
        A(f'v_and_b32 {var}, 0xffff0000, v1')
        A(f'v_add_f32 {var}, {f2u(1e-5)}, {var}')
        self.rbf(var)
        A(f'v_sqrt_f32 {var}, {var}')
        A(f'v_lshlrev_b32 {mean}, 16, v1')
        self.rbf(var)
        A(f'v_rcp_f32 {var}, {var}')

    def helper(self):
        A = self.A
        A('L_helper:')
        if self.o['ec']:
            A(f's_setprio {self.o["prio"]}')
            A('s_lshl_b32 s10, s3, 8')
            A('s_add_u32 s10, s10, s2')
            A('s_sub_u32 s10, s10, 1024')
            A('s_cmp_lt_u32 s10, 40')
            A('s_cbranch_scc1 L_clear')
            A('L_help2:')
        A('s_getpc_b64 s[92:93]')
        A('L_pc:')
        A('s_lshr_b32 s8, s2, 3')
        A('s_lshl2_add_u32 s8, s8, s3')
        A(f's_lshl_b32 s8, s8, {6 if self.o["pf"] > 2 else 7}')
        for i in range(self.o['pf']):
            if i:
                A(f's_add_u32 s8, s8, {8192 if self.o["pf"] > 2 else 16384}')
                A('s_min_u32 s8, s8, L_tab-L_pc')
            A('s_load_dword s9, s[92:93], s8')
        A('s_add_u32 s92, s92, L_tab-L_pc')
        A('s_addc_u32 s93, s93, 0')
        A('s_lshl_b32 s8, s2, 2')
        A('s_load_dword s36, s[92:93], s8')
        A(f's_setprio {self.o["prio"]}')
        A('s_sub_u32 s38, s3, 4')
        A('s_mul_i32 s37, s38, 24576')
        A(f's_mov_b32 s39, {L_RED}')
        A(f'v_mov_b32 v1, {L_CNT}')
        A('v_mov_b32 v2, 0')
        A('v_mov_b32 v3, 0')
        A('ds_write_b64 v1, v[2:3]')
        for o in (8, 16, 24, 32, 40):
            A(f'ds_write_b64 v1, v[2:3] offset:{o}')
        A('v_lshrrev_b32 v18, 3, v0')
        A('v_lshrrev_b32 v20, 4, v0')
        A('v_and_b32 v1, 1, v20')
        A('v_lshlrev_b32 v1, 1, v1')
        A('v_and_b32 v2, 7, v0')
        A('v_xor_b32 v19, v1, v2')
        A('v_and_b32 v22, 1, v0')
        A('v_bfe_u32 v1, v0, 1, 3')
        A('v_min_u32 v1, 4, v1')
        A('v_lshlrev_b32 v1, 5, v1')
        A('v_lshl_add_u32 v21, v20, 3, v1')
        A('s_mul_i32 s41, s38, 160')
        A('v_add_u32 v23, s41, v21')
        A('s_mov_b32 s16, 0x03ff03ff')
        A('s_mov_b32 s17, 0x03ff03ff')
        A('s_waitcnt lgkmcnt(0)')
        if not self.o['hold']:
            A('s_barrier')
        self.ws_srd()
        if not self.o['ec']:
            A('s_bitcmp1_b32 s36, 28')
            A('s_cbranch_scc1 L_clear')
        A('L_job:')
        A('s_and_b32 s10, s36, 15')
        A('s_bfe_u32 s40, s36, 0x80004')
        A('s_lshr_b32 s36, s36, 12')
        A('s_and_b32 s36, s36, 0xfff')
        for ty, l in ((T_M, 'L_M'), (T_Q, 'L_Q'), (T_W, 'L_W'), (T_F, 'L_F'), (T_D, 'L_D')):
            A(f's_cmp_eq_u32 s10, {ty}')
            A(f's_cbranch_scc1 {l}')
        A('s_branch L_idle')
        A('L_next:')
        if self.o['pw']:
            A('s_cmp_eq_u32 s36, 0')
            A('s_cbranch_scc1 L_idle')
            self.lwait(4, lambda: A('s_cmp_ge_u32 s8, 5'), 2)
        A('s_add_u32 s39, s39, 2048')
        A('s_branch L_job')
        A('L_clear:')
        if self.o['ec']:
            A('s_waitcnt lgkmcnt(0)')
            self.ws_srd()
        else:
            A('s_bfe_u32 s10, s36, 0x40018')
            A('s_lshl2_add_u32 s10, s10, s38')
        for i in range(4):
            A(f'v_mov_b32 v{4+i}, -1')
        A('s_mov_b32 s11, 4096')
        A('s_cmp_ge_u32 s10, 8')
        A('s_cbranch_scc1 L_clrB')
        A('s_mul_i32 s12, s10, 5120')
        A('v_lshl_add_u32 v1, v0, 4, s12')
        for k in range(0 if self.o['xc'] & 1 else 5):
            A(f'buffer_store_dwordx4 v[4:7], v1, s[4:7], {"s11" if k >= 4 else "0"} offen offset:{1024*(k&3)} sc1')
        A('s_branch L_clrF')
        A('L_clrB:')
        assert H_TS == 8 * 5120 and H_CLR - H_TS <= 12 * 32768
        A('s_add_u32 s12, s10, 32')
        A('s_lshl_b32 s12, s12, 10')
        A('v_lshl_add_u32 v1, v0, 4, s12')
        A(f's_mov_b32 s6, {H_END if self.o["ca"] else H_CLR}')
        used = lambda kb: not (H_X2 <= kb * 1024 < H_OP) or (kb & 7) < (3 + bool(self.o['wt']) if kb * 1024 < H_ACT else 6 if kb * 1024 < H_Y else 5)
        for i in range(30 if self.o['ca'] else 1 if self.o['xc'] & 2 else 12):
            m = sum(used(40 + 32 * i + c) << c for c in range(32))
            if self.o['cs'] and m != 0xffffffff:
                l = self.lab('nc')
                A('s_sub_u32 s12, s10, 8')
                A(f's_bitcmp1_b32 {m}, s12')
                A(f's_cbranch_scc0 {l}')
                A('buffer_store_dwordx4 v[4:7], v1, s[4:7], 0 offen sc1')
                A(f'{l}:')
            else:
                A('buffer_store_dwordx4 v[4:7], v1, s[4:7], 0 offen sc1')
            A('v_add_u32 v1, 32768, v1')
        A('s_add_u32 s10, s10, 24')
        A(f's_mov_b32 s6, {H_END}')
        A('L_clrF:')
        A('s_lshl_b32 s10, s10, 2')
        A('v_mov_b32 v1, s10')
        A('s_waitcnt vmcnt(0)')
        A('s_mov_b64 exec, 1')
        A(f'global_store_dword v1, v4, {sp(sDBG)} sc1')
        A('s_mov_b64 exec, -1')
        A('s_branch L_help2' if self.o['ec'] else 's_branch L_job')

        A('L_M:')
        A('v_mul_u32_u24 v1, 640, v22')
        A('v_add_lshl_u32 v1, v1, v23, 1')
        A(f'global_load_dwordx4 v[28:31], v1, {sp(sC)}')
        A('s_lshl_b32 s12, s40, 7')
        self.dma_addr(sWM, 's41', 7680, 's12')
        A(f's_cmp_lg_u32 s39, {L_RED}')
        A('s_cselect_b64 vcc, -1, 0')
        self.dma_issue(5, 7680, 'nt', self.o['DM2'], cond=1, nobar='s_cmp_lt_u32 s40, 20' if self.o['mh'] else None)
        self.tr_addr(False)
        self.red_addr()
        A('s_waitcnt vmcnt(20)')
        self.unpack(32, 28, 4)
        for i in range(8):
            self.silu(f'v{32+i}', 'v4', 'v5')
        self.pack(28, 32, 4)
        self.flags_addr('v8', False)
        A(f'global_load_dword v9, v8, {sp(sDBG)} sc1')
        self.tr_read(5, 512, extra=1)
        self.stamp(1)
        self.mfma_std(28)
        self.red_write_std()
        self.arrive('L_Mdone')
        ok = self.lab('fok')
        A('s_waitcnt vmcnt(0)')
        A('v_cmp_eq_u32 vcc, 0, v9')
        A(f's_cbranch_vccz {ok}')
        self.flags_wait('v8', 'v9')
        A(f'{ok}:')
        self.publish_bf16(H_MOD)
        if self.o['stamps']:
            self.stamp(2)
            A('s_cmp_lt_u32 s40, 20')
            A('s_cbranch_scc0 L_next')
            self.dump_stamps(0x10000)
            A('s_mov_b64 exec, -1')
        A('L_Mdone:')
        if self.o['mh']:
            assert JT == 5 and self.o['hold']
            A('s_cmp_lt_u32 s40, 20')
            A('s_cbranch_scc0 L_next')
            A('s_barrier')
        A('s_branch L_next')

        A('L_Q:')
        xl = self.o['xl']

        def xload():
            A('v_mul_u32_u24 v1, 640, v22')
            A('v_add_lshl_u32 v2, v1, v23, 1')
            A('v_add_lshl_u32 v1, v1, v21, 1')
            A(f'global_load_dwordx4 v[28:31], v2, {sp(sX)}')
            for w in range(4):
                A(f'global_load_dwordx4 {vr(32+4*w,4)}, v1, {sp(sX)} offset:{320*w}')
        if not xl:
            xload()
        A('s_lshl_b32 s12, s40, 7')
        self.dma_addr(sWQ, 's41', 12288, 's12')
        self.dma_issue(5, 12288, 'nt', self.o['DQ'], mid=(xl, xload))
        self.tr_addr(False)
        self.red_addr()
        A(f's_waitcnt vmcnt({20-xl})')
        self.unpack(48, 32, 16)
        self.unpack(32, 28, 4)
        self.pk('add', 80, 48, 64, n=8)
        self.pk('add', 80, 80, 88, n=4)
        self.pk('add', 80, 80, 84, n=2)
        self.pk('add', 80, 80, 82, n=1)
        A('v_add_f32 v6, v80, v81')
        A('v_cndmask_b32 v6, 0, v6, s[16:17]')
        self.rowred('v_add_f32', 'v6', self.ROWPAR)
        self.xrow('v_add_f32', 'v6', 'v1')
        A(f'v_mul_f32 v6, {f2u(1/640)}, v6')
        A('v_mov_b32 v8, 0')
        for i in range(32):
            A(f'v_sub_f32 v1, v{48+i}, v6')
            A('v_fmac_f32 v8, v1, v1')
        A('v_cndmask_b32 v8, 0, v8, s[16:17]')
        self.rowred('v_add_f32', 'v8', self.ROWPAR)
        self.xrow('v_add_f32', 'v8', 'v1')
        A(f'v_mul_f32 v8, {f2u(1/640)}, v8')
        self.ln_scalars('v6', 'v8')
        self.pk('add', 32, 32, 6, bstep=0, mods='op_sel_hi:[1,0] neg_lo:[0,1] neg_hi:[0,1]')
        self.rbf8(32, 28)
        self.pk('mul', 32, 32, 8, bstep=0, mods='op_sel_hi:[1,0]')
        self.rbf8(32, 28)
        self.flags_addr('v8', False)
        A(f'global_load_dword v9, v8, {sp(sDBG)} sc1')
        self.tr_read(5, 512, extra=1)
        ok = self.lab('fok')
        A('s_waitcnt vmcnt(0)')
        A('v_cmp_eq_u32 vcc, 0, v9')
        A(f's_cbranch_vccz {ok}')
        self.flags_wait('v8', 'v9')
        A(f'{ok}:')
        self.dense_addr('v8', H_MOD, 2)
        self.stamp(1)
        if self.o['NG']:
            if self.o['g3']:
                A('s_and_b32 s10, s40, 7')
                A('s_cmp_eq_u32 s10, 3')
                A('s_cbranch_scc1 L_Qgo')
            self.lwait(20, lambda: A(f's_cmp_ge_u32 s8, {self.o["gc"]}'), 4)
            A('L_Qgo:')

        def ld():
            A('buffer_load_dwordx4 v[40:43], v8, s[4:7], 0 offen sc1')
            A('buffer_load_dwordx4 v[44:47], v8, s[4:7], 0 offen offset:2560 sc1')
        if self.o['pp']:
            for r in range(40, 48):
                A(f'v_mov_b32 v{r}, -1')
            self.poll(ld, range(40, 48), 'v1', mask=True, sleep=self.o['psl'], fly=2 * self.o['pp'])
        else:
            self.poll(ld, range(40, 48), 'v1', mask=True, sleep=self.o['qsl'])
        self.stamp(2)
        self.unpack(56, 44, 4)
        for i in range(4):
            A(f'v_pk_add_f32 {vr(56+2*i,2)}, {vr(56+2*i,2)}, 1.0 op_sel_hi:[1,0]')
        self.rbf8(56, 28)
        self.pk('mul', 32, 32, 56)
        self.rbf8(32, 28)
        self.unpack(48, 40, 4)
        self.pk('add', 32, 32, 48)
        self.pack(28, 32, 4)
        self.mfma_std(28)
        self.red_write_std()
        self.arrive('L_next')
        self.publish_bf16(H_Q)
        if self.o['stamps']:
            self.stamp(3)
            self.dump_stamps(0x10000)
            A('s_mov_b64 exec, -1')
        A('s_branch L_next')

        A('L_W:')
        EF, ED = self.o['EF'], self.o['ED']
        WP, WS = 64, 160
        A('s_and_b32 s42, s40, 7')
        A('s_lshr_b32 s43, s40, 3')
        A('s_sub_u32 s13, 3, s38')
        A('s_lshl3_add_u32 s13, s13, s42')
        A('s_mul_i32 s13, s13, 192')
        A('s_lshl_b32 s12, s43, 7')
        self.dma_addr(sWO, 's13', 1280, 's12')
        A(f's_cmp_lg_u32 s39, {L_RED}')
        A('s_cselect_b64 vcc, -1, 0')
        self.dma_issue(6, 1280, 'nt', self.o['DW2'], cond=1)
        self.tr_addr(1)
        self.red_addr()
        A('s_mul_i32 s10, s42, 12288')
        A(f's_add_u32 s10, s10, {H_OP}')
        A('v_bfe_u32 v1, v0, 1, 3')
        A('v_mul_u32_u24 v1, 384, v1')
        A('v_lshl_add_u32 v1, v22, 4, v1')
        A('v_lshl_add_u32 v1, v20, 5, v1')
        A('v_add_u32 v28, s10, v1')
        A('s_lshl_b32 s10, s38, 9')
        A('s_add_u32 s10, s10, s39')
        A('v_lshl_add_u32 v24, v0, 2, s10')
        A('s_lshr_b32 s10, s42, 1')
        A('s_lshl_b32 s10, s10, 14')
        A('s_and_b32 s11, s42, 1')
        A('s_mul_i32 s11, s11, 2560')
        A('s_add_u32 s10, s10, s11')
        A('s_lshl_b32 s11, s43, 8')
        A('s_add_u32 s10, s10, s11')
        A(f's_add_u32 s10, s10, {H_Y}')
        A('v_bfe_u32 v1, v0, 2, 2')
        A('v_bfe_u32 v3, v0, 4, 1')
        A('v_lshl_add_u32 v1, v1, 1, v3')
        A('v_lshrrev_b32 v3, 5, v0')
        A('v_lshl_add_u32 v1, v1, 1, v3')
        A('v_and_b32 v3, 3, v0')
        A('v_lshl_add_u32 v1, v1, 2, v3')
        A('v_lshl_add_u32 v29, v1, 2, s10')
        A('s_lshl_b32 s10, s42, 10')
        A(f's_add_u32 s10, s10, {H_FLG}')
        A('v_and_b32 v1, 31, v0')
        A('v_lshl_add_u32 v30, v1, 2, s10')
        self.tr_read(6, 128, WR=WP)
        self.hbar(sleep=8)
        AF = 8
        dq = lambda ct, p: 32 + 8 * ct + 4 * p

        def post(ct):
            d = 32 + 8 * ct
            r = [f'v_add_f32 v{d}, v{d}, v{d+2}', f'v_add_f32 v{d+5}, v{d+5}, v{d+7}', f'v_add_f32 v{d}, v{d}, v{d+5}']
            if ct & 1:
                r += [f'v_permlane16_swap_b32 v{d-8}, v{d}', f'v_add_f32 v{d}, v{d-8}, v{d}']
            return r
        A('s_mov_b32 s46, 8192')
        A('s_mov_b32 s6, 0')
        A('s_mov_b32 s45, 0')
        A('s_mov_b32 s44, 0')
        A('s_mov_b32 s47, 0')
        A('v_mov_b32 v27, 0')
        wt = self.o['wt']
        if wt:
            A('s_mov_b32 s25, 1')
            A('s_lshl_b32 s10, s42, 7')
            A(f's_add_u32 s10, s10, {H_X2 + 3072}')
            A('v_mov_b32 v31, s10')
            A(f'v_mov_b32 v21, {L_CNT}')
        A('L_Wt:')
        self.stamp(2)

        def mf(ct, s):
            d = vr(dq(ct, s & 1), 4)
            return f'v_mfma_f32_16x16x32_bf16 {d}, {vr(AF+4*(s>>1),4)}, {vr(WS+16*s+4*ct,4)}, {"0" if s < 2 else d}'
        self.spoll([(f'buffer_load_dwordx4 {vr(AF+4*u,4)}, v28, s[4:7], s47 offen offset:{128*u} sc1', AF + 4 * u) for u in range(3)],
                   [[mf(0, 2 * u), mf(0, 2 * u + 1)] for u in range(3)])
        self.stamp(3)
        sh = []
        for ct in range(1, 4):
            for s in range(6):
                A(mf(ct, s))
                k = 6 * (ct - 1) + s
                if wt and k == 0:
                    A('s_cmp_lg_u32 s25, 0')
                    A('s_cbranch_scc1 L_Wn1')
                    A('s_mov_b64 exec, 1')
                    A('ds_add_rtn_u32 v22, v21, v27 offset:44')
                    A('s_mov_b64 exec, -1')
                    A('L_Wn1:')
                if wt and k == wt:
                    A('s_cbranch_scc1 L_Wn2')
                    A('s_waitcnt lgkmcnt(0)')
                    A('v_readfirstlane_b32 s10, v22')
                    A('s_cmp_lg_u32 s10, 3')
                    A('s_cbranch_scc1 L_Wn2')
                    A('s_mov_b64 exec, 1')
                    A('buffer_store_dword v27, v31, s[4:7], 0 offen sc1')
                    A('buffer_store_dword v27, v31, s[4:7], s46 offen sc1')
                    A('s_mov_b64 exec, -1')
                    A('L_Wn2:')
                if s == 1 and ct >= 2:
                    sh += post(ct - 2)
                if sh:
                    A(sh.pop(0))
        for x in sh + post(2) + post(3):
            A(x)
        A(f's_sub_u32 s47, s47, {OPI}')
        A('s_sub_u32 s44, s44, 1')
        A('v_permlane32_swap_b32 v40, v56')
        A('v_add_f32 v40, v40, v56')
        A('v_add_f32 v40, v40, v4')
        A('ds_write_b32 v24, v40')
        A('v_mov_b32 v4, v5')
        A('v_subrev_u32 v24, 256, v24')
        A('s_cbranch_scc0 L_Wt2')
        self.arrive('L_end', lambda: self.red_read(AF), 4, True)
        A('s_waitcnt lgkmcnt(0)')
        self.red_sum(AF)
        self.lastonly('L_end', True)
        A(f'v_cvt_pk_bf16_f32 v2, v{AF}, v{AF+1}')
        A('v_min_u32 v2, -2, v2')
        A('buffer_store_dword v2, v29, s[4:7], 0 offen sc1')
        A('buffer_store_dword v2, v29, s[4:7], s46 offen sc1')
        self.stamp(4)
        A('s_cmp_lg_u32 s45, 0')
        A('s_cbranch_scc1 L_Wend')
        A(f's_mov_b32 s6, {H_END}')
        A('s_mov_b32 s45, 3')
        A('v_mov_b32 v27, 1')
        A('v_add_u32 v24, 512, v24')
        A('v_mov_b32 v4, 0')
        A('v_mov_b32 v5, 0')
        self.midwait()
        self.merge_call(T_W)
        A('s_cmp_eq_u32 s38, 3')
        A('s_cbranch_scc1 L_Wsh')
        if self.o['xg']:
            A('s_branch L_Wsh')
        A('s_mov_b32 s44, s38')
        A('L_Wp:')
        A('s_lshl2_add_u32 s12, s44, 2')
        self.item_wait('s12')
        self.stamp(1, 3)
        if self.o['fs0']:
            A(f's_sleep {self.o["fs0"]}')
        A('s_lshl_b32 s12, s44, 7')
        if self.o['xf'] != 1:
            self.poll(lambda: A('buffer_load_dword v2, v30, s[4:7], s12 offen sc1'), [2], 'v1', sleep=self.o['fsl'])
        self.stamp(2, 3)
        if self.o['xf'] == 2:
            A('s_mov_b32 s6, 0')
        A('s_sub_u32 s47, 7, s44')
        A(f's_mul_i32 s20, s47, {OPI}')
        for r in range(1, 4):
            A(f's_add_u32 s{20+r}, s20, {3072*r}')
        NB = 12
        pl = lambda i: A(f'buffer_load_dwordx4 {vr(WS+4*(i%NB),4)}, v28, s[4:7], s{20+i//3} offen offset:{128*(i%3)} sc1')
        for i in range(NB):
            pl(i)
        for i in range(12):
            A(f's_waitcnt vmcnt({min(NB-1, 11-i)})')
            for ct in range(4):
                for p in range(2):
                    d = vr(dq(ct, p), 4)
                    A(f'v_mfma_f32_16x16x32_bf16 {d}, {vr(WS+4*(i%NB),4)}, {vr(WP+16*(2*(i%3)+p)+4*ct,4)}, {"0" if i == 0 else d}')
            if i + NB < 12:
                pl(i + NB)
        for ct in range(4):
            for x in post(ct):
                A(x)
        A('v_permlane32_swap_b32 v40, v56')
        A('v_mov_b32 v4, v5')
        A('v_add_f32 v5, v40, v56')
        A(f's_mov_b32 s6, {H_END}')
        A('s_add_u32 s44, s44, 3')
        A('s_cmp_lt_u32 s44, 6')
        A('s_cbranch_scc1 L_Wp')
        if self.o['stamps'] == 3:
            self.stamp(3, 3)
            A('s_cmp_lg_u32 s38, 2')
            A('s_cbranch_scc1 L_Wsh')
            self.dump_stamps(0x10000)
            A('s_mov_b64 exec, -1')
        A('L_Wsh:')
        A('v_mov_b32 v6, v4')
        A('v_mov_b32 v7, v5')
        A(f's_mov_b32 s37, {3*24576}')
        self.tr_addr(1)
        self.tr_read(6, 128, WR=WS)
        A('v_mov_b32 v4, v6')
        A('v_mov_b32 v5, v7')
        self.stamp(1)
        self.wake(self.o['WL'])
        A('s_mul_i32 s47, s38, 3072')
        A(f's_add_u32 s47, s47, {OPI}')
        A('s_mov_b32 s44, 1')
        A('s_branch L_Wt')
        A('L_Wt2:')
        if wt:
            A('s_mov_b32 s25, s43')
        if self.o['w2']:
            self.wake(128, add=False, both=False, sleep=self.o['w2'])
        A('s_branch L_Wt')
        A('L_Wend:')
        self.dump_stamps(0x20000)
        A('s_endpgm')

        A('L_idle:')
        A('s_cmp_lg_u32 s38, 3')
        A('s_cbranch_scc1 L_end')
        self.midwait()
        A('s_mov_b32 s24, 0')
        A('L_merge:')
        if self.o['pt'] == 1:
            A('s_and_b32 s10, s2, 7')
            A('s_lshr_b32 s11, s2, 3')
            A('s_lshl_b32 s10, s10, 5')
            A('s_add_u32 s10, s10, s11')
            A('s_mul_i32 s10, s10, 384')
            A(f's_add_u32 s10, s{sWS}, s10')
            A(f's_addc_u32 s11, s{sWS+1}, 0')
            for j in range(2, 8):
                for k in range(3):
                    A(f's_load_dword s8, s[10:11], {H_OP + j*OPI + 128*k}')
                A('s_waitcnt lgkmcnt(0)')
        self.lwait(C_KC, lambda: A('s_cmp_eq_u32 s8, 4'), 8)
        A('v_and_b32 v96, 31, v0')
        A('v_lshlrev_b32 v1, 3, v96')
        A(f'v_add_u32 v1, {L_MLL}, v1')
        A('ds_read_b64 v[98:99], v1')
        A('s_and_b32 s34, s2, 7')
        A('s_lshr_b32 s35, s2, 3')
        A('s_lshl_b32 s10, s34, 12')
        A(f's_add_u32 s10, s10, {H_ML}')
        A('v_lshrrev_b32 v1, 1, v0')
        A('v_lshlrev_b32 v1, 7, v1')
        A('v_add_u32 v97, s10, v1')
        A('s_lshl_b32 s11, s35, 7')
        A('s_add_u32 s10, s10, s11')
        A('v_lshl_add_u32 v1, v0, 1, s10')
        A('s_getreg_b32 s32, hwreg(HW_REG_XCC_ID, 0, 4)')
        A('s_waitcnt lgkmcnt(0)')
        A('v_mov_b32 v100, v98')
        self.rowred('v_max_f32', 'v100', self.ROW16[:2])
        A('v_sub_f32 v101, v98, v100')
        A(f'v_mul_f32 v101, {LOG2E}, v101')
        A('v_exp_f32 v101, v101')
        A('v_mul_f32 v101, v101, v99')
        self.rowred('v_add_f32', 'v101', self.ROW16[:2])
        A('v_min_u32 v100, -2, v100')
        A('v_min_u32 v101, -2, v101')
        A('v_writelane_b32 v100, s32, 32')
        A('s_mov_b32 exec_lo, 0x11111111')
        A('s_mov_b32 exec_hi, 1')
        A('buffer_store_dwordx2 v[100:101], v1, s[4:7], 0 offen sc1')
        A('s_mov_b64 exec, -1')
        self.item_wait(2 + 4 * self.o['gw'])
        A('v_and_b32 v1, 1, v0')
        A('v_lshl_add_u32 v3, v1, 5, v97')

        def ld():
            A('buffer_load_dwordx4 v[48:51], v3, s[4:7], 0 offen sc1')
            A('buffer_load_dwordx4 v[52:55], v3, s[4:7], 0 offen offset:16 sc1')
            A('buffer_load_dword v56, v97, s[4:7], 0 offen offset:64 sc1')
        self.poll(ld, range(48, 57), 'v1', sleep=self.o['fsl'], mask=True)
        A('v_cmp_ne_u32 vcc, s32, v56')
        A('s_cmp_eq_u64 vcc, 0')
        A(f's_cselect_b32 s32, {2 if self.o["fast"] else 1}, 1')
        for i in range(4):
            A(f'v_mov_b32 v{64+2*i}, v{48+2*i}')

        def par(op, off):
            for m in self.ROWPAR:
                for i in range(4):
                    A(f'{op}_dpp v{off+2*i}, v{off+2*i}, v{off+2*i} {m} {DPPM}')
            for sw in ('v_permlane16_swap_b32', 'v_permlane32_swap_b32'):
                for i in range(4):
                    A(f'v_mov_b32 v{72+i}, v{off+2*i}')
                for i in range(4):
                    A(f'{sw} v{off+2*i}, v{72+i}')
                for i in range(4):
                    A(f'{op} v{off+2*i}, v{off+2*i}, v{72+i}')
        par('v_max_f32', 64)
        for i in range(4):
            A(f'v_sub_f32 v{48+2*i}, v{48+2*i}, v{64+2*i}')
            A(f'v_mul_f32 v{48+2*i}, {LOG2E}, v{48+2*i}')
            A(f'v_exp_f32 v{48+2*i}, v{48+2*i}')
            A(f'v_mul_f32 v{65+2*i}, v{48+2*i}, v{49+2*i}')
        par('v_add_f32', 65)
        A('v_lshlrev_b32 v1, 5, v0')
        A(f'v_add_u32 v1, {L_GL}, v1')
        A('s_mov_b64 exec, 3')
        A('ds_write_b128 v1, v[64:67]')
        A('ds_write_b128 v1, v[68:71] offset:16')
        A('s_mov_b64 exec, -1')
        A('v_lshrrev_b32 v1, 2, v96')
        A('v_lshlrev_b32 v1, 3, v1')
        A(f'v_add_u32 v1, {L_GL}, v1')
        A('ds_read_b64 v[100:101], v1')
        A('v_lshlrev_b32 v1, 2, v96')
        A(f'v_add_u32 v1, {L_FL}, v1')
        A(f'v_mov_b32 v2, {L_CNT}')
        A('v_mov_b32 v3, s32')
        A('s_waitcnt lgkmcnt(0)')
        A('v_sub_f32 v98, v98, v100')
        A(f'v_mul_f32 v98, {LOG2E}, v98')
        A('v_exp_f32 v98, v98')
        A('v_rcp_f32 v101, v101')
        A('v_mul_f32 v98, v98, v101')
        A('ds_write_b32 v1, v98')
        A(f'ds_write_b32 v2, v3 offset:{C_RDY}')
        self.op_addr('v102', 'v103', L_PART)
        if True:
            A(f's_add_u32 s12, s{sWS}, s44')
            A(f's_addc_u32 s13, s{sWS+1}, 0')
        A(f'v_mov_b32 v104, {L_FL}')
        A('s_lshl_b32 s10, s34, 10')
        A('s_lshl2_add_u32 s10, s35, s10')
        A(f's_add_u32 s10, s10, {H_FLG}')
        A('v_mov_b32 v105, s10')
        A('s_mov_b32 s34, 2')
        A(f's_mov_b32 s35, {7*OPI}')
        A('L_mitem:')
        def touch():
            for k in range(6):
                A(f's_add_u32 s10, s35, {64*k}')
                A('s_load_dword s11, s[12:13], s10')
        if self.o['pt'] == 2:
            A(f's_cmp_gt_u32 s35, {self.o["ptm"]*OPI}')
            A('s_cbranch_scc1 L_notouch')
            touch()
            A('L_notouch:')
        if self.o['pt'] == 4:
            A('s_sub_u32 s44, s34, 2')
            self.lwait(C_IC, lambda: (A('s_lshr_b32 s8, s8, s44'), A('s_and_b32 s8, s8, 7')), 8)
            touch()
        self.item_wait('s34')
        A('ds_read_b128 v[108:111], v104')
        for w in range(4):
            for h in range(2):
                A(f'ds_read_b128 {vr(48+8*w+4*h,4)}, v103 offset:{12288*w + 768*h}')
        A('s_waitcnt lgkmcnt(0)')
        for w in range(4):
            self.pk('add', 48 + 8 * w, 48 + 8 * w, 52 + 8 * w, n=2)
            f = vr(108 + (w & 2), 2)
            for h in range(2):
                if w == 0:
                    A(f'v_pk_mul_f32 {vr(48+2*h,2)}, {vr(48+2*h,2)}, {f} op_sel_hi:[1,0]')
                else:
                    m = 'op_sel:[0,1,0] op_sel_hi:[1,1,1]' if w & 1 else 'op_sel_hi:[1,0,1]'
                    A(f'v_pk_fma_f32 {vr(48+2*h,2)}, {vr(48+8*w+2*h,2)}, {f}, {vr(48+2*h,2)} {m}')
        self.pack(2, 48, 2)
        A('v_min_u32 v2, -2, v2')
        A('v_min_u32 v3, -2, v3')
        A('s_mov_b32 exec_hi, 0xffff')
        if self.o['xs']:
            A(f's_mov_b32 s6, {H_CLR}')
        if self.o['dt']:
            A('buffer_store_dwordx2 v[2:3], v102, s[4:7], s35 offen sc1')
        else:
            self.mode_store('buffer_store_dwordx2 v[2:3], v102, s[4:7], s35 offen', 's32')
        A(f's_mov_b32 s6, {H_END}')
        A('s_mov_b64 exec, 1')
        if self.o['pt'] == 3:
            touch()
        A('s_waitcnt vmcnt(0) lgkmcnt(0)')
        self.mode_store('buffer_store_dword v0, v105, s[4:7], 0 offen', 's32')
        A('s_mov_b64 exec, -1')
        A('v_add_u32 v103, 1536, v103')
        A('v_add_u32 v104, 16, v104')
        A('v_add_u32 v105, 128, v105')
        A('s_add_u32 s34, s34, 4')
        A(f's_sub_u32 s35, s35, {OPI}')
        A('s_cmp_lg_u32 s35, 0')
        A('s_cbranch_scc1 L_mitem')
        if self.o['t7']:
            touch()
            A('s_waitcnt lgkmcnt(0)')
        for ty in (T_W, T_F, T_D):
            A(f's_cmp_eq_u32 s24, {ty}')
            A(f's_cbranch_scc1 L_back{ty}')
        A('s_endpgm')

        A('L_F:')
        XF, GA, C1, PV, SEL = 224, 232, 240, 248, 88
        ly = 1
        A('v_lshlrev_b32 v1, 2, v20')
        if ly:
            A('s_lshl_b32 s41, s38, 7')
            A('s_mul_i32 s14, s38, -96')
            A('s_add_u32 s14, s14, 384')
            A('v_lshrrev_b32 v2, 7, v21')
            A('v_mad_u32_u24 v23, v2, s14, v21')
            A('v_add_u32 v23, s41, v23')
            A('s_mul_i32 s14, s14, 3072')
            A('s_mov_b32 s15, 0')
        A('v_sub_u32 v23, v23, v1')

        def xload():
            A('v_mul_u32_u24 v1, 640, v22')
            A('v_add_lshl_u32 v2, v1, v23, 1')
            A('v_add_lshl_u32 v1, v1, v21, 1')
            A(f'global_load_dwordx2 v[28:29], v2, {sp(sX)}')
            A(f'global_load_dwordx2 v[30:31], v2, {sp(sX)} offset:32')
            for w in range(4):
                A(f'global_load_dwordx4 {vr(32+4*w,4)}, v1, {sp(sX)} offset:{320*w}')
        if not xl:
            xload()
        A('s_mul_i32 s10, s41, 3072')
        A('s_lshl_b32 s11, s40, 6')
        A('s_add_u32 s10, s10, s11')
        A('v_mul_u32_u24 v1, 3072, v18')
        A('v_and_b32 v2, 3, v19')
        A('v_lshl_add_u32 v1, v2, 4, v1')
        A('v_add_u32 v1, s10, v1')
        A(f'v_add_u32 v2, {8*3072}, v1')
        A(f'v_mov_b32 v4, s{sWG}')
        A(f'v_mov_b32 v5, s{sWG+1}')
        A(f'v_mov_b32 v6, s{sWU}')
        A(f'v_mov_b32 v7, s{sWU+1}')
        A('v_cmp_gt_u32 vcc, 4, v19')
        A('v_cndmask_b32 v10, v6, v4, vcc')
        A('v_cndmask_b32 v11, v7, v5, vcc')
        A('v_cndmask_b32 v12, v4, v6, vcc')
        A('v_cndmask_b32 v13, v5, v7, vcc')
        A('v_add_co_u32 v10, vcc, v10, v1')
        A('v_addc_co_u32 v11, vcc, 0, v11, vcc')
        A('v_add_co_u32 v12, vcc, v12, v2')
        A('v_addc_co_u32 v13, vcc, 0, v13, vcc')
        self.dma_issue(EF, 3072, '', self.o['DF'], burst=self.o['FB'], jump='s[14:15]' if ly else None, hold=(self.o['hold'] + 1) // 2)
        self.tr_addr(2)
        self.red_addr()
        self.tr_read(EF, 2048)
        if xl:
            xload()
        A('s_waitcnt vmcnt(0)')
        self.unpack(48, 32, 16)
        self.unpack(XF, 28, 4)
        self.pk('add', 80, 48, 64, n=8)
        self.pk('add', 80, 80, 88, n=4)
        self.pk('add', 80, 80, 84, n=2)
        self.pk('add', 80, 80, 82, n=1)
        A('v_add_f32 v6, v80, v81')
        A('v_cndmask_b32 v6, 0, v6, s[16:17]')
        self.rowred('v_add_f32', 'v6', self.ROWPAR)
        self.xrow('v_add_f32', 'v6', 'v1')
        A(f'v_mul_f32 v{PV}, {f2u(1/640)}, v6')
        A(f'v_readlane_b32 s10, v{PV}, 0')
        A(f'v_readlane_b32 s11, v{PV}, 1')
        A('s_mov_b32 s18, 0')
        A('s_mov_b32 s19, -1')
        A('v_mov_b32 v1, s10')
        A('v_mov_b32 v2, s11')
        A(f'v_cndmask_b32 v{PV+2}, v1, v2, s[18:19]')
        self.probe()
        self.midwait()
        self.dense_addr('v8', H_MOD + 20 * 256, 2)
        A('v_add_u32 v9, 5120, v8')

        def ld():
            for h in range(2):
                A(f'buffer_load_dwordx2 {vr(40+2*h,2)}, v8, s[4:7], 0 offen offset:{32*h} sc1')
                A(f'buffer_load_dwordx2 {vr(44+2*h,2)}, v8, s[4:7], 0 offen offset:{2560+32*h} sc1')
                A(f'buffer_load_dwordx2 {vr(48+2*h,2)}, v9, s[4:7], 0 offen offset:{32*h} sc1')
        self.poll(ld, range(40, 52), 'v1', sleep=self.o['slp'])
        self.unpack(GA, 40, 4)
        self.unpack(C1, 48, 4)
        for i in range(4):
            A(f'v_pk_add_f32 {vr(C1+2*i,2)}, {vr(C1+2*i,2)}, 1.0 op_sel_hi:[1,0]')
        self.rbf8(C1, 80)
        X1 = 120
        self.pk('add', XF, XF, PV, bstep=0, mods='op_sel_hi:[1,0] neg_lo:[0,1] neg_hi:[0,1]')
        self.pk('mul', X1, XF, C1)
        self.pk('mul', C1, C1, GA)
        for i in range(4):
            A(f'v_mov_b32 v{84+i}, v{44+i}')

        def consts():
            for act, off in ((80, 2048), (84, 4096)):
                self.mfma_std(act)
                self.red_write_std(off=off)
                A('s_mov_b64 exec, -1')
                A('s_waitcnt lgkmcnt(0)')
        if EF == 5:
            consts()
        if ly:
            A('v_lshrrev_b32 v1, 6, v23')
            A('v_lshlrev_b32 v1, 8, v1')
            A('v_and_b32 v2, 32, v23')
            A('v_lshl_add_u32 v2, v22, 4, v2')
            A(f'v_add_u32 v1, {H_Y}, v1')
            A('v_add_u32 v208, v1, v2')
        else:
            A('v_and_b32 v3, 0xffe0, v23')
            self.dense_addr('v208', H_Y, 2, k='v3')
        A('v_lshrrev_b32 v1, 1, v20')
        A('v_lshl_add_u32 v208, v1, 14, v208')
        A('v_and_b32 v1, 1, v20')
        A('v_mul_u32_u24 v1, 2560, v1')
        A('v_add_u32 v208, v1, v208')
        A('v_lshlrev_b32 v1, 4, v22')
        A('v_mov_b32 v2, 0x3f80')
        A('v_lshlrev_b32 v1, v1, v2')
        A('v_bfe_u32 v2, v0, 1, 3')
        for w in range(8):
            A(f'v_cmp_eq_u32 vcc, {w}, v2')
            A(f'v_cndmask_b32 v{SEL+w}, 0, v1, vcc')
        self.dense_addr('v209', H_X2, 2)
        A('v_lshrrev_b32 v1, 5, v0')
        A('v_lshl_add_u32 v2, v22, 3, v1')
        A('v_lshlrev_b32 v2, 2, v2')
        A(f's_lshl3_add_u32 s10, s38, {L_ST}')
        A('v_add_u32 v210, s10, v2')
        A('v_lshlrev_b32 v2, 5, v1')
        A(f'v_add_u32 v211, {L_ST}, v2')
        A('v_and_b32 v2, 31, v0')
        A('v_lshlrev_b32 v3, 8, v1')
        A('v_lshl_add_u32 v3, v2, 2, v3')
        A('v_add_u32 v25, s39, v3')
        A('v_add_u32 v213, 1024, v25')
        A('s_lshl_b32 s10, s40, 7')
        A(f's_add_u32 s10, s10, {H_ACT}')
        A('v_lshrrev_b32 v3, 3, v2')
        A('v_lshl_add_u32 v3, v3, 1, v1')
        A('v_and_b32 v2, 7, v2')
        A('v_lshl_add_u32 v3, v3, 3, v2')
        A('v_lshl_add_u32 v212, v3, 1, s10')
        self.tail_begin('L_Ft')
        self.get_sel()
        A('s_add_u32 s20, s47, 32768')
        AC = 214

        def rd2(dst, a0, a1):
            for w in range(4):
                A(f'ds_read2_b32 {vr(dst+2*w,2)}, {a1 if w >> 1 else a0} offset0:{128*(w&1)} offset1:{128*(w&1)+32}')
        for n in range(2):
            A(f'v_add_u32 v2, {2048*(n+1)}, v25')
            A(f'v_add_u32 v3, {2048*(n+1)}, v213')
            rd2(96, 'v2', 'v3')
            A('s_waitcnt lgkmcnt(0)')
            self.pk('add', 96, 96, 100, n=2)
            A(f'v_pk_add_f32 {vr(AC+2*n,2)}, v[96:97], v[98:99]')
        Y, YL = 32, 48
        order = (0, 2, 1, 3, 4, 6, 5, 7)
        lds, work = [], []
        for n in order:
            lds.append((f'buffer_load_dwordx4 {vr(YL+4*n,4)}, v208, s[4:7], {"s20" if n >= 4 else "s47"} offen offset:{64*(n&3)} sc1', YL + 4 * n))
            d = vr(Y + 4 * ((n >> 1) & 1), 4)
            work.append([f'v_mfma_f32_16x16x32_bf16 {d}, {vr(SEL+4*(n&1),4)}, {vr(YL+4*n,4)}, {"0" if n in (0, 2) else d}'])
        if self.o['wt']:
            A('v_and_b32 v3, 7, v0')
            A('v_lshlrev_b32 v3, 7, v3')
            A(f'v_add_u32 v3, {H_X2 + 3072}, v3')
            A('s_mov_b64 exec, 0xff')
            self.poll(lambda: A('buffer_load_dword v2, v3, s[4:7], s47 offen sc1'), [2], 'v1', mask=True)
        if self.o['ft']:
            A(f'v_mov_b32 v3, {H_X2 + 2560}')
            A('s_or_b32 s25, s40, s38')
        self.spoll(lds, work, 's[16:17]', sleep=self.o['fsp'])
        self.stamp(3)
        for i in range(4):
            A(f'v_pk_fma_f32 {vr(40+2*i,2)}, {vr(Y+2*i,2)}, {vr(C1+2*i,2)}, {vr(X1+2*i,2)}')
        self.pack(28, 40, 4)
        self.stamp(4)
        sh = [f'v_pk_fma_f32 {vr(Y+2*i,2)}, {vr(Y+2*i,2)}, {vr(GA+2*i,2)}, {vr(XF+2*i,2)}' for i in range(4)]
        sh += [f'v_pk_mul_f32 v[56:57], {vr(Y,2)}, {vr(Y,2)}', f'v_pk_add_f32 v[58:59], {vr(Y,2)}, {vr(Y+2,2)}']
        for i in range(1, 4):
            sh.append(f'v_pk_fma_f32 v[56:57], {vr(Y+2*i,2)}, {vr(Y+2*i,2)}, v[56:57]')
            if i > 1:
                sh.append(f'v_pk_add_f32 v[58:59], v[58:59], {vr(Y+2*i,2)}')
        if self.o['ssh']:
            sh = []
            for i in range(8):
                sh.append(f'v_fma_f32 v{Y+i}, v{Y+i}, v{GA+i}, v{XF+i}')
                sh.append(f'v_mul_f32 v56, v{Y}, v{Y}' if i == 0 else f'v_fmac_f32 v56, v{Y+i}, v{Y+i}')
                if i:
                    sh.append(f'v_add_f32 v58, v{Y+i}, {"v58" if i > 1 else f"v{Y}"}')
        else:
            sh += ['v_add_f32 v56, v56, v57', 'v_add_f32 v58, v58, v59']
        sh += ['s_nop 0',
               'v_permlane32_swap_b32 v58, v56', 'v_add_f32 v56, v56, v58', 'v_cndmask_b32 v56, 0, v56, s[16:17]']
        sh += [f'v_add_f32_dpp v56, v56, v56 {m} {DPPM}' for m in self.ROWPAR]
        def notice():
            A('s_cmp_lg_u32 s25, 0')
            A('s_cbranch_scc1 L_Fn')
            A('s_mov_b64 exec, 1')
            A('buffer_store_dword v27, v3, s[4:7], 0 offen sc1')
            A('buffer_store_dword v27, v3, s[4:7], s46 offen sc1')
            A('s_mov_b64 exec, -1')
            A('L_Fn:')
        self.mfma_std(28, shadow=sh, per=self.o['ssh'] or 2, hook=(self.o['ft'], notice))
        if self.o['clk']:
            self.stamp(1)
        A('v_mov_b32 v57, v56')
        A('v_permlane16_swap_b32 v56, v57')
        A('v_add_f32 v56, v56, v57')
        self.red_write_std()
        A('ds_write_b32 v210, v56')

        def rd():
            A('ds_read_b128 v[56:59], v211')
            A('ds_read_b128 v[60:63], v211 offset:16')
            rd2(64, 'v25', 'v213')
            A('s_cmp_lg_u32 s40, 0')
            A('s_cbranch_scc1 L_Fnox')
            self.pk('add', 40, Y, PV, bstep=0, mods='op_sel_hi:[1,0]')
            self.pack(48, 40, 4)
            for i in range(4):
                A(f'v_min_u32 v{48+i}, -2, v{48+i}')
            A('s_mov_b64 exec, s[16:17]')
            for so in ('0', 's46'):
                A(f'buffer_store_dwordx2 v[48:49], v209, s[4:7], {so} offen sc1')
                A(f'buffer_store_dwordx2 v[50:51], v209, s[4:7], {so} offen offset:32 sc1')
            A('s_mov_b64 exec, -1')
            A('L_Fnox:')
        self.arrive('L_end', rd, 4, True)
        if self.o['clk']:
            self.stamp(2)
        A('v_pk_add_f32 v[56:57], v[56:57], v[58:59]')
        A('v_pk_add_f32 v[60:61], v[60:61], v[62:63]')
        A('v_pk_add_f32 v[56:57], v[56:57], v[60:61]')
        A(f'v_mul_f32 v56, {f2u(1/640)}, v56')
        A(f'v_mul_f32 v8, {f2u(1/640)}, v57')
        A(f'v_add_f32 v6, v{PV+2}, v56')
        A('v_fma_f32 v8, -v56, v56, v8')
        A('v_max_f32 v8, 0, v8')
        self.ln_scalars('v6', 'v8')
        A(f'v_sub_f32 v6, v{PV+2}, v6')
        A('s_waitcnt lgkmcnt(0)')
        self.red_sum(64)
        A(f'v_pk_fma_f32 v[96:97], {vr(AC,2)}, v[6:7], v[64:65] op_sel_hi:[1,0,1]')
        A(f'v_pk_fma_f32 v[96:97], v[96:97], v[8:9], {vr(AC+2,2)} op_sel_hi:[1,0,1]')
        A('v_cvt_pk_bf16_f32 v98, v96, v97')
        A('v_lshlrev_b32 v100, 16, v98')
        A(f'v_mul_f32 v4, {LOG2E}, v100')
        A('v_exp_f32 v4, -v4')
        self.lastonly('L_end', True)
        A('v_and_b32 v101, 0xffff0000, v98')
        A('v_add_f32 v4, 1.0, v4')
        A('v_rcp_f32 v4, v4')
        A('s_mov_b32 s10, 0x55555555')
        A('v_mul_f32 v2, v100, v4')
        self.rbf('v2')
        A('v_mul_f32 v2, v2, v101')
        A('s_mov_b32 s11, 0x55555555')
        A(f'v_mov_b32_dpp v3, v2 quad_perm:[1,0,3,2] {DPPM}')
        A('s_mov_b64 exec, s[10:11]')
        A('v_cvt_pk_bf16_f32 v2, v2, v3')
        A('v_min_u32 v2, -2, v2')
        A('buffer_store_dword v2, v212, s[4:7], 0 offen sc1')
        A('buffer_store_dword v2, v212, s[4:7], s46 offen sc1')
        self.stamp(5)

        def late():
            self.dma_issue(5, 3072, '', 24, s0=EF, jump='s[14:15]' if ly else None)
            self.tr_read(5, 2048, s0=EF)
            consts()
            self.hbar()
        self.tail_end('L_Ft', T_F, self.o['WF'], late if EF < 5 else None, self.o['WLF'])

        A('L_D:')
        A(f's_mul_i32 s10, s38, {384*1280}')
        A('s_lshl_b32 s11, s40, 5')
        A('s_add_u32 s10, s10, s11')
        A(f's_add_u32 s10, s{sWD}, s10')
        A(f's_addc_u32 s11, s{sWD+1}, 0')
        for a, x in ((10, 0), (12, 4)):
            A(f'v_xor_b32 v1, {x}, v19')
            A('v_lshrrev_b32 v2, 1, v1')
            A('v_mul_u32_u24 v2, 96, v2')
            A('v_add_u32 v2, v2, v18')
            if x:
                A('v_add_u32 v2, 8, v2')
            A('v_mul_u32_u24 v2, 1280, v2')
            A('v_and_b32 v1, 1, v1')
            A(f'v_lshl_add_u32 v{a}, v1, 4, v2')
            A(f'v_mov_b32 v{a+1}, 0')
            A(f'v_lshl_add_u64 {vr(a,2)}, {vr(a,2)}, 0, s[10:11]')
        self.dma_issue(ED, 1280, '', self.o['DD'], burst=self.o['DB'])
        self.tr_addr(False)
        self.red_addr()
        self.tr_read(ED, 512)
        self.probe()
        self.midwait()
        A('v_bfe_u32 v30, v0, 3, 1')
        A('v_and_b32 v1, 7, v0')
        A('v_lshlrev_b32 v2, 8, v30')
        A('v_lshl_add_u32 v2, v1, 3, v2')
        A('v_add_u32 v25, s39, v2')
        A('s_lshl_b32 s10, s40, 4')
        A('v_lshl_add_u32 v31, v1, 1, s10')
        A('v_mul_u32_u24 v3, 640, v30')
        A('v_add_lshl_u32 v29, v3, v31, 1')
        A('v_mov_b32 v4, v22')
        A('v_mov_b32 v22, v30')
        self.dense_addr('v28', H_X2, 2, k='v31')
        A('v_mov_b32 v22, v4')
        A(f'v_add_u32 v8, {H_MOD + 50*256 - H_X2}, v28')

        def ld():
            A('buffer_load_dword v44, v8, s[4:7], 0 offen sc1')
        self.poll(ld, [44], 'v1', sleep=self.o['slp'])
        A(f's_mov_b32 s28, s{sOUT}')
        A(f's_mov_b32 s29, s{sOUT+1}')
        A('s_mov_b32 s30, 2560')
        A('s_mov_b32 s31, 0x20000')
        self.unpack(46, 44, 1)
        A('v_bfe_u32 v1, v0, 1, 3')
        A(f'v_lshlrev_b32 v2, 4, v22')
        A(f'v_lshl_add_u32 v2, v20, 5, v2')
        A('s_mul_i32 s10, s38, 1536')
        A(f's_add_u32 s10, s10, {H_ACT}')
        A('v_add_u32 v2, s10, v2')
        A('v_lshl_add_u32 v8, v1, 7, v2')
        A('v_and_b32 v1, 3, v1')
        A('v_lshl_add_u32 v9, v1, 7, v2')
        self.tail_begin('L_Dt')
        self.get_sel()

        def ld0():
            A('buffer_load_dword v40, v28, s[4:7], s47 offen sc1')

        if self.o['ft']:
            A(f'v_mov_b32 v3, {H_X2 + 2560}')
            A('s_mov_b64 exec, 1')
            self.poll(lambda: A('buffer_load_dword v2, v3, s[4:7], s47 offen sc1'), [2], 'v1', mask=True)
        elif self.o['dg']:
            self.poll(ld0, [40], 'v1')
        pairs = [(0, 32), (8, 36), (2, 48), (4, 52), (6, 56), (10, 60)]
        sh = [f'v_mov_b32_dpp v{r+i}, v{32+4*(ks//8)+i} row_shl:{2*(ks%8)} {DPPM}' for ks, r in pairs[2:] for i in range(4)]

        def mf(n, e):
            ks, r = pairs[n]
            d = vr(96 + 4 * e, 4)
            return f'v_mfma_f32_16x16x32_bf16 {d}, {vr(self.WR+16*((ks+e)%3)+4*((ks+e)//3),4)}, {vr(r,4)}, {"0" if n == 0 else d}'
        self.spoll([('buffer_load_dwordx4 v[32:35], v8, s[4:7], s47 offen sc1', 32),
                    ('buffer_load_dwordx4 v[36:39], v9, s[4:7], s47 offen offset:1024 sc1', 36)],
                   [[mf(n, 0), mf(n, 1), sh[2 * n], sh[2 * n + 1]] for n in range(2)],
                   one=None if self.o['dg'] and not self.o['ft'] else ('buffer_load_dword v40, v28, s[4:7], s47 offen sc1', 40), sleep=self.o['dsp'])
        self.stamp(3)
        sh = sh[4:]
        for n in range(2, 6):
            for e in range(2):
                A(mf(n, e))
                for i in range(2 if n > 2 or e else 4):
                    if sh:
                        A(sh.pop(0))
        self.unpack(42, 40, 1)
        for i in range(4):
            A(f'v_add_f32_dpp v{96+i}, v{100+i}, v{96+i} quad_perm:[2,3,0,1] {DPPM}')
        self.red_write_std(1)
        self.arrive('L_end', lambda: self.red_read(104), 4, True)
        A('s_waitcnt lgkmcnt(0)')
        self.red_sum(104)
        self.lastonly('L_end', True)
        self.pack(98, 104, 1)
        self.unpack(96, 98, 1)
        A('v_pk_mul_f32 v[96:97], v[96:97], v[46:47]')
        self.pack(98, 96, 1)
        self.unpack(96, 98, 1)
        A('v_pk_add_f32 v[96:97], v[96:97], v[42:43]')
        A('v_cvt_pk_bf16_f32 v2, v96, v97')
        A('s_mov_b64 exec, 0xffff')
        A(f'buffer_store_dword v2, v29, s[28:31], 0 offen')
        self.stamp(4)

        def late():
            if self.o['xd']:
                return
            self.dma_issue(3, 1280, '', 24, s0=ED, mid=(self.o['DL'], lambda: self.wake(128, add=False, both=False)))
            self.tr_read(3, 512, s0=ED)
        self.tail_end('L_Dt', T_D, self.o['WD'], late if ED < 3 else None, 64 if self.o['DL'] else self.o['WLD'])

    def build(self):
        self.entry()
        self.helper()
        self.stream()
        t = HEADER + f'; @launch grid=(256,1,1) block=(512,1,1) lds={L_END}\n' + self.A.text()
        t += '.p2align 8\n.type L_tab,@object\nL_tab:\n'
        w = job_table()
        for i in range(0, len(w), 8):
            t += '.long ' + ','.join('0x%08x' % x for x in w[i:i + 8]) + '\n'
        t += '.section .rodata,"a"\n.p2align 6\n' + kd(KN + '_kernel', 256, sgpr=102)
        return t


if __name__ == '__main__':
    import os
    os.makedirs('gen', exist_ok=True)
    names = []
    for spec in sys.argv[1:]:
        kw = {}
        for kv in spec.split(','):
            if not kv:
                continue
            k, v = kv.split('=')
            try:
                v = int(v, 0)
            except ValueError:
                v = v.replace('+', ' ')
            kw[k] = v
        nm = 'work/gen/v13_' + spec.replace('=', '').replace(',', '_') + '.s'
        open('code/' + nm, 'w').write(G(**kw).build())
        names.append(nm)
    print(' '.join(names))
```

```python
import sys, struct
sys.path.insert(0, 'work')
from asmlib import Asm, kd

KN = 'adaLN_cond__gqa_block_cached__swiglu_ffn__decode'
f2u = lambda x: '0x%08x' % struct.unpack('<I', struct.pack('<f', x))[0]
LOG2E = f2u(1.4426950408889634)
SCALE = f2u(192 ** -0.5)
PER = 196608
sX, sK, sV, sWQ, sWO, sWG, sWU, sWD, sC, sWM, sOUT, sDBG, sWS = 64, 66, 68, 70, 72, 76, 78, 80, 82, 84, 86, 88, 90
H_MOD, H_Q, H_TS, H_FLG, H_ML = 0, 0x4000, 0xA000, 0x12000, 0x14000
H_X2, H_ACT, H_Y, H_OP, H_CLR, H_END, H_PRB = 0x1C000, 0x20000, 0x24000, 0x34000, 0x64000, 0xF4000, 0xF4000
VORD = (7, 6, 5, 3, 2, 1, 4, 0)
OPI = 98304
L_STG, L_PART, L_RED, L_ST, L_CNT, L_MLL, L_GL, L_FL, L_END = 0, 98304, 147456, 153600, 153728, 153792, 154048, 154112, 154240
C_MRG, C_HBAR, C_SEL, C_HB, C_WK, C_KC, C_IC, C_RDY = 0, 12, 16, 24, 28, 32, 36, 40
SPIN = 1 << 15
DPPM = 'row_mask:0xf bank_mask:0xf'
T_M, T_Q, T_W, T_F, T_D = 1, 2, 3, 4, 5
STAMP0 = 0x2ff00000


def sp(n):
    return f's[{n}:{n+1}]'


def vr(n, c):
    return f'v[{n}:{n+c-1}]' if c > 1 else f'v{n}'


JT = 5
RN = 1
HV = 0


def job_table():
    J = {i: [] for i in range(256)}
    free = {x: [8 * r + x for r in range(32)] for x in range(8)}
    if JT in (1, 4, 5):
        fx = [f // 6 for f in range(48)]
        dx = [[0, 1, 2, 3, 4, 5, 6, 7, 2, 5][d // 4] for d in range(40)]
    elif JT == 2:
        fx = [[0, 3, 6][f // 16] for f in range(48)]
        dx = [[2, 5][d // 20] for d in range(40)]
    elif JT == 3:
        fx = [[0, 1, 2, 3][f // 12] for f in range(48)]
        dx = [[0, 1, 2, 3, 0, 1, 2, 3, 4, 4][d // 4] for d in range(40)]
    for f in range(48):
        J[free[fx[f]].pop(0)] = [(T_F, f)]
    for d in range(40):
        J[free[dx[d]].pop(0)] = [(T_D, d)]
    wl = []
    for w in range(80):
        i = free[w & 7].pop(0)
        J[i] = [(T_W, w)]
        wl.append(i)
    rest = sorted(i for x in free for i in free[x])
    m2 = list(range(20, 60)); q = list(range(96))
    k = 0
    if JT < 4:
        for m in range(20):
            J[rest[k]] = [(T_M, m), (T_M, m2.pop())]; k += 1
        for _ in range(20):
            J[rest[k]] = [(T_Q, q.pop()), (T_M, m2.pop())]; k += 1
    while k < len(rest):
        J[rest[k]] = [(T_Q, q.pop())]; k += 1
    k = 0
    if JT >= 4:
        for i in range(256):
            if J[i][0][0] == T_D:
                J[i] = [(T_Q, q.pop()) if JT == 5 and q else (T_M, m2.pop())] + J[i]
        while m2:
            J[wl[k]] = [(T_M, m2.pop())] + J[wl[k]]; k += 1
        for m in range(20):
            J[wl[k]] = [(T_M, m)] + J[wl[k]]; k += 1
    while q:
        J[wl[k]] = [(T_Q, q.pop())] + J[wl[k]]; k += 1
    singles = wl[k:]
    if RN:
        cq, c1, c2 = 0, 0, 20
        for i in sorted(range(256), key=lambda i: (i & 7, i)):
            for n, (ty, ix) in enumerate(J[i]):
                if ty == T_Q:
                    J[i][n] = (ty, cq); cq += 1
                elif ty == T_M and ix < 20:
                    J[i][n] = (ty, c1); c1 += 1
                elif ty == T_M:
                    J[i][n] = (ty, c2); c2 += 1
    clr = {singles[n]: n for n in range(10)}
    words = []
    for i in range(256):
        j = J[i] + [(0, 0)]
        v = j[0][0] | j[0][1] << 4 | j[1][0] << 12 | j[1][1] << 16
        if i in clr:
            v |= (16 | clr[i]) << 24
        last = J[i][-1][0]
        v |= (last == T_W) << 30 | (last == T_F) << 31
        t0, i0 = J[i][0]
        heavy = (len(J[i]) == 2 and last == T_W) or (t0 == T_F and (i0 >> 1) & 7 == 3)
        if HV >= 2:
            heavy = heavy or len(J[i]) == 2 or (t0 == T_Q and i0 & 7 == 3) or i in clr
        if HV >= 3:
            heavy = heavy or t0 == T_F
        v |= (heavy and HV > 0) << 29
        words.append(v)
    return words


HEADER = '''; adaLN -> cached attention -> adaLN -> SwiGLU, decode step (B=2, D=640, 32 heads x 192, 8192 keys).
; Written with my own generator script (work/gen_v13.py).  One persistent launch, one workgroup per CU.
;
;
; Hand-offs go through ws: slots are first set to 0xffffffff (flags in debug say when), writers never store that
;   value, readers poll with device-scope loads (bounded).  Stores write through, except inside a group whose 32
'''


class G:
    def __init__(self, **kw):
        self.o = dict(D=5, DX=7, BG=20, BO=25, NR=13, BI=0, bal=2, NF=24, NQ=0, stamps=0, clk=0, diag='',
                      prio=3, DQ=24, DF=24, FB=10, DD=1, DB=5, DM2=2, DW2=8, JT=5, RN=1, fast=1,
                      NP=12, sel=-1, slp=32, wks=1, EF=4, ED=1, PB=24, ND=20, U=4, N1=4,
                      WL=64, WLF=64, WLD=128, WF=64, WD=64, fsl=16, fs0=0, gw=0, TH=23, TV=0, NOM=335, LAG=8, hs=1, ru=1, ad=0, NM=2, wt=0, ft=0, xd=0, fsp=0, dsp=0, dg=1, xl=0, g3=1, gc=2, NG=23, qsl=8, xc=0, tp=0, ec=0, pp=0, psl=4, mh=0, cs=1, DL=2, t0=2, ssh=3, db=1, hv=2, DP=5, kc=-1, ms=90, CL=40, CP=24, RO=12, NSM=16, sm=1, iws=4, hold=20, ptm=3, TB=0, pw=1, BW=35, BF=12, w2=0, t7=0, pf=5, lin=1, dt=0, xf=0, pt=0, ca=0, p2=1, xo=0, xs=0, xg=0, pol='')
        self.o.update(kw)
        global JT, RN, HV
        JT, RN, HV = self.o['JT'], self.o['RN'], self.o['hv']
        self.A = Asm()
        self.nl = 0

    def lab(self, s):
        self.nl += 1
        return f'L{self.nl}_{s}'

    def stamp(self, i, alt=0):
        m = self.o['stamps']
        if (m in (1, 3, 4) and not alt) or (m == 2 and (alt == 1 or i in (0, 6))) or (m == 3 and alt == 3):
            self.A(f'{"s_memtime" if self.o["clk"] else "s_memrealtime"} {sp(48+2*i)}')

    def dump_stamps(self, area):
        if not self.o['stamps'] or self.o['diag']:
            return
        A = self.A
        A('s_mov_b64 exec, 1')
        A('s_getreg_b32 s62, hwreg(HW_REG_XCC_ID)')
        A('s_mov_b32 s63, s3')
        A('s_waitcnt lgkmcnt(0)')
        A('s_lshl_b32 s8, s2, 7')
        A(f's_add_u32 s8, s8, {STAMP0 + area}')
        A('v_mov_b32 v1, s8')
        for i in range(16):
            A(f'v_mov_b32 v{112+i}, s{48+i}')
        for i in range(4):
            A(f'global_store_dwordx4 v1, {vr(112+4*i,4)}, {sp(sWS)} offset:{16*i}')

    def rbf(self, v):
        self.A(f'v_cvt_pk_bf16_f32 {v}, {v}, {v}')
        self.A(f'v_lshlrev_b32 {v}, 16, {v}')

    def unpack(self, dst, src, n):
        for i in range(n):
            self.A(f'v_and_b32 v{dst+2*i+1}, 0xffff0000, v{src+i}')
            self.A(f'v_lshlrev_b32 v{dst+2*i}, 16, v{src+i}')

    def pack(self, dst, src, n):
        for i in range(n):
            self.A(f'v_cvt_pk_bf16_f32 v{dst+i}, v{src+2*i}, v{src+2*i+1}')

    def rbf8(self, x, t):
        self.pack(t, x, 4)
        self.unpack(x, t, 4)

    def pk(self, op, d, a, b, n=4, bstep=2, mods=''):
        for i in range(n):
            self.A(f'v_pk_{op}_f32 {vr(d+2*i,2)}, {vr(a+2*i,2)}, {vr(b+bstep*i,2)} {mods}')

    def xrow(self, op, v, t):
        for sw in ('v_permlane16_swap_b32', 'v_permlane32_swap_b32'):
            self.A(f'v_mov_b32 {t}, {v}')
            self.A(f'{sw} {v}, {t}')
            self.A(f'{op} {v}, {v}, {t}')

    def rowred(self, op, v, modes):
        for m in modes:
            self.A(f'{op}_dpp {v}, {v}, {v} {m} {DPPM}')

    ROW16 = ('quad_perm:[1,0,3,2]', 'quad_perm:[2,3,0,1]', 'row_half_mirror', 'row_mirror')
    ROWPAR = ('quad_perm:[2,3,0,1]', 'row_ror:4', 'row_ror:8')

    def silu(self, v, t, u):
        A = self.A
        A(f'v_mul_f32 {t}, {LOG2E}, {v}')
        A(f'v_exp_f32 {t}, -{t}')
        A(f'v_add_f32 {t}, 1.0, {t}')
        A(f'v_rcp_f32 {u}, {t}')
        A(f'v_mul_f32 v2, {v}, {u}')
        A(f'v_fma_f32 v3, -v2, {t}, {v}')
        A(f'v_fma_f32 v2, v3, {u}, v2')
        A(f'v_div_fixup_f32 {v}, v2, {t}, {v}')

    def invalid(self, regs, t):
        A = self.A
        regs = list(regs)
        if len(regs) == 1:
            A(f'v_cmp_eq_u32 vcc, -1, v{regs[0]}')
            return
        cur = f'v{regs.pop(0)}'
        while regs:
            if len(regs) >= 2:
                A(f'v_max3_u32 {t}, {cur}, v{regs.pop(0)}, v{regs.pop(0)}')
            else:
                A(f'v_max_u32 {t}, {cur}, v{regs.pop(0)}')
            cur = t
        A(f'v_cmp_eq_u32 vcc, -1, {t}')

    def poll(self, loads, regs, t, sleep=0, cnt='s9', mask=False, fly=0):
        A = self.A
        top, done = self.lab('poll'), self.lab('pdone')
        A(f's_mov_b32 {cnt}, {SPIN}')
        A(f'{top}:')
        loads()
        A(f's_waitcnt vmcnt({fly})')
        self.invalid(regs, t)
        A(f's_cbranch_vccz {done}')
        if mask:
            A('s_mov_b64 exec, vcc')
        if sleep:
            A(f's_sleep {sleep}')
        A(f's_sub_u32 {cnt}, {cnt}, 1')
        A(f's_cbranch_scc0 {top}')
        A(f'{done}:')
        if mask:
            A('s_mov_b64 exec, -1')

    def spoll(self, loads, work, lanes=None, one=None, sleep=0):
        A = self.A
        top, done = self.lab('spoll'), self.lab('sdone')
        A(f's_mov_b32 s9, {SPIN}')
        A(f's_mov_b64 vcc, {lanes or -1}')
        A(f'{top}:')
        if sleep:
            A(f's_sleep {sleep}')
        A('s_sub_u32 s9, s9, 1')
        A(f's_cbranch_scc1 {done}')
        A('s_mov_b64 exec, vcc')
        if one:
            A(one[0])
        for t, r in loads:
            A(t)
        A('s_mov_b64 exec, -1')
        for i, (t, r) in enumerate(loads):
            A(f's_waitcnt vmcnt({len(loads)-1-i})')
            if i == 0 and one:
                chk = [f'v_max3_u32 v1, v{one[1]}, v{r}, v{r+1}', f'v_max3_u32 v1, v1, v{r+2}, v{r+3}']
            elif i == 0:
                chk = [f'v_max3_u32 v1, v{r}, v{r+1}, v{r+2}', f'v_max_u32 v1, v1, v{r+3}']
            else:
                chk = [f'v_max3_u32 v1, v1, v{r}, v{r+1}', f'v_max3_u32 v1, v1, v{r+2}, v{r+3}']
            w = list(work[i])
            A(w.pop(0))
            for c in chk:
                A(c)
            if i + 1 == len(loads):
                A('v_cmp_eq_u32 vcc, -1, v1')
            for x in w:
                A(x)
        if lanes:
            A(f's_and_b64 vcc, vcc, {lanes}')
        A(f's_cbranch_vccnz {top}')
        A(f'{done}:')

    def flags_addr(self, va, both):
        A = self.A
        A(f'v_and_b32 {va}, 7, v0')
        if both:
            A('v_cmp_gt_u32 vcc, 32, v0')
            A(f'v_cndmask_b32 {va}, v0, {va}, vcc')
        A(f'v_lshlrev_b32 {va}, 2, {va}')

    def flags_wait(self, va, vd, cnt='s9'):
        A = self.A
        top, done = self.lab('flag'), self.lab('fdone')
        A(f's_mov_b32 {cnt}, {SPIN}')
        A(f'{top}:')
        A(f'global_load_dword {vd}, {va}, {sp(sDBG)} sc1')
        A('s_waitcnt vmcnt(0)')
        A(f'v_cmp_eq_u32 vcc, 0, {vd}')
        A(f's_cbranch_vccz {done}')
        A('s_sleep 8')
        A(f's_sub_u32 {cnt}, {cnt}, 1')
        A(f's_cbranch_scc0 {top}')
        A(f'{done}:')

    def op_addr(self, dst, rd, rdbase):
        A = self.A
        A('s_and_b32 s44, s2, 7')
        A('s_lshr_b32 s45, s2, 3') if dst == 'v57' else A('s_lshr_b32 s8, s2, 3')
        A('s_lshl_b32 s44, s44, 5')
        A(f's_add_u32 s44, s44, {"s45" if dst == "v57" else "s8"}')
        A('s_mul_i32 s44, s44, 384')
        A(f's_add_u32 s44, s44, {H_OP}')
        A('v_and_b32 v1, 0x31, v0')
        if self.o['lin']:
            A('v_bfe_u32 v2, v0, 2, 2')
            A('v_lshl_add_u32 v1, v2, 1, v1')
            A('v_bfe_u32 v2, v0, 1, 1')
            A('v_lshl_add_u32 v1, v2, 3, v1')
            A(f'v_lshl_add_u32 {dst}, v0, 3, s44')
        else:
            A('v_bfe_u32 v2, v0, 1, 2')
            A('v_lshl_add_u32 v1, v2, 2, v1')
            A('v_bfe_u32 v2, v0, 3, 1')
            A('v_lshl_add_u32 v1, v2, 1, v1')
            A(f'v_lshl_add_u32 {dst}, v1, 3, s44')
            A('v_mov_b32 v1, v0')
        A('v_min_u32 v1, 47, v1')
        A('v_lshlrev_b32 v1, 4, v1')
        A(f'v_add_u32 {rd}, {rdbase}, v1')

    def mode_store(self, text, mode):
        A = self.A
        thru, done = self.lab('thru'), self.lab('stored')
        A(f's_cmp_lg_u32 {mode}, 2')
        A(f's_cbranch_scc1 {thru}')
        A(text + ' ' + self.o['pol'])
        A(f's_branch {done}')
        A(f'{thru}:')
        A(text + ' sc1')
        A(f'{done}:')

    def lwait(self, off, test, sleep):
        A = self.A
        top, done = self.lab('lw'), self.lab('lwd')
        A(f'v_mov_b32 v1, {L_CNT}')
        A(f's_mov_b32 s9, {SPIN*8}')
        A(f'{top}:')
        A(f'ds_read_b32 v2, v1 offset:{off}')
        A('s_waitcnt lgkmcnt(0)')
        A('v_readfirstlane_b32 s8, v2')
        test()
        A(f's_cbranch_scc1 {done}')
        A(f's_sleep {sleep}')
        A('s_sub_u32 s9, s9, 1')
        A(f's_cbranch_scc0 {top}')
        A(f'{done}:')

    def item_wait(self, bit):
        self.lwait(C_IC, lambda: self.A(f's_bitcmp1_b32 s8, {bit}'), self.o['iws'])

    def ws_srd(self):
        A = self.A
        A(f's_mov_b32 s4, s{sWS}')
        A(f's_mov_b32 s5, s{sWS+1}')
        A(f's_mov_b32 s6, {H_END}')
        A('s_mov_b32 s7, 0x20000')

    RING, Q, S = 64, 16, 28

    def entry(self):
        A = self.A
        n = KN + '_kernel'
        A('.amdgcn_target "amdgcn-amd-amdhsa--gfx950"')
        A('.text')
        A(f'.globl {n}')
        A('.p2align 8')
        A(f'.type {n},@function')
        A(f'{n}:')
        A('s_cmp_ge_u32 s2, 256')
        A('s_cbranch_scc1 L_end')
        self.stamp(0)
        A('s_load_dwordx16 s[64:79], s[0:1], 0')
        A('v_lshrrev_b32 v1, 6, v0')
        A('s_load_dwordx8 s[80:87], s[0:1], 64')
        A('v_readfirstlane_b32 s3, v1')
        A('s_load_dwordx4 s[88:91], s[0:1], 96')
        A('v_and_b32 v0, 63, v0')
        A('s_cmp_ge_u32 s3, 4')
        A('s_cbranch_scc1 L_helper')
        A('s_and_b32 s13, s2, 7')
        A('s_lshr_b32 s14, s2, 4')
        A('s_lshl4_add_u32 s34, s13, s14')
        A(f's_mul_i32 s34, s34, {PER}')
        A('s_bfe_u32 s12, s2, 0x10003')
        A('s_lshl2_add_u32 s12, s12, s3')
        A('s_mul_i32 s36, s12, 392')
        A('s_lshr_b32 s36, s36, 10')
        A('s_mul_i32 s36, s36, 22')
        A('s_lshl3_add_u32 s36, s12, s36')
        A('s_mul_i32 s36, s36, 1536')
        A('v_and_b32 v1, 1, v0')
        A('v_lshrrev_b32 v2, 4, v0')
        A('v_lshl_add_u32 v1, v1, 2, v2')
        A('v_lshlrev_b32 v51, 4, v1')
        A('v_bfe_u32 v1, v0, 1, 2')
        A('v_bfe_u32 v2, v0, 3, 1')
        A('v_mul_u32_u24 v2, 84, v2')
        A('v_add_u32 v1, v1, v2')
        A('v_mul_u32_u24 v1, 384, v1')
        A('v_add_u32 v40, v1, v51')
        A(f's_mov_b32 s10, {PER}')
        A('s_mov_b32 s11, 0x20000')
        self.stamp(5, 1)
        A('s_waitcnt lgkmcnt(0)')
        self.stamp(1, 1)
        A(f's_add_u32 s8, s{sK}, s34')
        A(f's_addc_u32 s9, s{sK+1}, 0')
        for n in range(self.o['N1']):
            A(f'buffer_load_dwordx4 {vr(self.RING+4*n,4)}, v40, s[8:11], s36 offen offset:{1536*(n//3) + 128*(n%3)} nt')
        A('s_barrier')
        A('s_branch L_stream')

    def stream(self):
        A = self.A
        o = self.o
        D, bal = o['D'], o['bal']
        DX = o['DX'] if bal else D
        RING, Q, S = self.RING, self.Q, self.S
        A('L_stream:')
        for t in range(1, 8):
            A(f's_lshl3_add_u32 s44, s12, {t}')
            A('s_mul_i32 s45, s44, 49')
            A('s_lshr_b32 s45, s45, 10')
            A('s_mul_i32 s45, s45, 22')
            A('s_add_u32 s45, s45, s44')
            A(f's_mul_i32 s{36+t}, s45, 1536')
        A('s_cmp_eq_u32 s12, 7')
        A(f's_cselect_b32 s43, {42*1536}, s43')
        A(f's_cselect_b32 s44, {22*1536}, 0')
        A('v_bfe_u32 v1, v0, 3, 1')
        A('v_mad_u32_u24 v41, v1, s44, v40')
        A('v_bfe_u32 v1, v0, 3, 2')
        A('v_lshrrev_b32 v2, 5, v0')
        A('v_mul_u32_u24 v3, 84, v2')
        A('v_add_u32 v1, v1, v3')
        A('v_mul_u32_u24 v1, 384, v1')
        A('v_and_b32 v3, 7, v0')
        A('v_lshl_add_u32 v38, v3, 4, v1')
        A('v_mad_u32_u24 v39, v2, s44, v38')

        A('s_mov_b64 s[14:15], s[8:9]')
        A('s_mov_b32 s97, 0x07654321')

        def nxt_slice():
            A('s_and_b32 s46, s97, 7')
            A('s_lshr_b32 s97, s97, 4')
            A(f's_mul_i32 s46, s46, {128*PER}')
            A('s_add_u32 s8, s14, s46')
            A('s_addc_u32 s9, s15, 0')

        def load(n):
            k = n % 24
            t = k // 3
            A(f'buffer_load_dwordx4 {vr(RING+4*n,4)}, v{41 if t == 7 else 40}, s[8:11], s{36+t} offen offset:{128*(k%3)} nt')
            if k == 23:
                nxt_slice()

        def setup():
            self.ws_srd()
            A('s_getpc_b64 s[98:99]')
            A('L_pc2:')
            A('s_add_u32 s98, s98, L_tab-L_pc2')
            A('s_addc_u32 s99, s99, 0')
            A('s_lshl_b32 s44, s2, 2')
            A('s_load_dword s93, s[98:99], s44')
            A('s_mov_b32 s16, 0xff00ff00')
            A('s_mov_b32 s17, 0xff00ff00')
            for t in range(8):
                A(f's_mov_b32 s{18+2*t}, {0x01010101 << t}')
                A(f's_mov_b32 s{19+2*t}, {0x01010101 << t}')
            yield
            A('v_and_b32 v1, 1, v0')
            A('v_lshlrev_b32 v1, 4, v1')
            A('v_mov_b32 v2, 0xffff')
            A('v_lshlrev_b32 v1, v1, v2')
            A('v_bfe_u32 v2, v0, 1, 2')
            for w in range(4):
                A(f'v_cmp_eq_u32 vcc, {w}, v2')
                A(f'v_cndmask_b32 v{42+w}, 0, v1, vcc')
            yield
            A('v_bfe_u32 v1, v0, 3, 2')
            A('v_mul_u32_u24 v1, 6144, v1')
            A('v_lshrrev_b32 v2, 5, v0')
            A('v_lshl_add_u32 v1, v2, 7, v1')
            A('v_and_b32 v2, 7, v0')
            A('v_lshl_add_u32 v1, v2, 4, v1')
            A('s_mul_i32 s44, s13, 768')
            A(f's_add_u32 s44, s44, {H_Q}')
            A('v_add_u32 v50, s44, v1')
            A('s_mul_i32 s35, s3, 12288')
            A(f's_add_u32 s35, s35, {L_PART}')
            A('v_add_u32 v51, s35, v51')
            A('v_lshrrev_b32 v1, 4, v0')
            A('v_lshlrev_b32 v1, 5, v1')
            A(f's_lshl3_add_u32 s44, s3, {L_MLL}')
            A('v_add_u32 v52, s44, v1')
            self.flags_addr('v54', True)
            yield
            if bal:
                sh = 4 if o['NSM'] == 16 else 5
                A(f's_lshr_b32 s45, s2, {sh}')
                A(f's_and_b32 s44, s2, {(1 << sh) - 1}')
                A('s_xor_b32 s44, s44, s45')
                A('s_bfe_u32 s46, s2, 0x20001')
                A('s_xor_b32 s46, s46, s3')
                A('s_or_b32 s92, s44, s46')
                A('s_lshl_b32 s45, s45, 7')
                A(f's_add_u32 s45, s45, {H_TS}')
                A('v_mov_b32 v58, s45')
                A(f's_mov_b32 s100, {o["BI"]}')
                A(f's_add_u32 s64, s{sWS}, {H_TS}')
                A(f's_addc_u32 s65, s{sWS+1}, 0')
            yield
            A('s_waitcnt lgkmcnt(0)')
            b0 = o['BO'] + o['BG'] // 2 if bal == 1 else -o['TH']
            A(f's_mov_b32 s101, {16*b0}')
            A('s_bitcmp1_b32 s93, 30')
            A(f's_cselect_b32 s101, {16*(b0 + o["BW"])}, s101')
            A('s_bitcmp1_b32 s93, 31')
            A(f's_cselect_b32 s101, {16*(b0 + o["BF"])}, s101')
            A('v_lshrrev_b32 v1, 5, v0')
            A('v_mul_u32_u24 v1, 768, v1')
            A('v_bfe_u32 v2, v0, 4, 1')
            A('v_lshl_add_u32 v1, v2, 7, v1')
            A('v_and_b32 v2, 7, v0')
            A('v_lshl_add_u32 v1, v2, 4, v1')
            A('v_add_u32 v62, s35, v1')
            self.op_addr('v57', 'v56', L_PART + 7 * 1536)
            A('s_mov_b32 s94, 0x00ff00ff')
            A('s_mov_b32 s95, 0xff00ff00')
            A('v_mov_b32 v55, 1')
            A('v_mov_b32 v60, 1')
            A(f'v_mov_b32 v63, {L_CNT}')
            yield

        def qloads():
            for j in range(3):
                A(f'buffer_load_dwordx4 {vr(Q+4*j,4)}, v50, s[4:7], 0 offen offset:{256*j} sc1')
        DP = o['DP']
        NF, NQ = o['NF'], o['NQ'] or 47 - DP
        assert NQ - NF > DP + 1 and NF >= 13 and o['EF'] >= 1 and o['ED'] >= 1 and o['N1'] <= 6
        su = setup()
        for n in range(o['N1'], 48):
            ex = (1 if NF < n <= NF + DP else 0) + (3 if NQ < n <= NQ + DP else 0)
            if o['hv'] and n >= 18:
                if n in (18, NQ + 1):
                    A('s_bitcmp1_b32 s93, 29')
                    A('s_cselect_b64 vcc, -1, 0')
                l = self.lab('y')
                A(f's_waitcnt vmcnt({DX-1+ex})')
                A(f's_cbranch_vccnz {l}')
                A(f's_waitcnt vmcnt({DP-1+ex})')
                A(f'{l}:')
            else:
                A(f's_waitcnt vmcnt({DP-1+ex})')
            if n in (6, 10, 16):
                self.stamp({6: 2, 10: 3, 16: 4}[n], 1)
            load(n)
            if n >= 8 and n % 2 == 0:
                next(su, None)
            if n == o['NG']:
                assert n > 16
                A('s_mov_b64 exec, 1')
                A('ds_add_u32 v63, v55 offset:20')
                A('s_mov_b64 exec, -1')
            if n == NF:
                A(f'global_load_dword v53, v54, {sp(sDBG)} sc1')
            if n == NQ:
                ok = self.lab('fok')
                A('v_cmp_eq_u32 vcc, 0, v53')
                A(f's_cbranch_vccz {ok}')
                self.flags_wait('v54', 'v53', 's99')
                A(f'{ok}:')
                qloads()
        self.stamp(1)
        A(f's_waitcnt vmcnt({47-NQ})')
        ok = self.lab('qok')
        self.invalid(range(Q, Q + 12), 'v1')
        A(f's_cbranch_vccz {ok}')
        self.poll(qloads, range(Q, Q + 12), 'v1', cnt='s99')
        A(f'{ok}:')
        A('v_lshl_add_u32 v1, v0, 4, s35')
        for j in range(3):
            A(f'ds_write_b128 v1, {vr(Q+4*j,4)} offset:{1024*j}')
        for j in range(3):
            A(f'ds_read_b128 {vr(Q+4*j,4)}, v51 offset:{1024*j}')
        self.stamp(2)
        NR, PB, ND, U = o['NR'], o['PB'], o['ND'], o['U']
        NB = PB // U
        assert ND % U == 0 and ND <= PB and NR + 3 < ND

        def wait(n, extra=-100):
            ex = lambda d: 1 if extra < n <= extra + d else 0
            if not bal:
                A(f's_waitcnt vmcnt({D-1+ex(D)})')
                return
            if n % U == 0 and bal == 1:
                A(f's_bitcmp1_b32 s100, {((n - ND) // U) % NB}')
                A('s_cselect_b64 vcc, -1, 0')
            l = self.lab('x')
            A(f's_waitcnt vmcnt({DX-1+ex(DX)})')
            A(f's_cbranch_vccnz {l}')
            A(f's_waitcnt vmcnt({D-1+ex(D)})')
            A(f'{l}:')

        CP, RO, NSM = o['CP'], o['RO'], o['NSM']
        back = (U - 1 + RO) // CP
        if bal == 2:
            assert RO % U == 0 and CP % U == 0 and (U - 1 + RO) % CP + U < CP + (CP == 24) * 0 + 1
            assert (336 // CP + back) * NSM * 128 <= H_FLG - H_TS
            A('s_memrealtime s[0:1]')
            A(f's_mov_b32 s87, {16*o["NOM"]*U//24}')
            A('s_mov_b32 s86, 0')
            A(f's_mov_b32 s98, {1 + back}')
            A(f's_mov_b64 vcc, {o["BI"]}')
            A(f'v_add_u32 v58, {back*NSM*128}, v58')
            if o['kc'] >= 0:
                A('v_lshl_add_u32 v58, v0, 6, v58')
                A(f's_getreg_b32 s44, hwreg(HW_REG_HW_ID, {o["kc"]}, 1)')
                A('s_lshl_b32 s44, s44, 6')
                A('s_add_u32 s64, s64, s44')
                A('s_addc_u32 s65, s65, 0')
            A('s_waitcnt lgkmcnt(0)')
            A(f's_add_u32 s100, s0, {-100000 if o["BI"] else 100000}')
            if o['hv']:
                A('s_sub_u32 s44, s0, 60')
                A('s_bitcmp1_b32 s93, 29')
                A('s_cselect_b32 s100, s44, s100')
                A('s_cselect_b64 vcc, -1, 0')
            A('s_lshl_b32 s100, s100, 4')

        def balance2(n):
            n = n % CP
            if n % U == U - 2:
                A('s_memrealtime s[0:1]')
            if n % U == U - 1:
                A('s_waitcnt lgkmcnt(0)')
                A('s_lshl4_add_u32 s44, s0, s101')
                A('s_sub_u32 s44, s44, s100')
                A('s_add_u32 s100, s100, s87')
                A('s_cmp_gt_i32 s44, 0')
                A('s_cselect_b64 vcc, -1, 0')
            if o['tp'] and n == 2 * U - 1:
                l = self.lab('notp')
                A(f's_and_b32 s46, s2, {o["tp"] - 1 << 3}')
                A('s_or_b32 s46, s46, s3')
                A(f's_cbranch_scc1 {l}')
                A('s_and_b32 s46, s97, 7')
                A(f's_mul_i32 s46, s46, {128*PER}')
                A('s_add_u32 s46, s14, s46')
                A('s_addc_u32 s47, s15, 0')
                A('s_load_dword s13, s[46:47], 0')
                A(f'{l}:')
            if n == U - 1:
                l = self.lab('nopub')
                A('s_cmp_lg_u32 s92, 0')
                A(f's_cbranch_scc1 {l}')
                A('v_mov_b32 v59, s0')
                A(f's_mov_b64 exec, {3 if o["kc"] >= 0 else 1}')
                A('buffer_store_dword v59, v58, s[4:7], 0 offen sc1')
                A('s_mov_b64 exec, -1')
                A(f'v_add_u32 v58, {NSM*128}, v58')
                A(f'{l}:')
            if n == (U - 1 + RO) % CP:
                for i in range(NSM):
                    A(f's_load_dword s{70+i}, s[64:65], {128*i}')
            if n == (U - 1 + RO) % CP + U:
                A(f's_add_u32 s64, s64, {NSM*128}')
                A('s_addc_u32 s65, s65, 0')
                A('s_mov_b32 s45, 0')
                st = 's0'
                if o['ms']:
                    A('s_sub_u32 s47, s44, s101')
                    A('s_max_i32 s47, s47, 0')
                    A('s_lshr_b32 s47, s47, 4')
                    A(f's_add_u32 s47, s47, {o["ms"]}')
                    A('s_sub_u32 s47, s0, s47')
                    st = 's47'
                for i in range(NSM):
                    A(f's_cmp_eq_u32 s{70+i}, -1')
                    A(f's_cselect_b32 s{70+i}, {st}, s{70+i}')
                    A(f's_add_u32 s45, s45, s{70+i}')
                if NSM == 8:
                    A('s_lshl_b32 s45, s45, 1')
                A('s_sub_u32 s44, s45, s86')
                A('s_mov_b32 s86, s45')
                A(f's_mul_i32 s1, s87, {CP // U}')
                A('s_sub_u32 s44, s44, s1')
                A(f's_min_i32 s44, s44, {16*o["CL"]}')
                A(f's_max_i32 s44, s44, {-16*o["CL"]}')
                A(f's_mul_hi_i32 s44, s44, {(2**32 * U // CP) >> o["sm"]}')
                A('s_add_u32 s44, s44, s87')
                A('s_sub_u32 s98, s98, 1')
                A('s_cselect_b32 s87, s44, s87')
                A('s_cselect_b32 s98, 0, s98')
                A(f's_mul_i32 s44, s87, {RO//U + 2}')
                A('s_add_u32 s100, s45, s44')

        def balance(n, last=False):
            if not bal:
                return
            if bal == 2:
                return balance2(n)
            if last and n - n % PB + ND >= 48:
                return
            n = n % PB
            if n == 0:
                A('s_memrealtime s[0:1]')
            if n == 1:
                l = self.lab('nopub')
                A('s_cmp_lg_u32 s92, 0')
                A(f's_cbranch_scc1 {l}')
                A('s_waitcnt lgkmcnt(0)')
                A('v_mov_b32 v59, s0')
                A('s_mov_b64 exec, 1')
                A('buffer_store_dword v59, v58, s[4:7], 0 offen sc1')
                A('s_mov_b64 exec, -1')
                A('v_add_u32 v58, 2048, v58')
                A(f'{l}:')
            if n == NR:
                for i in range(16):
                    A(f's_load_dword s{70+i}, s[64:65], {128*i}')
            if n == ND - 2:
                A('s_waitcnt lgkmcnt(0)')
                A('s_add_u32 s64, s64, 2048')
                A('s_addc_u32 s65, s65, 0')
                A(f's_add_u32 s1, s0, {int(NR*13.8)+40}')
                A('s_lshl_b32 s86, s0, 4')
            if n in (ND - 2, ND - 1):
                for i in range(8 * (n - ND + 2), 8 * (n - ND + 3)):
                    A(f's_cmp_eq_u32 s{70+i}, -1')
                    A(f's_cselect_b32 s{70+i}, s1, s{70+i}')
                    A(f's_sub_u32 s86, s86, s{70+i}')
            if n == ND - 1:
                A('s_add_i32 s44, s86, s101')
                A('s_max_i32 s44, s44, 0')
                A(f's_mul_hi_u32 s44, s44, {2**32 // (16*o["BG"])}')
                A(f's_lshr_b32 s45, s100, {NB - ND // U}')
                A('s_bcnt1_i32_b32 s45, s45')
                A('s_sub_i32 s44, s44, s45')
                A('s_max_i32 s44, s44, 0')
                A(f's_min_i32 s44, s44, {NB}')
                A('s_bfm_b32 s100, s44, 0')

        def ldsadd(v):
            A(f'v_mov_b32 v7, {v}')
            A('s_mov_b64 exec, 1')
            A(f'ds_add_u32 v63, v7 offset:{C_WK}')
            A('s_mov_b64 exec, -1')
        A('s_mov_b32 s99, 0')
        A('L_kloop:')
        A('s_cmp_lg_u32 s99, 3')
        A('s_cbranch_scc1 L_knosw')
        A(f's_add_u32 s14, s{sV}, s34')
        A(f's_addc_u32 s15, s{sV+1}, 0')
        A(f's_mov_b32 s97, {sum(x << (4*i) for i, x in enumerate(VORD if not o["xo"] else range(8)))}')
        nxt_slice()
        A('v_mov_b32 v40, v38')
        A('v_mov_b32 v41, v39')
        ldsadd(1)
        if o['p2']:
            A('s_setprio 2')
        A('L_knosw:')

        def extract(t):
            d = 8 + 4 * (t & 1)
            A(f'v_cndmask_b32 v2, v{d}, v{d+2}, s[16:17]')
            A(f'v_cndmask_b32 v3, v{d+1}, v{d+3}, s[16:17]')
            if t & 1:
                A(f'v_add_f32_dpp v2, v2, v3 quad_perm:[1,0,3,2] {DPPM}')
            else:
                A(f'v_add_f32_dpp v2, v3, v2 quad_perm:[1,0,3,2] {DPPM}')
            A(f'v_cndmask_b32 v36, v36, v2, {sp(18+2*t)}')

        def score(i):
            self.rbf('v36')
            A(f'v_mul_f32 v36, {SCALE}, v36')
            A('v_cvt_pk_bf16_f32 v36, v36, v36')
            if i == 0:
                for x in range(6):
                    A(f'v_mov_b32 v{S+x}, v{S+x+2}')
            A(f'v_lshlrev_b32 v{S+6+i}, 16, v36')
        for n in range(48):
            k = n % 24
            t, j = k // 3, k % 3
            d = 8 + 4 * (t & 1)
            if k == 0:
                A('s_waitcnt lgkmcnt(0)')
            A(f'v_mfma_f32_16x16x32_bf16 {vr(d,4)}, {vr(RING+4*n,4)}, {vr(Q+4*j,4)}, {"0" if j == 0 else vr(d,4)}')
            if t == 7:
                A(f'ds_read_b128 {vr(Q+4*j,4)}, v51 offset:{1024*j + 128*(n//24 + 1)}')
            wait(n)
            load(n)
            balance(n)
            if o['TB'] and n == 24 + ND - 1:
                A('s_cmp_eq_u32 s99, 3')
                A(f's_cselect_b32 s44, {o["TB"]}, 0')
                A('s_or_b32 s100, s100, s44')
            if j == 0 and n > 0:
                extract((t - 1) & 7)
                if n == 24:
                    score(0)
        extract(7)
        score(1)
        A('v_add_u32 v51, 256, v51')
        A('s_add_u32 s99, s99, 1')
        A('s_cmp_lt_u32 s99, 4')
        A('s_cbranch_scc1 L_kloop')
        self.stamp(3)
        T = 8

        def tree(op, d0, d1):
            for a in (0, 1, 4, 5):
                A(f'v_permlane32_swap_b32 v{T+a}, v{T+a+2}')
            for a in (0, 1, 4, 5):
                A(f'{op} v{T+a}, v{T+a}, v{T+a+2}')
            for a in (0, 4):
                A(f'v_permlane16_swap_b32 v{T+a}, v{T+a+1}')
            A(f'{op} v{d0}, v{T}, v{T+1}')
            A(f'{op} v{d1}, v{T+4}, v{T+5}')
            for m in self.ROW16:
                for d in (d0, d1):
                    A(f'{op}_dpp v{d}, v{d}, v{d} {m} {DPPM}')
        for i in range(8):
            A(f'v_mov_b32 v{T+i}, v{S+VORD[i]}')
        tree('v_max_f32', 46, 48)
        for i in range(8):
            A(f'v_readlane_b32 s{70+i}, v{46+2*(i>>2)}, {16*(i&3)}')
        for i in range(8):
            A(f'v_subrev_f32 v{T+i}, s{70+i}, v{S+VORD[i]}')
        for i in range(8):
            A(f'v_mul_f32 v{T+i}, {LOG2E}, v{T+i}')
        for i in range(8):
            A(f'v_exp_f32 v{T+i}, v{T+i}')
        for i in range(8):
            A(f'v_cvt_pk_bf16_f32 v{S+i}, v{T+i}, v{T+i}')
        if o['t0'] >= 2:
            A(f'v_mov_b32 v61, v{T+7}')
        tree('v_add_f32', 47, 49)
        A('s_mov_b32 exec_lo, 0x00010001')
        A('s_mov_b32 exec_hi, 0x00010001')
        A('ds_write_b64 v52, v[46:47]')
        A('ds_write_b64 v52, v[48:49] offset:128')
        A('s_mov_b64 exec, 1')
        A(f'ds_add_u32 v63, v55 offset:{C_KC}')
        A('s_mov_b64 exec, -1')
        A('s_waitcnt lgkmcnt(0)')

        def pv(c):
            t = (c % 24) // 3
            b = 8 + 4 * (t & 1)
            A(f'v_mov_b32_dpp v6, v{S+c//24} row_newbcast:{t} row_mask:0xf bank_mask:0x3')
            A(f'v_mov_b32_dpp v37, v{S+c//24} row_newbcast:{8+t} row_mask:0xf bank_mask:0xc')
            A('v_or_b32 v5, v6, v37')
            for w in range(4):
                A(f'v_and_b32 v{b+w}, v5, v{42+w}')

        def pm(c):
            t, j = (c % 24) // 3, c % 3
            b = 8 + 4 * (t & 1)
            A(f'v_mfma_f32_16x16x32_bf16 {vr(Q+4*j,4)}, {vr(RING+4*(c%48),4)}, {vr(b,4)}, {"0" if t == 0 else vr(Q+4*j,4)}')

        def flush():
            A('s_mov_b64 exec, s[94:95]')
            for j in range(3):
                A(f'ds_write_b128 v62, {vr(Q+4*j,4)} offset:{256*j}')
            A('s_mov_b64 exec, 1')
            A(f'ds_add_u32 v63, v60 offset:{C_IC}')
            A('s_mov_b64 exec, -1')
            A('v_add_u32 v62, 1536, v62')
            A('v_lshlrev_b32 v60, 4, v60')

        def factor(cnt='s99'):
            top, done = self.lab('rdy'), self.lab('rdyd')
            A(f's_lshl2_add_u32 s44, s3, {L_FL + 7*16}')
            A('v_mov_b32 v2, s44')
            A(f's_mov_b32 {cnt}, {SPIN*8}')
            A(f'{top}:')
            A(f'ds_read_b32 v1, v63 offset:{C_RDY}')
            A('ds_read_b32 v46, v2')
            A('s_waitcnt lgkmcnt(0)')
            A('v_readfirstlane_b32 s96, v1')
            A('s_cmp_lg_u32 s96, 0')
            A(f's_cbranch_scc1 {done}')
            A(f's_sub_u32 {cnt}, {cnt}, 1')
            A(f's_cbranch_scc0 {top}')
            A(f'{done}:')
        A('v_mov_b32 v6, 0')
        A('v_mov_b32 v37, 0')
        LAG = o['LAG']
        assert LAG > DX

        def consume(c):
            if c % 24 == 0 and c:
                flush()
            if c % 3 == 0:
                pv(c)
            pm(c)
        c = 0
        for n in range(48):
            while c < min(2 * n + 2, 49 + n - LAG):
                consume(c)
                c += 1
            wait(n)
            load(n)
            balance(n)
        assert c == 96 - LAG
        A('s_mov_b32 s99, 0')
        A('L_vloop:')
        for i in range(6):
            A(f'v_mov_b32 v{S+i}, v{S+i+2}')
        for n in range(48):
            consume(48 + n - LAG)
            wait(n)
            load(n)
            balance(n)
            if o['t0'] >= 2 and n == 24:
                A('s_cmp_eq_u32 s99, 0')
                A('s_cbranch_scc1 L_nofac')
                factor('s47')
                A('v_mul_f32 v61, v61, v46')
                A(f'v_cvt_pk_bf16_f32 v{S+3}, v61, v61')
                A('L_nofac:')
        if o['TV']:
            A(f's_sub_u32 s101, s101, {16*o["TV"]}')
        A('s_add_u32 s99, s99, 1')
        A('s_cmp_lt_u32 s99, 2')
        A('s_cbranch_scc1 L_vloop')
        ldsadd(16)
        if o['t0'] < 2:
            factor()
        self.stamp(4)
        nxt = (c + 2) // 3
        while c < 96:
            while nxt < 32 and nxt <= (c + 2) // 3:
                pv(3 * nxt)
                nxt += 1
            if 95 - c < DX:
                A(f's_waitcnt vmcnt({95-c})')
            pm(c)
            c += 1
        self.stamp(5)
        A('s_mov_b64 exec, s[94:95]')
        for j in range(3):
            for h in range(2 if o['t0'] < 2 else 0):
                A(f'v_pk_mul_f32 {vr(Q+4*j+2*h,2)}, {vr(Q+4*j+2*h,2)}, v[46:47] op_sel_hi:[1,0]')
            A(f'ds_write_b128 v62, {vr(Q+4*j,4)} offset:{256*j}')
        A('s_mov_b64 exec, 1')
        A('ds_add_rtn_u32 v1, v63, v55')
        A('s_mov_b32 exec_lo, -1')
        A('s_mov_b32 exec_hi, 0xffff')
        for w in range(4):
            for h in range(2):
                A(f'ds_read_b128 {vr(64+8*w+4*h,4)}, v56 offset:{12288*w + 768*h}')
        A('s_waitcnt lgkmcnt(0)' if o['stamps'] else 's_waitcnt lgkmcnt(8)')
        A('v_readfirstlane_b32 s44, v1')
        if not o['t0']:
            A('s_cmp_lg_u32 s44, 3')
            A('s_cbranch_scc1 L_end')
        for w in range(4):
            A(f's_waitcnt lgkmcnt({6-2*w})')
            self.pk('add', 64 + 8 * w, 64 + 8 * w, 68 + 8 * w, n=2)
            if w:
                self.pk('add', 64, 64, 64 + 8 * w, n=2)
            elif o['t0']:
                A('s_cmp_lg_u32 s44, 3')
                A('s_cbranch_scc1 L_end')
        self.pack(2, 64, 2)
        A('v_min_u32 v2, -2, v2')
        A('v_min_u32 v3, -2, v3')
        self.mode_store('buffer_store_dwordx2 v[2:3], v57, s[4:7], 0 offen', 's96')
        ldsadd(64)
        self.stamp(6)
        if o['diag']:
            dg = o['diag']
            A('s_waitcnt lgkmcnt(0)')
            A('s_cmp_lg_u32 s2, 200')
            A('s_cbranch_scc1 L_end')
            A(f's_sub_u32 s44, s{48+2*int(dg[1])}, s{48+2*int(dg[2])}')
            A(f's_mul_i32 s44, s44, {dg[3]}')
            A('s_add_u32 s44, s44, 10000')
            A('L_dg:')
            A('s_memrealtime s[46:47]')
            A('s_waitcnt lgkmcnt(0)')
            A('s_sub_u32 s46, s46, s48')
            A('s_cmp_lt_u32 s46, s44')
            A('s_cbranch_scc1 L_dg')
        self.dump_stamps(0)
        A('L_end:')
        A('s_endpgm')

    WR = 128

    def dma_addr(self, ptr, rowbase_s, stride, colb_s):
        A = self.A
        A(f's_mul_i32 s10, {rowbase_s}, {stride}')
        A(f's_add_u32 s10, s10, {colb_s}')
        A(f's_add_u32 s10, s{ptr}, s10')
        A(f's_addc_u32 s11, s{ptr+1}, 0')
        A(f'v_mul_u32_u24 v1, {stride}, v18')
        A('v_lshl_add_u32 v10, v19, 4, v1')
        A('v_xor_b32 v2, 4, v19')
        A('v_lshl_add_u32 v12, v2, 4, v1')
        A(f'v_add_u32 v12, {8*stride}, v12')
        A('v_mov_b32 v11, 0')
        A('v_mov_b32 v13, 0')
        A('v_lshl_add_u64 v[10:11], v[10:11], 0, s[10:11]')
        A('v_lshl_add_u64 v[12:13], v[12:13], 0, s[10:11]')

    def dma_issue(self, NS, stride, pol, DH, burst=0, cond=0, s0=0, jump=None, hold=0, mid=(0, None), nobar=None):
        A = self.A
        A(f's_mov_b32 s10, {16*stride}')
        A('s_mov_b32 s11, 0')
        self.stamp(4, 1)
        A(f's_add_u32 m0, s37, {4096*s0}')
        for i in range(4 * (NS - s0)):
            a = 10 + 2 * (i & 1)
            if i and i == mid[0]:
                mid[1]()
            if jump and i + 4 * s0 in (16, 17):
                A(f'v_lshl_add_u64 {vr(a,2)}, {vr(a,2)}, 0, {jump}')
            if i >= DH and i >= burst:
                if cond:
                    l = self.lab('np')
                    A(f's_cbranch_vccz {l}')
                A(f's_waitcnt vmcnt({DH-1})')
                if cond:
                    A(f'{l}:')
            A(f'global_load_lds_dwordx4 {vr(a,2)}, off {pol}')
            A('s_add_u32 m0, m0, 1024')
            A(f'v_lshl_add_u64 {vr(a,2)}, {vr(a,2)}, 0, s[10:11]')
            if self.o['hold'] and s0 == 0 and i + 1 == min(hold or self.o['hold'], 4 * NS):
                l = self.lab('nb')
                A(nobar or f's_cmp_lg_u32 s39, {L_RED}')
                A(f's_cbranch_scc1 {l}')
                A('s_barrier')
                A(f'{l}:')

    def tr_addr(self, worder):
        A = self.A
        A('v_bfe_u32 v1, v0, 2, 2')
        A('v_and_b32 v2, 3, v0')
        if worder == 2:
            A('v_lshl_add_u32 v3, v20, 2, v1')
            A('v_lshrrev_b32 v4, 1, v1')
            A('v_lshrrev_b32 v5, 1, v20')
        elif not worder:
            A('v_lshl_add_u32 v3, v20, 3, v1')
            A('v_lshrrev_b32 v4, 1, v1')
            A('v_and_b32 v5, 1, v20')
        else:
            A('v_lshlrev_b32 v3, 1, v20')
            A('v_lshl_add_u32 v3, v1, 3, v3')
            A('v_and_b32 v4, 1, v20')
            A('v_and_b32 v5, 1, v1')
        A('v_lshl_add_u32 v4, v5, 1, v4')
        A('v_lshlrev_b32 v3, 7, v3')
        A('v_lshl_add_u32 v3, v2, 3, v3')
        A('v_add_u32 v3, s37, v3')
        for ct in range(4):
            A(f'v_xor_b32 v5, {ct}, v4')
            A(f'v_lshl_add_u32 v{14+ct}, v5, 5, v3')

    def tr_read(self, NS, hfoff, extra=0, s0=0, WR=128):
        A = self.A
        self.stamp(1, 1)
        for s in range(s0, NS):
            A(f's_waitcnt vmcnt({4*(NS-1-s)+extra})')
            if s in (0, NS - 1):
                self.stamp(2 if s == 0 else 3, 1)
            for ct in range(4):
                for hf in range(2):
                    A(f'ds_read_b64_tr_b16 {vr(WR+16*s+4*ct+2*hf,2)}, v{14+ct} offset:{4096*s+hfoff*hf}')
        A('s_waitcnt lgkmcnt(0)')

    def dense_addr(self, dst, base, esz, k='v23'):
        A = self.A
        sh = 1 if esz == 2 else 2
        A(f'v_lshrrev_b32 v1, 6, {k}')
        A('v_lshl_add_u32 v1, v1, 1, v22')
        A('v_lshlrev_b32 v1, 6, v1')
        A(f'v_and_b32 v2, 63, {k}')
        A(f'v_add_lshl_u32 {dst}, v1, v2, {sh}')
        if base:
            A(f'v_add_u32 {dst}, {base}, {dst}')

    def mfma_std(self, act, NS=5, shadow=(), per=2, hook=(0, None)):
        A = self.A
        shadow = list(shadow)
        for s in range(NS):
            cur = act if s == 0 else 112 + 4 * (s & 1)
            for ct in range(4):
                d = vr(96 + 4 * ct, 4)
                A(f'v_mfma_f32_16x16x32_bf16 {d}, {vr(self.WR+16*s+4*ct,4)}, {vr(cur,4)}, {"0" if s == 0 else d}')
                if 4 * s + ct + 1 == hook[0]:
                    hook[1]()
                if s + 1 < NS and ct < 2:
                    for i in (2 * ct, 2 * ct + 1):
                        A(f'v_mov_b32_dpp v{112+4*((s+1)&1)+i}, v{act+i} row_shl:{2*(s+1)} {DPPM}')
                else:
                    for i in range(1 if s + 1 == NS and len(shadow) < 5 else per):
                        if shadow:
                            A(shadow.pop(0))
        for x in shadow:
            A(x)

    def red_addr(self):
        A = self.A
        A('s_lshl_b32 s10, s38, 9')
        A('s_add_u32 s10, s10, s39')
        A('v_lshlrev_b32 v1, 8, v22')
        A('v_lshl_add_u32 v1, v20, 4, v1')
        A('v_add_u32 v24, s10, v1')
        A('v_lshl_add_u32 v25, v0, 3, s39')
        A('s_lshr_b32 s10, s39, 9')
        A(f's_add_u32 s10, s10, {L_CNT + 4 - (L_RED >> 9)}')
        A('v_mov_b32 v26, s10')
        A('v_mov_b32 v27, 1')
        A('s_mov_b32 s45, 3')

    def arrive(self, notlast, reads=None, nreads=0, defer=False):
        A = self.A
        A('s_mov_b64 exec, 1')
        A('ds_add_rtn_u32 v1, v26, v27')
        A('s_mov_b64 exec, -1')
        if reads:
            reads()
        A(f's_waitcnt lgkmcnt({0 if self.o["stamps"] else nreads})')
        A('v_readfirstlane_b32 s8, v1')
        if not (defer and self.o['db']):
            self.lastonly(notlast)

    def lastonly(self, notlast, deferred=False):
        if deferred and not self.o['db']:
            return
        self.A('s_cmp_lg_u32 s8, s45')
        self.A(f's_cbranch_scc1 {notlast}')

    def probe(self):
        A = self.A
        if self.o['sel'] >= 0:
            return
        skip, top = self.lab('noprobe'), self.lab('probe')
        A('s_cmp_lg_u32 s38, 0')
        A(f's_cbranch_scc1 {skip}')
        A('s_lshr_b32 s10, s2, 6')
        A('s_lshl_b32 s10, s10, 14')
        A('s_and_b32 s11, s2, 63')
        A('s_lshl_b32 s11, s11, 7')
        A('s_add_u32 s10, s10, s11')
        A(f's_add_u32 s10, s10, {H_PRB}')
        A(f's_add_u32 s10, s{sWS}, s10')
        A(f's_addc_u32 s11, s{sWS+1}, 0')
        A('s_mov_b32 s12, -1')
        A('s_mov_b32 s13, -1')
        A(f's_mov_b32 s9, {self.o["NP"]}')
        A(f'{top}:')
        for c in range(2):
            A('s_memtime s[32:33]')
            A('s_waitcnt lgkmcnt(0)')
            A(f's_load_dword s8, s[10:11], {8192*c} glc')
            A('s_waitcnt lgkmcnt(0)')
            A('s_memtime s[34:35]')
            A('s_waitcnt lgkmcnt(0)')
            A('s_sub_u32 s8, s34, s32')
            A(f's_min_u32 s{12+c}, s{12+c}, s8')
        A('s_sub_u32 s9, s9, 1')
        A('s_cmp_lg_u32 s9, 0')
        A(f's_cbranch_scc1 {top}')
        A('s_cmp_lt_u32 s13, s12')
        A('s_cselect_b32 s8, 8192, 0')
        A(f'v_mov_b32 v1, {L_CNT+16}')
        A('v_mov_b32 v2, s8')
        A('ds_write_b32 v1, v2')
        A(f'{skip}:')

    def get_sel(self):
        A = self.A
        if self.o['sel'] >= 0:
            A(f's_mov_b32 s47, {8192*self.o["sel"]}')
            return
        A(f'v_mov_b32 v1, {L_CNT+16}')
        A('ds_read_b32 v1, v1')
        A('s_waitcnt lgkmcnt(0)')
        A('v_readfirstlane_b32 s47, v1')
        A('s_and_b32 s47, s47, 8192')
        if self.o['stamps']:
            A('s_mov_b32 s60, s47')

    def wake(self, level, add=True, both=True, sleep=None):
        A = self.A
        top, done = self.lab('wake'), self.lab('awake')
        A(f'v_mov_b32 v1, {L_CNT+24}')
        if add:
            A('v_mov_b32 v2, 1')
            A('s_mov_b64 exec, 1')
            A('ds_add_u32 v1, v2')
            A('s_mov_b64 exec, -1')
        A(f's_mov_b32 s9, {SPIN*8}')
        A(f'{top}:')
        A('ds_read_b64 v[2:3], v1')
        A('s_waitcnt lgkmcnt(0)')
        if both:
            A('v_lshrrev_b32 v2, 2, v2')
            A('v_mul_u32_u24 v3, v2, v3')
        A(f'v_cmp_gt_u32 vcc, {level}, v3')
        A(f's_cbranch_vccz {done}')
        A(f's_sleep {sleep or self.o["wks"]}')
        A('s_sub_u32 s9, s9, 1')
        A(f's_cbranch_scc0 {top}')
        A(f'{done}:')

    def midwait(self):
        if self.o['p2']:
            self.A('s_setprio 0')
        self.wake(1, add=False, both=False, sleep=16)
        self.flags_addr('v8', True)
        self.flags_wait('v8', 'v9')

    def tail_begin(self, name):
        A = self.A
        A('s_mov_b32 s46, 8192')
        self.stamp(1)
        A('s_mov_b32 s6, 0')
        A('s_mov_b32 s30, 0')
        A('s_mov_b32 s45, 0')
        A('v_mov_b32 v27, 0')
        A(f'{name}:')
        self.stamp(2)

    def hbar(self, sleep=0):
        A = self.A
        top, done = self.lab('hbar'), self.lab('hbard')
        A(f'v_mov_b32 v1, {L_CNT+12}')
        A('v_mov_b32 v2, 1')
        A('s_mov_b64 exec, 1')
        A('ds_add_u32 v1, v2')
        A('s_mov_b64 exec, -1')
        A(f's_mov_b32 s9, {SPIN*8}')
        A(f'{top}:')
        A('ds_read_b32 v2, v1')
        A('s_waitcnt lgkmcnt(0)')
        A('v_cmp_ne_u32 vcc, 4, v2')
        A(f's_cbranch_vccz {done}')
        if sleep:
            A(f's_sleep {sleep}')
        A('s_sub_u32 s9, s9, 1')
        A(f's_cbranch_scc0 {top}')
        A(f'{done}:')

    def merge_call(self, ty):
        A = self.A
        A(f's_mov_b32 s24, {ty}')
        A('s_cmp_eq_u32 s38, 3')
        A('s_cbranch_scc1 L_merge')
        A(f'L_back{ty}:')

    def tail_end(self, name, ty, level, late=None, llevel=128):
        A = self.A
        l = self.lab('real')
        A('s_cmp_lg_u32 s45, 0')
        A(f's_cbranch_scc1 {l}')
        A('s_mov_b64 exec, -1')
        A(f's_mov_b32 s6, {H_END}')
        A('s_mov_b32 s30, 2560')
        A('s_mov_b32 s45, 3')
        A('v_mov_b32 v27, 1')
        A('s_waitcnt vmcnt(0)')
        self.merge_call(ty)
        if late:
            self.wake(llevel)
            self.stamp(1)
            late()
        else:
            self.wake(level)
        A(f's_branch {name}')
        A(f'{l}:')
        self.dump_stamps(0x20000)
        A('s_endpgm')

    def red_write_std(self, nt=4, off=0):
        A = self.A
        A('s_mov_b32 exec_lo, 0x00030003')
        A('s_mov_b32 exec_hi, 0x00030003')
        for ct in range(nt):
            A(f'ds_write_b128 v24, {vr(96+4*ct,4)} offset:{64*ct+off}')

    def red_read(self, dst, addr='v25', off=0):
        A = self.A
        for w in range(4):
            A(f'ds_read_b64 {vr(dst+2*w,2)}, {addr} offset:{512*w+off}')

    def red_sum(self, dst):
        self.pk('add', dst, dst, dst + 4, n=2)
        self.pk('add', dst, dst, dst + 2, n=1)

    def publish_bf16(self, base):
        A = self.A
        self.red_read(96)
        A('s_lshl_b32 s10, s40, 8')
        A(f's_add_u32 s10, s10, {base}')
        A('v_lshl_add_u32 v1, v0, 2, s10')
        A('s_waitcnt lgkmcnt(0)')
        self.red_sum(96)
        A('v_cvt_pk_bf16_f32 v2, v96, v97')
        A('v_min_u32 v2, -2, v2')
        A('buffer_store_dword v2, v1, s[4:7], 0 offen sc1')
        A('s_mov_b64 exec, 1')
        A('ds_add_u32 v26, v27')
        A('s_mov_b64 exec, -1')

    def ln_scalars(self, mean, var):
        A = self.A
        A(f'v_cvt_pk_bf16_f32 v1, {mean}, {var}')
        A(f'v_and_b32 {var}, 0xffff0000, v1')
        A(f'v_add_f32 {var}, {f2u(1e-5)}, {var}')
        self.rbf(var)
        A(f'v_sqrt_f32 {var}, {var}')
        A(f'v_lshlrev_b32 {mean}, 16, v1')
        self.rbf(var)
        A(f'v_rcp_f32 {var}, {var}')

    def helper(self):
        A = self.A
        A('L_helper:')
        if self.o['ec']:
            A(f's_setprio {self.o["prio"]}')
            A('s_lshl_b32 s10, s3, 8')
            A('s_add_u32 s10, s10, s2')
            A('s_sub_u32 s10, s10, 1024')
            A('s_cmp_lt_u32 s10, 40')
            A('s_cbranch_scc1 L_clear')
            A('L_help2:')
        A('s_getpc_b64 s[92:93]')
        A('L_pc:')
        A('s_lshr_b32 s8, s2, 3')
        A('s_lshl2_add_u32 s8, s8, s3')
        A(f's_lshl_b32 s8, s8, {6 if self.o["pf"] > 2 else 7}')
        for i in range(self.o['pf']):
            if i:
                A(f's_add_u32 s8, s8, {8192 if self.o["pf"] > 2 else 16384}')
                A('s_min_u32 s8, s8, L_tab-L_pc')
            A('s_load_dword s9, s[92:93], s8')
        A('s_add_u32 s92, s92, L_tab-L_pc')
        A('s_addc_u32 s93, s93, 0')
        A('s_lshl_b32 s8, s2, 2')
        A('s_load_dword s36, s[92:93], s8')
        A(f's_setprio {self.o["prio"]}')
        A('s_sub_u32 s38, s3, 4')
        A('s_mul_i32 s37, s38, 24576')
        A(f's_mov_b32 s39, {L_RED}')
        A(f'v_mov_b32 v1, {L_CNT}')
        A('v_mov_b32 v2, 0')
        A('v_mov_b32 v3, 0')
        A('ds_write_b64 v1, v[2:3]')
        for o in (8, 16, 24, 32, 40):
            A(f'ds_write_b64 v1, v[2:3] offset:{o}')
        A('v_lshrrev_b32 v18, 3, v0')
        A('v_lshrrev_b32 v20, 4, v0')
        A('v_and_b32 v1, 1, v20')
        A('v_lshlrev_b32 v1, 1, v1')
        A('v_and_b32 v2, 7, v0')
        A('v_xor_b32 v19, v1, v2')
        A('v_and_b32 v22, 1, v0')
        A('v_bfe_u32 v1, v0, 1, 3')
        A('v_min_u32 v1, 4, v1')
        A('v_lshlrev_b32 v1, 5, v1')
        A('v_lshl_add_u32 v21, v20, 3, v1')
        A('s_mul_i32 s41, s38, 160')
        A('v_add_u32 v23, s41, v21')
        A('s_mov_b32 s16, 0x03ff03ff')
        A('s_mov_b32 s17, 0x03ff03ff')
        A('s_waitcnt lgkmcnt(0)')
        if not self.o['hold']:
            A('s_barrier')
        self.ws_srd()
        if not self.o['ec']:
            A('s_bitcmp1_b32 s36, 28')
            A('s_cbranch_scc1 L_clear')
        A('L_job:')
        A('s_and_b32 s10, s36, 15')
        A('s_bfe_u32 s40, s36, 0x80004')
        A('s_lshr_b32 s36, s36, 12')
        A('s_and_b32 s36, s36, 0xfff')
        for ty, l in ((T_M, 'L_M'), (T_Q, 'L_Q'), (T_W, 'L_W'), (T_F, 'L_F'), (T_D, 'L_D')):
            A(f's_cmp_eq_u32 s10, {ty}')
            A(f's_cbranch_scc1 {l}')
        A('s_branch L_idle')
        A('L_next:')
        if self.o['pw']:
            A('s_cmp_eq_u32 s36, 0')
            A('s_cbranch_scc1 L_idle')
            self.lwait(4, lambda: A('s_cmp_ge_u32 s8, 5'), 2)
        A('s_add_u32 s39, s39, 2048')
        A('s_branch L_job')
        A('L_clear:')
        if self.o['ec']:
            A('s_waitcnt lgkmcnt(0)')
            self.ws_srd()
        else:
            A('s_bfe_u32 s10, s36, 0x40018')
            A('s_lshl2_add_u32 s10, s10, s38')
        for i in range(4):
            A(f'v_mov_b32 v{4+i}, -1')
        A('s_mov_b32 s11, 4096')
        A('s_cmp_ge_u32 s10, 8')
        A('s_cbranch_scc1 L_clrB')
        A('s_mul_i32 s12, s10, 5120')
        A('v_lshl_add_u32 v1, v0, 4, s12')
        for k in range(0 if self.o['xc'] & 1 else 5):
            A(f'buffer_store_dwordx4 v[4:7], v1, s[4:7], {"s11" if k >= 4 else "0"} offen offset:{1024*(k&3)} sc1')
        A('s_branch L_clrF')
        A('L_clrB:')
        assert H_TS == 8 * 5120 and H_CLR - H_TS <= 12 * 32768
        A('s_add_u32 s12, s10, 32')
        A('s_lshl_b32 s12, s12, 10')
        A('v_lshl_add_u32 v1, v0, 4, s12')
        A(f's_mov_b32 s6, {H_END if self.o["ca"] else H_CLR}')
        used = lambda kb: not (H_X2 <= kb * 1024 < H_OP) or (kb & 7) < (3 + bool(self.o['wt']) if kb * 1024 < H_ACT else 6 if kb * 1024 < H_Y else 5)
        for i in range(30 if self.o['ca'] else 1 if self.o['xc'] & 2 else 12):
            m = sum(used(40 + 32 * i + c) << c for c in range(32))
            if self.o['cs'] and m != 0xffffffff:
                l = self.lab('nc')
                A('s_sub_u32 s12, s10, 8')
                A(f's_bitcmp1_b32 {m}, s12')
                A(f's_cbranch_scc0 {l}')
                A('buffer_store_dwordx4 v[4:7], v1, s[4:7], 0 offen sc1')
                A(f'{l}:')
            else:
                A('buffer_store_dwordx4 v[4:7], v1, s[4:7], 0 offen sc1')
            A('v_add_u32 v1, 32768, v1')
        A('s_add_u32 s10, s10, 24')
        A(f's_mov_b32 s6, {H_END}')
        A('L_clrF:')
        A('s_lshl_b32 s10, s10, 2')
        A('v_mov_b32 v1, s10')
        A('s_waitcnt vmcnt(0)')
        A('s_mov_b64 exec, 1')
        A(f'global_store_dword v1, v4, {sp(sDBG)} sc1')
        A('s_mov_b64 exec, -1')
        A('s_branch L_help2' if self.o['ec'] else 's_branch L_job')

        A('L_M:')
        A('v_mul_u32_u24 v1, 640, v22')
        A('v_add_lshl_u32 v1, v1, v23, 1')
        A(f'global_load_dwordx4 v[28:31], v1, {sp(sC)}')
        A('s_lshl_b32 s12, s40, 7')
        self.dma_addr(sWM, 's41', 7680, 's12')
        A(f's_cmp_lg_u32 s39, {L_RED}')
        A('s_cselect_b64 vcc, -1, 0')
        self.dma_issue(5, 7680, 'nt', self.o['DM2'], cond=1, nobar='s_cmp_lt_u32 s40, 20' if self.o['mh'] else None)
        self.tr_addr(False)
        self.red_addr()
        A('s_waitcnt vmcnt(20)')
        self.unpack(32, 28, 4)
        for i in range(8):
            self.silu(f'v{32+i}', 'v4', 'v5')
        self.pack(28, 32, 4)
        self.flags_addr('v8', False)
        A(f'global_load_dword v9, v8, {sp(sDBG)} sc1')
        self.tr_read(5, 512, extra=1)
        self.stamp(1)
        self.mfma_std(28)
        self.red_write_std()
        self.arrive('L_Mdone')
        ok = self.lab('fok')
        A('s_waitcnt vmcnt(0)')
        A('v_cmp_eq_u32 vcc, 0, v9')
        A(f's_cbranch_vccz {ok}')
        self.flags_wait('v8', 'v9')
        A(f'{ok}:')
        self.publish_bf16(H_MOD)
        if self.o['stamps']:
            self.stamp(2)
            A('s_cmp_lt_u32 s40, 20')
            A('s_cbranch_scc0 L_next')
            self.dump_stamps(0x10000)
            A('s_mov_b64 exec, -1')
        A('L_Mdone:')
        if self.o['mh']:
            assert JT == 5 and self.o['hold']
            A('s_cmp_lt_u32 s40, 20')
            A('s_cbranch_scc0 L_next')
            A('s_barrier')
        A('s_branch L_next')

        A('L_Q:')
        xl = self.o['xl']

        def xload():
            A('v_mul_u32_u24 v1, 640, v22')
            A('v_add_lshl_u32 v2, v1, v23, 1')
            A('v_add_lshl_u32 v1, v1, v21, 1')
            A(f'global_load_dwordx4 v[28:31], v2, {sp(sX)}')
            for w in range(4):
                A(f'global_load_dwordx4 {vr(32+4*w,4)}, v1, {sp(sX)} offset:{320*w}')
        if not xl:
            xload()
        A('s_lshl_b32 s12, s40, 7')
        self.dma_addr(sWQ, 's41', 12288, 's12')
        self.dma_issue(5, 12288, 'nt', self.o['DQ'], mid=(xl, xload))
        self.tr_addr(False)
        self.red_addr()
        A(f's_waitcnt vmcnt({20-xl})')
        self.unpack(48, 32, 16)
        self.unpack(32, 28, 4)
        self.pk('add', 80, 48, 64, n=8)
        self.pk('add', 80, 80, 88, n=4)
        self.pk('add', 80, 80, 84, n=2)
        self.pk('add', 80, 80, 82, n=1)
        A('v_add_f32 v6, v80, v81')
        A('v_cndmask_b32 v6, 0, v6, s[16:17]')
        self.rowred('v_add_f32', 'v6', self.ROWPAR)
        self.xrow('v_add_f32', 'v6', 'v1')
        A(f'v_mul_f32 v6, {f2u(1/640)}, v6')
        A('v_mov_b32 v8, 0')
        for i in range(32):
            A(f'v_sub_f32 v1, v{48+i}, v6')
            A('v_fmac_f32 v8, v1, v1')
        A('v_cndmask_b32 v8, 0, v8, s[16:17]')
        self.rowred('v_add_f32', 'v8', self.ROWPAR)
        self.xrow('v_add_f32', 'v8', 'v1')
        A(f'v_mul_f32 v8, {f2u(1/640)}, v8')
        self.ln_scalars('v6', 'v8')
        self.pk('add', 32, 32, 6, bstep=0, mods='op_sel_hi:[1,0] neg_lo:[0,1] neg_hi:[0,1]')
        self.rbf8(32, 28)
        self.pk('mul', 32, 32, 8, bstep=0, mods='op_sel_hi:[1,0]')
        self.rbf8(32, 28)
        self.flags_addr('v8', False)
        A(f'global_load_dword v9, v8, {sp(sDBG)} sc1')
        self.tr_read(5, 512, extra=1)
        ok = self.lab('fok')
        A('s_waitcnt vmcnt(0)')
        A('v_cmp_eq_u32 vcc, 0, v9')
        A(f's_cbranch_vccz {ok}')
        self.flags_wait('v8', 'v9')
        A(f'{ok}:')
        self.dense_addr('v8', H_MOD, 2)
        self.stamp(1)
        if self.o['NG']:
            if self.o['g3']:
                A('s_and_b32 s10, s40, 7')
                A('s_cmp_eq_u32 s10, 3')
                A('s_cbranch_scc1 L_Qgo')
            self.lwait(20, lambda: A(f's_cmp_ge_u32 s8, {self.o["gc"]}'), 4)
            A('L_Qgo:')

        def ld():
            A('buffer_load_dwordx4 v[40:43], v8, s[4:7], 0 offen sc1')
            A('buffer_load_dwordx4 v[44:47], v8, s[4:7], 0 offen offset:2560 sc1')
        if self.o['pp']:
            for r in range(40, 48):
                A(f'v_mov_b32 v{r}, -1')
            self.poll(ld, range(40, 48), 'v1', mask=True, sleep=self.o['psl'], fly=2 * self.o['pp'])
        else:
            self.poll(ld, range(40, 48), 'v1', mask=True, sleep=self.o['qsl'])
        self.stamp(2)
        self.unpack(56, 44, 4)
        for i in range(4):
            A(f'v_pk_add_f32 {vr(56+2*i,2)}, {vr(56+2*i,2)}, 1.0 op_sel_hi:[1,0]')
        self.rbf8(56, 28)
        self.pk('mul', 32, 32, 56)
        self.rbf8(32, 28)
        self.unpack(48, 40, 4)
        self.pk('add', 32, 32, 48)
        self.pack(28, 32, 4)
        self.mfma_std(28)
        self.red_write_std()
        self.arrive('L_next')
        self.publish_bf16(H_Q)
        if self.o['stamps']:
            self.stamp(3)
            self.dump_stamps(0x10000)
            A('s_mov_b64 exec, -1')
        A('s_branch L_next')

        A('L_W:')
        EF, ED = self.o['EF'], self.o['ED']
        WP, WS = 64, 160
        A('s_and_b32 s42, s40, 7')
        A('s_lshr_b32 s43, s40, 3')
        A('s_sub_u32 s13, 3, s38')
        A('s_lshl3_add_u32 s13, s13, s42')
        A('s_mul_i32 s13, s13, 192')
        A('s_lshl_b32 s12, s43, 7')
        self.dma_addr(sWO, 's13', 1280, 's12')
        A(f's_cmp_lg_u32 s39, {L_RED}')
        A('s_cselect_b64 vcc, -1, 0')
        self.dma_issue(6, 1280, 'nt', self.o['DW2'], cond=1)
        self.tr_addr(1)
        self.red_addr()
        A('s_mul_i32 s10, s42, 12288')
        A(f's_add_u32 s10, s10, {H_OP}')
        A('v_bfe_u32 v1, v0, 1, 3')
        A('v_mul_u32_u24 v1, 384, v1')
        A('v_lshl_add_u32 v1, v22, 4, v1')
        A('v_lshl_add_u32 v1, v20, 5, v1')
        A('v_add_u32 v28, s10, v1')
        A('s_lshl_b32 s10, s38, 9')
        A('s_add_u32 s10, s10, s39')
        A('v_lshl_add_u32 v24, v0, 2, s10')
        A('s_lshr_b32 s10, s42, 1')
        A('s_lshl_b32 s10, s10, 14')
        A('s_and_b32 s11, s42, 1')
        A('s_mul_i32 s11, s11, 2560')
        A('s_add_u32 s10, s10, s11')
        A('s_lshl_b32 s11, s43, 8')
        A('s_add_u32 s10, s10, s11')
        A(f's_add_u32 s10, s10, {H_Y}')
        A('v_bfe_u32 v1, v0, 2, 2')
        A('v_bfe_u32 v3, v0, 4, 1')
        A('v_lshl_add_u32 v1, v1, 1, v3')
        A('v_lshrrev_b32 v3, 5, v0')
        A('v_lshl_add_u32 v1, v1, 1, v3')
        A('v_and_b32 v3, 3, v0')
        A('v_lshl_add_u32 v1, v1, 2, v3')
        A('v_lshl_add_u32 v29, v1, 2, s10')
        A('s_lshl_b32 s10, s42, 10')
        A(f's_add_u32 s10, s10, {H_FLG}')
        A('v_and_b32 v1, 31, v0')
        A('v_lshl_add_u32 v30, v1, 2, s10')
        self.tr_read(6, 128, WR=WP)
        self.hbar(sleep=8)
        hs = self.o['hs']
        if hs:
            A(f's_mov_b32 s37, {3*24576}')
            self.tr_addr(1)
            self.tr_read(6, 128, WR=WS, s0=3)
        AF = 8
        dq = lambda ct, p: 32 + 8 * ct + 4 * p

        def post(ct):
            d = 32 + 8 * ct
            r = [f'v_add_f32 v{d}, v{d}, v{d+2}', f'v_add_f32 v{d+5}, v{d+5}, v{d+7}', f'v_add_f32 v{d}, v{d}, v{d+5}']
            if ct & 1:
                r += [f'v_permlane16_swap_b32 v{d-8}, v{d}', f'v_add_f32 v{d}, v{d-8}, v{d}']
            return r
        A('s_mov_b32 s46, 8192')
        A('s_mov_b32 s6, 0')
        A('s_mov_b32 s45, 0')
        A('s_mov_b32 s44, 0')
        A('s_mov_b32 s47, 0')
        A('v_mov_b32 v27, 0')
        wt = self.o['wt']
        if wt:
            A('s_mov_b32 s25, 1')
            A('s_lshl_b32 s10, s42, 7')
            A(f's_add_u32 s10, s10, {H_X2 + 3072}')
            A('v_mov_b32 v31, s10')
            A(f'v_mov_b32 v21, {L_CNT}')
        A('L_Wt:')
        self.stamp(2)

        def mf(ct, s):
            d = vr(dq(ct, s & 1), 4)
            return f'v_mfma_f32_16x16x32_bf16 {d}, {vr(AF+4*(s>>1),4)}, {vr(WS+16*s+4*ct,4)}, {"0" if s < 2 else d}'
        self.spoll([(f'buffer_load_dwordx4 {vr(AF+4*u,4)}, v28, s[4:7], s47 offen offset:{128*u} sc1', AF + 4 * u) for u in range(3)],
                   [[mf(0, 2 * u), mf(0, 2 * u + 1)] for u in range(3)])
        self.stamp(3)
        sh = []
        for ct in range(1, 4):
            for s in range(6):
                A(mf(ct, s))
                k = 6 * (ct - 1) + s
                if wt and k == 0:
                    A('s_cmp_lg_u32 s25, 0')
                    A('s_cbranch_scc1 L_Wn1')
                    A('s_mov_b64 exec, 1')
                    A('ds_add_rtn_u32 v22, v21, v27 offset:44')
                    A('s_mov_b64 exec, -1')
                    A('L_Wn1:')
                if wt and k == wt:
                    A('s_cbranch_scc1 L_Wn2')
                    A('s_waitcnt lgkmcnt(0)')
                    A('v_readfirstlane_b32 s10, v22')
                    A('s_cmp_lg_u32 s10, 3')
                    A('s_cbranch_scc1 L_Wn2')
                    A('s_mov_b64 exec, 1')
                    A('buffer_store_dword v27, v31, s[4:7], 0 offen sc1')
                    A('buffer_store_dword v27, v31, s[4:7], s46 offen sc1')
                    A('s_mov_b64 exec, -1')
                    A('L_Wn2:')
                if s == 1 and ct >= 2:
                    sh += post(ct - 2)
                if sh:
                    A(sh.pop(0))
        for x in sh + post(2) + post(3):
            A(x)
        A(f's_sub_u32 s47, s47, {OPI}')
        A('s_sub_u32 s44, s44, 1')
        A('v_permlane32_swap_b32 v40, v56')
        A('v_add_f32 v40, v40, v56')
        A('v_add_f32 v40, v40, v4')
        A('ds_write_b32 v24, v40')
        A('v_mov_b32 v4, v5')
        A('v_subrev_u32 v24, 256, v24')
        A('s_cbranch_scc0 L_Wt2')
        self.arrive('L_end', lambda: self.red_read(AF), 4, True)
        A('s_waitcnt lgkmcnt(0)')
        self.red_sum(AF)
        self.lastonly('L_end', True)
        A(f'v_cvt_pk_bf16_f32 v2, v{AF}, v{AF+1}')
        A('v_min_u32 v2, -2, v2')
        A('buffer_store_dword v2, v29, s[4:7], 0 offen sc1')
        A('buffer_store_dword v2, v29, s[4:7], s46 offen sc1')
        self.stamp(4)
        A('s_cmp_lg_u32 s45, 0')
        A('s_cbranch_scc1 L_Wend')
        A(f's_mov_b32 s6, {H_END}')
        A('s_mov_b32 s45, 3')
        A('v_mov_b32 v27, 1')
        A('v_add_u32 v24, 512, v24')
        A('v_mov_b32 v4, 0')
        A('v_mov_b32 v5, 0')
        self.midwait()
        self.merge_call(T_W)
        A('s_cmp_eq_u32 s38, 3')
        A('s_cbranch_scc1 L_Wsh')
        if self.o['xg']:
            A('s_branch L_Wsh')
        A('s_mov_b32 s44, s38')
        A('L_Wp:')
        A('s_lshl2_add_u32 s12, s44, 2')
        self.item_wait('s12')
        self.stamp(1, 3)
        if self.o['fs0']:
            A(f's_sleep {self.o["fs0"]}')
        A('s_lshl_b32 s12, s44, 7')
        if self.o['xf'] != 1:
            self.poll(lambda: A('buffer_load_dword v2, v30, s[4:7], s12 offen sc1'), [2], 'v1', sleep=self.o['fsl'])
        self.stamp(2, 3)
        if self.o['xf'] == 2:
            A('s_mov_b32 s6, 0')
        A('s_sub_u32 s47, 7, s44')
        if self.o['ru']:
            self.lwait(C_RDY, lambda: A('s_cmp_lg_u32 s8, 0'), 8)
            A('s_mov_b32 s26, s8')
            A('s_sub_u32 s10, 7, s38')
            A('s_cmp_eq_u32 s26, 2')
            A('s_cselect_b32 s47, s10, s47')
        A(f's_mul_i32 s20, s47, {OPI}')
        for r in range(1, 4):
            A(f's_add_u32 s{20+r}, s20, {3072*r}')
        NB = 12
        pl = lambda i: A(f'buffer_load_dwordx4 {vr(WS+4*(i%NB),4)}, v28, s[4:7], s{20+i//3} offen offset:{128*(i%3)} sc1')
        for i in range(NB):
            pl(i)
        for i in range(12):
            A(f's_waitcnt vmcnt({min(NB-1, 11-i)})')
            for ct in range(4):
                for p in range(2):
                    d = vr(dq(ct, p), 4)
                    A(f'v_mfma_f32_16x16x32_bf16 {d}, {vr(WS+4*(i%NB),4)}, {vr(WP+16*(2*(i%3)+p)+4*ct,4)}, {"0" if i == 0 else d}')
            if i + NB < 12:
                pl(i + NB)
        if self.o['ru']:
            A('s_cmp_lg_u32 s26, 2')
            A('s_cbranch_scc1 L_Wnd')
            A('s_mul_i32 s10, s38, 10')
            A('s_add_u32 s10, s10, s43')
            A('s_lshl2_add_u32 s10, s10, 896')
            A('s_mov_b64 exec, 1')
            A('buffer_store_dword v0, v30, s[4:7], s10 offen')
            A('s_mov_b64 exec, -1')
            A('L_Wnd:')
        for ct in range(4):
            for x in post(ct):
                A(x)
        A('v_permlane32_swap_b32 v40, v56')
        A('v_mov_b32 v4, v5')
        A('v_add_f32 v5, v40, v56')
        A(f's_mov_b32 s6, {H_END}')
        A('s_add_u32 s44, s44, 3')
        A('s_cmp_lt_u32 s44, 6')
        A('s_cbranch_scc1 L_Wp')
        if self.o['stamps'] == 3:
            self.stamp(3, 3)
            A('s_cmp_lg_u32 s38, 2')
            A('s_cbranch_scc1 L_Wsh')
            self.dump_stamps(0x10000)
            A('s_mov_b64 exec, -1')
        A('L_Wsh:')
        A('v_mov_b32 v6, v4')
        A('v_mov_b32 v7, v5')
        A(f's_mov_b32 s37, {3*24576}')
        self.tr_addr(1)
        self.tr_read(3 if hs else 6, 128, WR=WS)
        A('v_mov_b32 v4, v6')
        A('v_mov_b32 v5, v7')
        self.stamp(1)
        self.wake(self.o['WL'])
        A('s_mul_i32 s47, s38, 3072')
        A(f's_add_u32 s47, s47, {OPI}')
        A('s_mov_b32 s44, 1')
        A('s_branch L_Wt')
        A('L_Wt2:')
        if wt:
            A('s_mov_b32 s25, s43')
        if self.o['w2']:
            self.wake(128, add=False, both=False, sleep=self.o['w2'])
        A('s_branch L_Wt')
        A('L_Wend:')
        self.dump_stamps(0x20000)
        A('s_endpgm')

        A('L_idle:')
        A('s_cmp_lg_u32 s38, 3')
        A('s_cbranch_scc1 L_end')
        self.midwait()
        A('s_mov_b32 s24, 0')
        A('L_merge:')
        if self.o['pt'] == 1:
            A('s_and_b32 s10, s2, 7')
            A('s_lshr_b32 s11, s2, 3')
            A('s_lshl_b32 s10, s10, 5')
            A('s_add_u32 s10, s10, s11')
            A('s_mul_i32 s10, s10, 384')
            A(f's_add_u32 s10, s{sWS}, s10')
            A(f's_addc_u32 s11, s{sWS+1}, 0')
            for j in range(2, 8):
                for k in range(3):
                    A(f's_load_dword s8, s[10:11], {H_OP + j*OPI + 128*k}')
                A('s_waitcnt lgkmcnt(0)')
        self.lwait(C_KC, lambda: A('s_cmp_eq_u32 s8, 4'), 8)
        A('v_and_b32 v96, 31, v0')
        A('v_lshlrev_b32 v1, 3, v96')
        A(f'v_add_u32 v1, {L_MLL}, v1')
        A('ds_read_b64 v[98:99], v1')
        A('s_and_b32 s34, s2, 7')
        A('s_lshr_b32 s35, s2, 3')
        A('s_lshl_b32 s10, s34, 12')
        A(f's_add_u32 s10, s10, {H_ML}')
        A('v_lshrrev_b32 v1, 1, v0')
        A('v_lshlrev_b32 v1, 7, v1')
        A('v_add_u32 v97, s10, v1')
        A('s_lshl_b32 s11, s35, 7')
        A('s_add_u32 s10, s10, s11')
        A('v_lshl_add_u32 v1, v0, 1, s10')
        A('s_getreg_b32 s32, hwreg(HW_REG_XCC_ID, 0, 4)')
        A('s_waitcnt lgkmcnt(0)')
        A('v_mov_b32 v100, v98')
        self.rowred('v_max_f32', 'v100', self.ROW16[:2])
        A('v_sub_f32 v101, v98, v100')
        A(f'v_mul_f32 v101, {LOG2E}, v101')
        A('v_exp_f32 v101, v101')
        A('v_mul_f32 v101, v101, v99')
        self.rowred('v_add_f32', 'v101', self.ROW16[:2])
        A('v_min_u32 v100, -2, v100')
        A('v_min_u32 v101, -2, v101')
        A('v_writelane_b32 v100, s32, 32')
        A('s_mov_b32 exec_lo, 0x11111111')
        A('s_mov_b32 exec_hi, 1')
        A('buffer_store_dwordx2 v[100:101], v1, s[4:7], 0 offen sc1')
        A('s_mov_b64 exec, -1')
        self.item_wait(2 + 4 * self.o['gw'])
        A('v_and_b32 v1, 1, v0')
        A('v_lshl_add_u32 v3, v1, 5, v97')

        def ld():
            A('buffer_load_dwordx4 v[48:51], v3, s[4:7], 0 offen sc1')
            A('buffer_load_dwordx4 v[52:55], v3, s[4:7], 0 offen offset:16 sc1')
            A('buffer_load_dword v56, v97, s[4:7], 0 offen offset:64 sc1')
        self.poll(ld, range(48, 57), 'v1', sleep=self.o['fsl'], mask=True)
        A('v_cmp_ne_u32 vcc, s32, v56')
        A('s_cmp_eq_u64 vcc, 0')
        A(f's_cselect_b32 s32, {2 if self.o["fast"] else 1}, 1')
        for i in range(4):
            A(f'v_mov_b32 v{64+2*i}, v{48+2*i}')

        def par(op, off):
            for m in self.ROWPAR:
                for i in range(4):
                    A(f'{op}_dpp v{off+2*i}, v{off+2*i}, v{off+2*i} {m} {DPPM}')
            for sw in ('v_permlane16_swap_b32', 'v_permlane32_swap_b32'):
                for i in range(4):
                    A(f'v_mov_b32 v{72+i}, v{off+2*i}')
                for i in range(4):
                    A(f'{sw} v{off+2*i}, v{72+i}')
                for i in range(4):
                    A(f'{op} v{off+2*i}, v{off+2*i}, v{72+i}')
        par('v_max_f32', 64)
        for i in range(4):
            A(f'v_sub_f32 v{48+2*i}, v{48+2*i}, v{64+2*i}')
            A(f'v_mul_f32 v{48+2*i}, {LOG2E}, v{48+2*i}')
            A(f'v_exp_f32 v{48+2*i}, v{48+2*i}')
            A(f'v_mul_f32 v{65+2*i}, v{48+2*i}, v{49+2*i}')
        par('v_add_f32', 65)
        A('v_lshlrev_b32 v1, 5, v0')
        A(f'v_add_u32 v1, {L_GL}, v1')
        A('s_mov_b64 exec, 3')
        A('ds_write_b128 v1, v[64:67]')
        A('ds_write_b128 v1, v[68:71] offset:16')
        A('s_mov_b64 exec, -1')
        A('v_lshrrev_b32 v1, 2, v96')
        A('v_lshlrev_b32 v1, 3, v1')
        A(f'v_add_u32 v1, {L_GL}, v1')
        A('ds_read_b64 v[100:101], v1')
        A('v_lshlrev_b32 v1, 2, v96')
        A(f'v_add_u32 v1, {L_FL}, v1')
        A(f'v_mov_b32 v2, {L_CNT}')
        A('v_mov_b32 v3, s32')
        A('s_waitcnt lgkmcnt(0)')
        A('v_sub_f32 v98, v98, v100')
        A(f'v_mul_f32 v98, {LOG2E}, v98')
        A('v_exp_f32 v98, v98')
        A('v_rcp_f32 v101, v101')
        A('v_mul_f32 v98, v98, v101')
        A('ds_write_b32 v1, v98')
        A(f'ds_write_b32 v2, v3 offset:{C_RDY}')
        self.op_addr('v102', 'v103', L_PART)
        if True:
            A(f's_add_u32 s12, s{sWS}, s44')
            A(f's_addc_u32 s13, s{sWS+1}, 0')
        A(f'v_mov_b32 v104, {L_FL}')
        A('s_lshl_b32 s10, s34, 10')
        A('s_lshl2_add_u32 s10, s35, s10')
        A(f's_add_u32 s10, s10, {H_FLG}')
        A('v_mov_b32 v105, s10')
        if self.o['ru']:
            A('s_lshl_b32 s10, s34, 10')
            A(f's_add_u32 s10, s10, {H_FLG + 896}')
            A('v_min_u32 v1, 29, v0')
            A('v_lshl_add_u32 v107, v1, 2, s10')
        A('s_mov_b32 s34, 2')
        A(f's_mov_b32 s35, {7*OPI}')
        A('L_mitem:')
        def touch():
            for k in range(6):
                A(f's_add_u32 s10, s35, {64*k}')
                A('s_load_dword s11, s[12:13], s10')
        if self.o['ad']:
            A('s_memtime s[26:27]')
            A('s_waitcnt lgkmcnt(0)')
            for k in range(self.o['NM']):
                A(f's_add_u32 s10, s35, {128*k}')
                A('s_load_dword s11, s[12:13], s10')
            A('s_waitcnt lgkmcnt(0)')
            A('s_memtime s[22:23]')
            A('s_waitcnt lgkmcnt(0)')
            A('s_sub_u32 s27, s22, s26')
            if self.o['stamps'] == 4:
                A('s_lshr_b32 s10, s34, 2')
                A('s_mov_b32 m0, s10')
                A('v_writelane_b32 v106, s27, m0')
            A('s_mov_b32 s26, s32')
            A(f's_cmp_gt_u32 s27, {self.o["ad"]}')
            A('s_cselect_b32 s26, 1, s26')
            A(f's_cmp_eq_u32 s35, {OPI}')
            A('s_cselect_b32 s26, s32, s26')
        if self.o['pt'] == 2:
            A(f's_cmp_gt_u32 s35, {self.o["ptm"]*OPI}')
            A('s_cbranch_scc1 L_notouch')
            touch()
            A('L_notouch:')
        if self.o['pt'] == 4:
            A('s_sub_u32 s44, s34, 2')
            self.lwait(C_IC, lambda: (A('s_lshr_b32 s8, s8, s44'), A('s_and_b32 s8, s8, 7')), 8)
            touch()
        self.item_wait('s34')
        if self.o['ru']:
            A('s_mov_b32 s27, s35')
            A('s_cmp_lg_u32 s32, 2')
            A('s_cbranch_scc1 L_mown')
            A(f's_sub_u32 s10, s35, {2*OPI}')
            A(f's_cmp_gt_u32 s10, {2*OPI}')
            A('s_cbranch_scc1 L_mown')
            A(f's_add_u32 s27, s35, {3*OPI}')
            A(f's_cmp_eq_u32 s35, {2*OPI}')
            A('s_cbranch_scc1 L_mown')
            A(f's_cmp_eq_u32 s35, {4*OPI}')
            A('s_cselect_b64 exec, 0x3ff, -1')
            self.poll(lambda: A('buffer_load_dword v2, v107, s[4:7], 0 offen sc1'), [2], 'v1', sleep=self.o['fsl'], mask=True)
            A('L_mown:')
        A('ds_read_b128 v[108:111], v104')
        for w in range(4):
            for h in range(2):
                A(f'ds_read_b128 {vr(48+8*w+4*h,4)}, v103 offset:{12288*w + 768*h}')
        A('s_waitcnt lgkmcnt(0)')
        for w in range(4):
            self.pk('add', 48 + 8 * w, 48 + 8 * w, 52 + 8 * w, n=2)
            f = vr(108 + (w & 2), 2)
            for h in range(2):
                if w == 0:
                    A(f'v_pk_mul_f32 {vr(48+2*h,2)}, {vr(48+2*h,2)}, {f} op_sel_hi:[1,0]')
                else:
                    m = 'op_sel:[0,1,0] op_sel_hi:[1,1,1]' if w & 1 else 'op_sel_hi:[1,0,1]'
                    A(f'v_pk_fma_f32 {vr(48+2*h,2)}, {vr(48+8*w+2*h,2)}, {f}, {vr(48+2*h,2)} {m}')
        self.pack(2, 48, 2)
        A('v_min_u32 v2, -2, v2')
        A('v_min_u32 v3, -2, v3')
        A('s_mov_b32 exec_hi, 0xffff')
        if self.o['xs']:
            A(f's_mov_b32 s6, {H_CLR}')
        if self.o['dt']:
            A('buffer_store_dwordx2 v[2:3], v102, s[4:7], s35 offen sc1')
        else:
            self.mode_store(f'buffer_store_dwordx2 v[2:3], v102, s[4:7], {"s27" if self.o["ru"] else "s35"} offen', 's26' if self.o['ad'] else 's32')
        A(f's_mov_b32 s6, {H_END}')
        A('s_mov_b64 exec, 1')
        if self.o['pt'] == 3:
            touch()
        A('s_waitcnt vmcnt(0) lgkmcnt(0)')
        self.mode_store('buffer_store_dword v0, v105, s[4:7], 0 offen', 's32')
        A('s_mov_b64 exec, -1')
        A('v_add_u32 v103, 1536, v103')
        A('v_add_u32 v104, 16, v104')
        A('v_add_u32 v105, 128, v105')
        A('s_add_u32 s34, s34, 4')
        A(f's_sub_u32 s35, s35, {OPI}')
        A('s_cmp_lg_u32 s35, 0')
        A('s_cbranch_scc1 L_mitem')
        if self.o['stamps'] == 4:
            A('s_lshl_b32 s10, s2, 7')
            A(f's_add_u32 s10, s10, {STAMP0 + 0x30000}')
            A('v_lshl_add_u32 v1, v0, 2, s10')
            A('s_mov_b64 exec, 0xff')
            A(f'global_store_dword v1, v106, {sp(sWS)}')
            A('s_mov_b64 exec, -1')
        if self.o['t7']:
            touch()
            A('s_waitcnt lgkmcnt(0)')
        for ty in (T_W, T_F, T_D):
            A(f's_cmp_eq_u32 s24, {ty}')
            A(f's_cbranch_scc1 L_back{ty}')
        A('s_endpgm')

        A('L_F:')
        XF, GA, C1, PV, SEL = 224, 232, 240, 248, 88
        ly = 1
        A('v_lshlrev_b32 v1, 2, v20')
        if ly:
            A('s_lshl_b32 s41, s38, 7')
            A('s_mul_i32 s14, s38, -96')
            A('s_add_u32 s14, s14, 384')
            A('v_lshrrev_b32 v2, 7, v21')
            A('v_mad_u32_u24 v23, v2, s14, v21')
            A('v_add_u32 v23, s41, v23')
            A('s_mul_i32 s14, s14, 3072')
            A('s_mov_b32 s15, 0')
        A('v_sub_u32 v23, v23, v1')

        def xload():
            A('v_mul_u32_u24 v1, 640, v22')
            A('v_add_lshl_u32 v2, v1, v23, 1')
            A('v_add_lshl_u32 v1, v1, v21, 1')
            A(f'global_load_dwordx2 v[28:29], v2, {sp(sX)}')
            A(f'global_load_dwordx2 v[30:31], v2, {sp(sX)} offset:32')
            for w in range(4):
                A(f'global_load_dwordx4 {vr(32+4*w,4)}, v1, {sp(sX)} offset:{320*w}')
        if not xl:
            xload()
        A('s_mul_i32 s10, s41, 3072')
        A('s_lshl_b32 s11, s40, 6')
        A('s_add_u32 s10, s10, s11')
        A('v_mul_u32_u24 v1, 3072, v18')
        A('v_and_b32 v2, 3, v19')
        A('v_lshl_add_u32 v1, v2, 4, v1')
        A('v_add_u32 v1, s10, v1')
        A(f'v_add_u32 v2, {8*3072}, v1')
        A(f'v_mov_b32 v4, s{sWG}')
        A(f'v_mov_b32 v5, s{sWG+1}')
        A(f'v_mov_b32 v6, s{sWU}')
        A(f'v_mov_b32 v7, s{sWU+1}')
        A('v_cmp_gt_u32 vcc, 4, v19')
        A('v_cndmask_b32 v10, v6, v4, vcc')
        A('v_cndmask_b32 v11, v7, v5, vcc')
        A('v_cndmask_b32 v12, v4, v6, vcc')
        A('v_cndmask_b32 v13, v5, v7, vcc')
        A('v_add_co_u32 v10, vcc, v10, v1')
        A('v_addc_co_u32 v11, vcc, 0, v11, vcc')
        A('v_add_co_u32 v12, vcc, v12, v2')
        A('v_addc_co_u32 v13, vcc, 0, v13, vcc')
        self.dma_issue(EF, 3072, '', self.o['DF'], burst=self.o['FB'], jump='s[14:15]' if ly else None, hold=(self.o['hold'] + 1) // 2)
        self.tr_addr(2)
        self.red_addr()
        self.tr_read(EF, 2048)
        if xl:
            xload()
        A('s_waitcnt vmcnt(0)')
        self.unpack(48, 32, 16)
        self.unpack(XF, 28, 4)
        self.pk('add', 80, 48, 64, n=8)
        self.pk('add', 80, 80, 88, n=4)
        self.pk('add', 80, 80, 84, n=2)
        self.pk('add', 80, 80, 82, n=1)
        A('v_add_f32 v6, v80, v81')
        A('v_cndmask_b32 v6, 0, v6, s[16:17]')
        self.rowred('v_add_f32', 'v6', self.ROWPAR)
        self.xrow('v_add_f32', 'v6', 'v1')
        A(f'v_mul_f32 v{PV}, {f2u(1/640)}, v6')
        A(f'v_readlane_b32 s10, v{PV}, 0')
        A(f'v_readlane_b32 s11, v{PV}, 1')
        A('s_mov_b32 s18, 0')
        A('s_mov_b32 s19, -1')
        A('v_mov_b32 v1, s10')
        A('v_mov_b32 v2, s11')
        A(f'v_cndmask_b32 v{PV+2}, v1, v2, s[18:19]')
        self.probe()
        self.midwait()
        self.dense_addr('v8', H_MOD + 20 * 256, 2)
        A('v_add_u32 v9, 5120, v8')

        def ld():
            for h in range(2):
                A(f'buffer_load_dwordx2 {vr(40+2*h,2)}, v8, s[4:7], 0 offen offset:{32*h} sc1')
                A(f'buffer_load_dwordx2 {vr(44+2*h,2)}, v8, s[4:7], 0 offen offset:{2560+32*h} sc1')
                A(f'buffer_load_dwordx2 {vr(48+2*h,2)}, v9, s[4:7], 0 offen offset:{32*h} sc1')
        self.poll(ld, range(40, 52), 'v1', sleep=self.o['slp'])
        self.unpack(GA, 40, 4)
        self.unpack(C1, 48, 4)
        for i in range(4):
            A(f'v_pk_add_f32 {vr(C1+2*i,2)}, {vr(C1+2*i,2)}, 1.0 op_sel_hi:[1,0]')
        self.rbf8(C1, 80)
        X1 = 120
        self.pk('add', XF, XF, PV, bstep=0, mods='op_sel_hi:[1,0] neg_lo:[0,1] neg_hi:[0,1]')
        self.pk('mul', X1, XF, C1)
        self.pk('mul', C1, C1, GA)
        for i in range(4):
            A(f'v_mov_b32 v{84+i}, v{44+i}')

        def consts():
            for act, off in ((80, 2048), (84, 4096)):
                self.mfma_std(act)
                self.red_write_std(off=off)
                A('s_mov_b64 exec, -1')
                A('s_waitcnt lgkmcnt(0)')
        if EF == 5:
            consts()
        if ly:
            A('v_lshrrev_b32 v1, 6, v23')
            A('v_lshlrev_b32 v1, 8, v1')
            A('v_and_b32 v2, 32, v23')
            A('v_lshl_add_u32 v2, v22, 4, v2')
            A(f'v_add_u32 v1, {H_Y}, v1')
            A('v_add_u32 v208, v1, v2')
        else:
            A('v_and_b32 v3, 0xffe0, v23')
            self.dense_addr('v208', H_Y, 2, k='v3')
        A('v_lshrrev_b32 v1, 1, v20')
        A('v_lshl_add_u32 v208, v1, 14, v208')
        A('v_and_b32 v1, 1, v20')
        A('v_mul_u32_u24 v1, 2560, v1')
        A('v_add_u32 v208, v1, v208')
        A('v_lshlrev_b32 v1, 4, v22')
        A('v_mov_b32 v2, 0x3f80')
        A('v_lshlrev_b32 v1, v1, v2')
        A('v_bfe_u32 v2, v0, 1, 3')
        for w in range(8):
            A(f'v_cmp_eq_u32 vcc, {w}, v2')
            A(f'v_cndmask_b32 v{SEL+w}, 0, v1, vcc')
        self.dense_addr('v209', H_X2, 2)
        A('v_lshrrev_b32 v1, 5, v0')
        A('v_lshl_add_u32 v2, v22, 3, v1')
        A('v_lshlrev_b32 v2, 2, v2')
        A(f's_lshl3_add_u32 s10, s38, {L_ST}')
        A('v_add_u32 v210, s10, v2')
        A('v_lshlrev_b32 v2, 5, v1')
        A(f'v_add_u32 v211, {L_ST}, v2')
        A('v_and_b32 v2, 31, v0')
        A('v_lshlrev_b32 v3, 8, v1')
        A('v_lshl_add_u32 v3, v2, 2, v3')
        A('v_add_u32 v25, s39, v3')
        A('v_add_u32 v213, 1024, v25')
        A('s_lshl_b32 s10, s40, 7')
        A(f's_add_u32 s10, s10, {H_ACT}')
        A('v_lshrrev_b32 v3, 3, v2')
        A('v_lshl_add_u32 v3, v3, 1, v1')
        A('v_and_b32 v2, 7, v2')
        A('v_lshl_add_u32 v3, v3, 3, v2')
        A('v_lshl_add_u32 v212, v3, 1, s10')
        self.tail_begin('L_Ft')
        self.get_sel()
        A('s_add_u32 s20, s47, 32768')
        AC = 214

        def rd2(dst, a0, a1):
            for w in range(4):
                A(f'ds_read2_b32 {vr(dst+2*w,2)}, {a1 if w >> 1 else a0} offset0:{128*(w&1)} offset1:{128*(w&1)+32}')
        for n in range(2):
            A(f'v_add_u32 v2, {2048*(n+1)}, v25')
            A(f'v_add_u32 v3, {2048*(n+1)}, v213')
            rd2(96, 'v2', 'v3')
            A('s_waitcnt lgkmcnt(0)')
            self.pk('add', 96, 96, 100, n=2)
            A(f'v_pk_add_f32 {vr(AC+2*n,2)}, v[96:97], v[98:99]')
        Y, YL = 32, 48
        order = (0, 2, 1, 3, 4, 6, 5, 7)
        lds, work = [], []
        for n in order:
            lds.append((f'buffer_load_dwordx4 {vr(YL+4*n,4)}, v208, s[4:7], {"s20" if n >= 4 else "s47"} offen offset:{64*(n&3)} sc1', YL + 4 * n))
            d = vr(Y + 4 * ((n >> 1) & 1), 4)
            work.append([f'v_mfma_f32_16x16x32_bf16 {d}, {vr(SEL+4*(n&1),4)}, {vr(YL+4*n,4)}, {"0" if n in (0, 2) else d}'])
        if self.o['wt']:
            A('v_and_b32 v3, 7, v0')
            A('v_lshlrev_b32 v3, 7, v3')
            A(f'v_add_u32 v3, {H_X2 + 3072}, v3')
            A('s_mov_b64 exec, 0xff')
            self.poll(lambda: A('buffer_load_dword v2, v3, s[4:7], s47 offen sc1'), [2], 'v1', mask=True)
        if self.o['ft']:
            A(f'v_mov_b32 v3, {H_X2 + 2560}')
            A('s_or_b32 s25, s40, s38')
        self.spoll(lds, work, 's[16:17]', sleep=self.o['fsp'])
        self.stamp(3)
        for i in range(4):
            A(f'v_pk_fma_f32 {vr(40+2*i,2)}, {vr(Y+2*i,2)}, {vr(C1+2*i,2)}, {vr(X1+2*i,2)}')
        self.pack(28, 40, 4)
        self.stamp(4)
        sh = [f'v_pk_fma_f32 {vr(Y+2*i,2)}, {vr(Y+2*i,2)}, {vr(GA+2*i,2)}, {vr(XF+2*i,2)}' for i in range(4)]
        sh += [f'v_pk_mul_f32 v[56:57], {vr(Y,2)}, {vr(Y,2)}', f'v_pk_add_f32 v[58:59], {vr(Y,2)}, {vr(Y+2,2)}']
        for i in range(1, 4):
            sh.append(f'v_pk_fma_f32 v[56:57], {vr(Y+2*i,2)}, {vr(Y+2*i,2)}, v[56:57]')
            if i > 1:
                sh.append(f'v_pk_add_f32 v[58:59], v[58:59], {vr(Y+2*i,2)}')
        if self.o['ssh']:
            sh = []
            for i in range(8):
                sh.append(f'v_fma_f32 v{Y+i}, v{Y+i}, v{GA+i}, v{XF+i}')
                sh.append(f'v_mul_f32 v56, v{Y}, v{Y}' if i == 0 else f'v_fmac_f32 v56, v{Y+i}, v{Y+i}')
                if i:
                    sh.append(f'v_add_f32 v58, v{Y+i}, {"v58" if i > 1 else f"v{Y}"}')
        else:
            sh += ['v_add_f32 v56, v56, v57', 'v_add_f32 v58, v58, v59']
        sh += ['s_nop 0',
               'v_permlane32_swap_b32 v58, v56', 'v_add_f32 v56, v56, v58', 'v_cndmask_b32 v56, 0, v56, s[16:17]']
        sh += [f'v_add_f32_dpp v56, v56, v56 {m} {DPPM}' for m in self.ROWPAR]
        def notice():
            A('s_cmp_lg_u32 s25, 0')
            A('s_cbranch_scc1 L_Fn')
            A('s_mov_b64 exec, 1')
            A('buffer_store_dword v27, v3, s[4:7], 0 offen sc1')
            A('buffer_store_dword v27, v3, s[4:7], s46 offen sc1')
            A('s_mov_b64 exec, -1')
            A('L_Fn:')
        self.mfma_std(28, shadow=sh, per=self.o['ssh'] or 2, hook=(self.o['ft'], notice))
        if self.o['clk']:
            self.stamp(1)
        A('v_mov_b32 v57, v56')
        A('v_permlane16_swap_b32 v56, v57')
        A('v_add_f32 v56, v56, v57')
        self.red_write_std()
        A('ds_write_b32 v210, v56')

        def rd():
            A('ds_read_b128 v[56:59], v211')
            A('ds_read_b128 v[60:63], v211 offset:16')
            rd2(64, 'v25', 'v213')
            A('s_cmp_lg_u32 s40, 0')
            A('s_cbranch_scc1 L_Fnox')
            self.pk('add', 40, Y, PV, bstep=0, mods='op_sel_hi:[1,0]')
            self.pack(48, 40, 4)
            for i in range(4):
                A(f'v_min_u32 v{48+i}, -2, v{48+i}')
            A('s_mov_b64 exec, s[16:17]')
            for so in ('0', 's46'):
                A(f'buffer_store_dwordx2 v[48:49], v209, s[4:7], {so} offen sc1')
                A(f'buffer_store_dwordx2 v[50:51], v209, s[4:7], {so} offen offset:32 sc1')
            A('s_mov_b64 exec, -1')
            A('L_Fnox:')
        self.arrive('L_end', rd, 4, True)
        if self.o['clk']:
            self.stamp(2)
        A('v_pk_add_f32 v[56:57], v[56:57], v[58:59]')
        A('v_pk_add_f32 v[60:61], v[60:61], v[62:63]')
        A('v_pk_add_f32 v[56:57], v[56:57], v[60:61]')
        A(f'v_mul_f32 v56, {f2u(1/640)}, v56')
        A(f'v_mul_f32 v8, {f2u(1/640)}, v57')
        A(f'v_add_f32 v6, v{PV+2}, v56')
        A('v_fma_f32 v8, -v56, v56, v8')
        A('v_max_f32 v8, 0, v8')
        self.ln_scalars('v6', 'v8')
        A(f'v_sub_f32 v6, v{PV+2}, v6')
        A('s_waitcnt lgkmcnt(0)')
        self.red_sum(64)
        A(f'v_pk_fma_f32 v[96:97], {vr(AC,2)}, v[6:7], v[64:65] op_sel_hi:[1,0,1]')
        A(f'v_pk_fma_f32 v[96:97], v[96:97], v[8:9], {vr(AC+2,2)} op_sel_hi:[1,0,1]')
        A('v_cvt_pk_bf16_f32 v98, v96, v97')
        A('v_lshlrev_b32 v100, 16, v98')
        A(f'v_mul_f32 v4, {LOG2E}, v100')
        A('v_exp_f32 v4, -v4')
        self.lastonly('L_end', True)
        A('v_and_b32 v101, 0xffff0000, v98')
        A('v_add_f32 v4, 1.0, v4')
        A('v_rcp_f32 v4, v4')
        A('s_mov_b32 s10, 0x55555555')
        A('v_mul_f32 v2, v100, v4')
        self.rbf('v2')
        A('v_mul_f32 v2, v2, v101')
        A('s_mov_b32 s11, 0x55555555')
        A(f'v_mov_b32_dpp v3, v2 quad_perm:[1,0,3,2] {DPPM}')
        A('s_mov_b64 exec, s[10:11]')
        A('v_cvt_pk_bf16_f32 v2, v2, v3')
        A('v_min_u32 v2, -2, v2')
        A('buffer_store_dword v2, v212, s[4:7], 0 offen sc1')
        A('buffer_store_dword v2, v212, s[4:7], s46 offen sc1')
        self.stamp(5)

        def late():
            self.dma_issue(5, 3072, '', 24, s0=EF, jump='s[14:15]' if ly else None)
            self.tr_read(5, 2048, s0=EF)
            consts()
            self.hbar()
        self.tail_end('L_Ft', T_F, self.o['WF'], late if EF < 5 else None, self.o['WLF'])

        A('L_D:')
        A(f's_mul_i32 s10, s38, {384*1280}')
        A('s_lshl_b32 s11, s40, 5')
        A('s_add_u32 s10, s10, s11')
        A(f's_add_u32 s10, s{sWD}, s10')
        A(f's_addc_u32 s11, s{sWD+1}, 0')
        for a, x in ((10, 0), (12, 4)):
            A(f'v_xor_b32 v1, {x}, v19')
            A('v_lshrrev_b32 v2, 1, v1')
            A('v_mul_u32_u24 v2, 96, v2')
            A('v_add_u32 v2, v2, v18')
            if x:
                A('v_add_u32 v2, 8, v2')
            A('v_mul_u32_u24 v2, 1280, v2')
            A('v_and_b32 v1, 1, v1')
            A(f'v_lshl_add_u32 v{a}, v1, 4, v2')
            A(f'v_mov_b32 v{a+1}, 0')
            A(f'v_lshl_add_u64 {vr(a,2)}, {vr(a,2)}, 0, s[10:11]')
        self.dma_issue(ED, 1280, '', self.o['DD'], burst=self.o['DB'])
        self.tr_addr(False)
        self.red_addr()
        self.tr_read(ED, 512)
        self.probe()
        self.midwait()
        A('v_bfe_u32 v30, v0, 3, 1')
        A('v_and_b32 v1, 7, v0')
        A('v_lshlrev_b32 v2, 8, v30')
        A('v_lshl_add_u32 v2, v1, 3, v2')
        A('v_add_u32 v25, s39, v2')
        A('s_lshl_b32 s10, s40, 4')
        A('v_lshl_add_u32 v31, v1, 1, s10')
        A('v_mul_u32_u24 v3, 640, v30')
        A('v_add_lshl_u32 v29, v3, v31, 1')
        A('v_mov_b32 v4, v22')
        A('v_mov_b32 v22, v30')
        self.dense_addr('v28', H_X2, 2, k='v31')
        A('v_mov_b32 v22, v4')
        A(f'v_add_u32 v8, {H_MOD + 50*256 - H_X2}, v28')

        def ld():
            A('buffer_load_dword v44, v8, s[4:7], 0 offen sc1')
        self.poll(ld, [44], 'v1', sleep=self.o['slp'])
        A(f's_mov_b32 s28, s{sOUT}')
        A(f's_mov_b32 s29, s{sOUT+1}')
        A('s_mov_b32 s30, 2560')
        A('s_mov_b32 s31, 0x20000')
        self.unpack(46, 44, 1)
        A('v_bfe_u32 v1, v0, 1, 3')
        A(f'v_lshlrev_b32 v2, 4, v22')
        A(f'v_lshl_add_u32 v2, v20, 5, v2')
        A('s_mul_i32 s10, s38, 1536')
        A(f's_add_u32 s10, s10, {H_ACT}')
        A('v_add_u32 v2, s10, v2')
        A('v_lshl_add_u32 v8, v1, 7, v2')
        A('v_and_b32 v1, 3, v1')
        A('v_lshl_add_u32 v9, v1, 7, v2')
        self.tail_begin('L_Dt')
        self.get_sel()

        def ld0():
            A('buffer_load_dword v40, v28, s[4:7], s47 offen sc1')

        if self.o['ft']:
            A(f'v_mov_b32 v3, {H_X2 + 2560}')
            A('s_mov_b64 exec, 1')
            self.poll(lambda: A('buffer_load_dword v2, v3, s[4:7], s47 offen sc1'), [2], 'v1', mask=True)
        elif self.o['dg']:
            self.poll(ld0, [40], 'v1')
        pairs = [(0, 32), (8, 36), (2, 48), (4, 52), (6, 56), (10, 60)]
        sh = [f'v_mov_b32_dpp v{r+i}, v{32+4*(ks//8)+i} row_shl:{2*(ks%8)} {DPPM}' for ks, r in pairs[2:] for i in range(4)]

        def mf(n, e):
            ks, r = pairs[n]
            d = vr(96 + 4 * e, 4)
            return f'v_mfma_f32_16x16x32_bf16 {d}, {vr(self.WR+16*((ks+e)%3)+4*((ks+e)//3),4)}, {vr(r,4)}, {"0" if n == 0 else d}'
        self.spoll([('buffer_load_dwordx4 v[32:35], v8, s[4:7], s47 offen sc1', 32),
                    ('buffer_load_dwordx4 v[36:39], v9, s[4:7], s47 offen offset:1024 sc1', 36)],
                   [[mf(n, 0), mf(n, 1), sh[2 * n], sh[2 * n + 1]] for n in range(2)],
                   one=None if self.o['dg'] and not self.o['ft'] else ('buffer_load_dword v40, v28, s[4:7], s47 offen sc1', 40), sleep=self.o['dsp'])
        self.stamp(3)
        sh = sh[4:]
        for n in range(2, 6):
            for e in range(2):
                A(mf(n, e))
                for i in range(2 if n > 2 or e else 4):
                    if sh:
                        A(sh.pop(0))
        self.unpack(42, 40, 1)
        for i in range(4):
            A(f'v_add_f32_dpp v{96+i}, v{100+i}, v{96+i} quad_perm:[2,3,0,1] {DPPM}')
        self.red_write_std(1)
        self.arrive('L_end', lambda: self.red_read(104), 4, True)
        A('s_waitcnt lgkmcnt(0)')
        self.red_sum(104)
        self.lastonly('L_end', True)
        self.pack(98, 104, 1)
        self.unpack(96, 98, 1)
        A('v_pk_mul_f32 v[96:97], v[96:97], v[46:47]')
        self.pack(98, 96, 1)
        self.unpack(96, 98, 1)
        A('v_pk_add_f32 v[96:97], v[96:97], v[42:43]')
        A('v_cvt_pk_bf16_f32 v2, v96, v97')
        A('s_mov_b64 exec, 0xffff')
        A(f'buffer_store_dword v2, v29, s[28:31], 0 offen')
        self.stamp(4)

        def late():
            if self.o['xd']:
                return
            self.dma_issue(3, 1280, '', 24, s0=ED, mid=(self.o['DL'], lambda: self.wake(128, add=False, both=False)))
            self.tr_read(3, 512, s0=ED)
        self.tail_end('L_Dt', T_D, self.o['WD'], late if ED < 3 else None, 64 if self.o['DL'] else self.o['WLD'])

    def build(self):
        self.entry()
        self.helper()
        self.stream()
        t = HEADER + f'; @launch grid=(256,1,1) block=(512,1,1) lds={L_END}\n' + self.A.text()
        t += '.p2align 8\n.type L_tab,@object\nL_tab:\n'
        w = job_table()
        for i in range(0, len(w), 8):
            t += '.long ' + ','.join('0x%08x' % x for x in w[i:i + 8]) + '\n'
        t += '.section .rodata,"a"\n.p2align 6\n' + kd(KN + '_kernel', 256, sgpr=102)
        return t


if __name__ == '__main__':
    import os
    os.makedirs('gen', exist_ok=True)
    names = []
    for spec in sys.argv[1:]:
        kw = {}
        for kv in spec.split(','):
            if not kv:
                continue
            k, v = kv.split('=')
            try:
                v = int(v, 0)
            except ValueError:
                v = v.replace('+', ' ')
            kw[k] = v
        nm = 'work/gen/v13_' + spec.replace('=', '').replace(',', '_') + '.s'
        open('code/' + nm, 'w').write(G(**kw).build())
        names.append(nm)
    print(' '.join(names))
```

```python
import sys, struct
sys.path.insert(0, 'work')
from asmlib import Asm, kd

KN = 'adaLN_cond__gqa_block_cached__swiglu_ffn__decode'
f2u = lambda x: '0x%08x' % struct.unpack('<I', struct.pack('<f', x))[0]
LOG2E = f2u(1.4426950408889634)
SCALE = f2u(192 ** -0.5)
PER = 196608
sX, sK, sV, sWQ, sWO, sWG, sWU, sWD, sC, sWM, sOUT, sDBG, sWS = 64, 66, 68, 70, 72, 76, 78, 80, 82, 84, 86, 88, 90
H_MOD, H_Q, H_TS, H_FLG, H_ML = 0, 0x4000, 0xA000, 0x12000, 0x14000
H_X2, H_ACT, H_Y, H_OP, H_CLR, H_END, H_PRB = 0x1C000, 0x20000, 0x24000, 0x34000, 0x64000, 0xF4000, 0xF4000
VORD = (7, 6, 5, 3, 2, 1, 4, 0)
OPI = 98304
L_STG, L_PART, L_RED, L_ST, L_CNT, L_MLL, L_GL, L_FL, L_END = 0, 98304, 147456, 153600, 153728, 153792, 154048, 154112, 154240
C_MRG, C_HBAR, C_SEL, C_HB, C_WK, C_KC, C_IC, C_RDY = 0, 12, 16, 24, 28, 32, 36, 40
SPIN = 1 << 15
DPPM = 'row_mask:0xf bank_mask:0xf'
T_M, T_Q, T_W, T_F, T_D = 1, 2, 3, 4, 5
STAMP0 = 0x2ff00000


def sp(n):
    return f's[{n}:{n+1}]'


def vr(n, c):
    return f'v[{n}:{n+c-1}]' if c > 1 else f'v{n}'


JT = 5
RN = 1
HV = 0


def job_table():
    J = {i: [] for i in range(256)}
    free = {x: [8 * r + x for r in range(32)] for x in range(8)}
    if JT in (1, 4, 5):
        fx = [f // 6 for f in range(48)]
        dx = [[0, 1, 2, 3, 4, 5, 6, 7, 2, 5][d // 4] for d in range(40)]
    elif JT == 2:
        fx = [[0, 3, 6][f // 16] for f in range(48)]
        dx = [[2, 5][d // 20] for d in range(40)]
    elif JT == 3:
        fx = [[0, 1, 2, 3][f // 12] for f in range(48)]
        dx = [[0, 1, 2, 3, 0, 1, 2, 3, 4, 4][d // 4] for d in range(40)]
    for f in range(48):
        J[free[fx[f]].pop(0)] = [(T_F, f)]
    for d in range(40):
        J[free[dx[d]].pop(0)] = [(T_D, d)]
    wl = []
    for w in range(80):
        i = free[w & 7].pop(0)
        J[i] = [(T_W, w)]
        wl.append(i)
    rest = sorted(i for x in free for i in free[x])
    m2 = list(range(20, 60)); q = list(range(96))
    k = 0
    if JT < 4:
        for m in range(20):
            J[rest[k]] = [(T_M, m), (T_M, m2.pop())]; k += 1
        for _ in range(20):
            J[rest[k]] = [(T_Q, q.pop()), (T_M, m2.pop())]; k += 1
    while k < len(rest):
        J[rest[k]] = [(T_Q, q.pop())]; k += 1
    k = 0
    if JT >= 4:
        for i in range(256):
            if J[i][0][0] == T_D:
                J[i] = [(T_Q, q.pop()) if JT == 5 and q else (T_M, m2.pop())] + J[i]
        while m2:
            J[wl[k]] = [(T_M, m2.pop())] + J[wl[k]]; k += 1
        for m in range(20):
            J[wl[k]] = [(T_M, m)] + J[wl[k]]; k += 1
    while q:
        J[wl[k]] = [(T_Q, q.pop())] + J[wl[k]]; k += 1
    singles = wl[k:]
    if RN:
        cq, c1, c2 = 0, 0, 20
        for i in sorted(range(256), key=lambda i: (i & 7, i)):
            for n, (ty, ix) in enumerate(J[i]):
                if ty == T_Q:
                    J[i][n] = (ty, cq); cq += 1
                elif ty == T_M and ix < 20:
                    J[i][n] = (ty, c1); c1 += 1
                elif ty == T_M:
                    J[i][n] = (ty, c2); c2 += 1
    clr = {singles[n]: n for n in range(10)}
    words = []
    for i in range(256):
        j = J[i] + [(0, 0)]
        v = j[0][0] | j[0][1] << 4 | j[1][0] << 12 | j[1][1] << 16
        if i in clr:
            v |= (16 | clr[i]) << 24
        last = J[i][-1][0]
        v |= (last == T_W) << 30 | (last == T_F) << 31
        t0, i0 = J[i][0]
        heavy = (len(J[i]) == 2 and last == T_W) or (t0 == T_F and (i0 >> 1) & 7 == 3)
        if HV >= 2:
            heavy = heavy or len(J[i]) == 2 or (t0 == T_Q and i0 & 7 == 3) or i in clr
        if HV >= 3:
            heavy = heavy or t0 == T_F
        v |= (heavy and HV > 0) << 29
        words.append(v)
    return words


HEADER = '''; adaLN -> cached attention -> adaLN -> SwiGLU, decode step (B=2, D=640, 32 heads x 192, 8192 keys).
; Written with my own generator script (work/gen_v13.py).  One persistent launch, one workgroup per CU.
;
;
; Hand-offs go through ws: slots are first set to 0xffffffff (flags in debug say when), writers never store that
;   value, readers poll with device-scope loads (bounded).  Stores write through, except inside a group whose 32
'''


class G:
    def __init__(self, **kw):
        self.o = dict(D=5, DX=7, BG=20, BO=25, NR=13, BI=0, bal=2, NF=24, NQ=0, stamps=0, clk=0, diag='',
                      prio=3, DQ=24, DF=24, FB=10, DD=1, DB=5, DM2=2, DW2=8, JT=5, RN=1, fast=1,
                      NP=12, sel=-1, slp=32, wks=1, EF=4, ED=1, PB=24, ND=20, U=4, N1=4,
                      WL=64, WLF=64, WLD=128, WF=64, WD=64, fsl=16, fs0=0, gw=0, TH=23, TV=0, NOM=335, pf2=0, lc=0, sq=-1, NST=47, LAG=8, hs=1, ru=1, ad=0, NM=2, wt=0, ft=0, xd=0, fsp=0, dsp=0, dg=1, xl=0, g3=1, gc=2, NG=23, qsl=8, xc=0, tp=0, ec=0, pp=0, psl=4, mh=0, cs=1, DL=2, t0=2, ssh=3, db=1, hv=2, DP=5, kc=-1, ms=90, CL=40, CP=24, RO=12, NSM=16, sm=1, iws=4, hold=20, ptm=3, TB=0, pw=1, BW=35, BF=12, w2=0, t7=0, pf=5, lin=1, dt=0, xf=0, pt=0, ca=0, p2=1, xo=0, xs=0, xg=0, pol='')
        self.o.update(kw)
        global JT, RN, HV
        JT, RN, HV = self.o['JT'], self.o['RN'], self.o['hv']
        self.A = Asm()
        self.nl = 0

    def lab(self, s):
        self.nl += 1
        return f'L{self.nl}_{s}'

    def stamp(self, i, alt=0):
        m = self.o['stamps']
        if (m in (1, 3, 4) and not alt) or (m == 2 and (alt == 1 or i in (0, 6))) or (m == 3 and alt == 3):
            self.A(f'{"s_memtime" if self.o["clk"] else "s_memrealtime"} {sp(48+2*i)}')

    def dump_stamps(self, area):
        if not self.o['stamps'] or self.o['diag']:
            return
        A = self.A
        A('s_mov_b64 exec, 1')
        A('s_getreg_b32 s62, hwreg(HW_REG_XCC_ID)')
        A('s_mov_b32 s63, s3')
        A('s_waitcnt lgkmcnt(0)')
        A('s_lshl_b32 s8, s2, 7')
        A(f's_add_u32 s8, s8, {STAMP0 + area}')
        A('v_mov_b32 v1, s8')
        for i in range(16):
            A(f'v_mov_b32 v{112+i}, s{48+i}')
        for i in range(4):
            A(f'global_store_dwordx4 v1, {vr(112+4*i,4)}, {sp(sWS)} offset:{16*i}')

    def rbf(self, v):
        self.A(f'v_cvt_pk_bf16_f32 {v}, {v}, {v}')
        self.A(f'v_lshlrev_b32 {v}, 16, {v}')

    def unpack(self, dst, src, n):
        for i in range(n):
            self.A(f'v_and_b32 v{dst+2*i+1}, 0xffff0000, v{src+i}')
            self.A(f'v_lshlrev_b32 v{dst+2*i}, 16, v{src+i}')

    def pack(self, dst, src, n):
        for i in range(n):
            self.A(f'v_cvt_pk_bf16_f32 v{dst+i}, v{src+2*i}, v{src+2*i+1}')

    def rbf8(self, x, t):
        self.pack(t, x, 4)
        self.unpack(x, t, 4)

    def pk(self, op, d, a, b, n=4, bstep=2, mods=''):
        for i in range(n):
            self.A(f'v_pk_{op}_f32 {vr(d+2*i,2)}, {vr(a+2*i,2)}, {vr(b+bstep*i,2)} {mods}')

    def xrow(self, op, v, t):
        for sw in ('v_permlane16_swap_b32', 'v_permlane32_swap_b32'):
            self.A(f'v_mov_b32 {t}, {v}')
            self.A(f'{sw} {v}, {t}')
            self.A(f'{op} {v}, {v}, {t}')

    def rowred(self, op, v, modes):
        for m in modes:
            self.A(f'{op}_dpp {v}, {v}, {v} {m} {DPPM}')

    ROW16 = ('quad_perm:[1,0,3,2]', 'quad_perm:[2,3,0,1]', 'row_half_mirror', 'row_mirror')
    ROWPAR = ('quad_perm:[2,3,0,1]', 'row_ror:4', 'row_ror:8')

    def silu(self, v, t, u):
        A = self.A
        A(f'v_mul_f32 {t}, {LOG2E}, {v}')
        A(f'v_exp_f32 {t}, -{t}')
        A(f'v_add_f32 {t}, 1.0, {t}')
        A(f'v_rcp_f32 {u}, {t}')
        A(f'v_mul_f32 v2, {v}, {u}')
        A(f'v_fma_f32 v3, -v2, {t}, {v}')
        A(f'v_fma_f32 v2, v3, {u}, v2')
        A(f'v_div_fixup_f32 {v}, v2, {t}, {v}')

    def invalid(self, regs, t):
        A = self.A
        regs = list(regs)
        if len(regs) == 1:
            A(f'v_cmp_eq_u32 vcc, -1, v{regs[0]}')
            return
        cur = f'v{regs.pop(0)}'
        while regs:
            if len(regs) >= 2:
                A(f'v_max3_u32 {t}, {cur}, v{regs.pop(0)}, v{regs.pop(0)}')
            else:
                A(f'v_max_u32 {t}, {cur}, v{regs.pop(0)}')
            cur = t
        A(f'v_cmp_eq_u32 vcc, -1, {t}')

    def poll(self, loads, regs, t, sleep=0, cnt='s9', mask=False, fly=0):
        A = self.A
        top, done = self.lab('poll'), self.lab('pdone')
        A(f's_mov_b32 {cnt}, {SPIN}')
        A(f'{top}:')
        loads()
        A(f's_waitcnt vmcnt({fly})')
        self.invalid(regs, t)
        A(f's_cbranch_vccz {done}')
        if mask:
            A('s_mov_b64 exec, vcc')
        if sleep:
            A(f's_sleep {sleep}')
        A(f's_sub_u32 {cnt}, {cnt}, 1')
        A(f's_cbranch_scc0 {top}')
        A(f'{done}:')
        if mask:
            A('s_mov_b64 exec, -1')

    def spoll(self, loads, work, lanes=None, one=None, sleep=0):
        A = self.A
        top, done = self.lab('spoll'), self.lab('sdone')
        A(f's_mov_b32 s9, {SPIN}')
        A(f's_mov_b64 vcc, {lanes or -1}')
        A(f'{top}:')
        if sleep:
            A(f's_sleep {sleep}')
        A('s_sub_u32 s9, s9, 1')
        A(f's_cbranch_scc1 {done}')
        A('s_mov_b64 exec, vcc')
        if one:
            A(one[0])
        for t, r in loads:
            A(t)
        A('s_mov_b64 exec, -1')
        for i, (t, r) in enumerate(loads):
            A(f's_waitcnt vmcnt({len(loads)-1-i})')
            if i == 0 and one:
                chk = [f'v_max3_u32 v1, v{one[1]}, v{r}, v{r+1}', f'v_max3_u32 v1, v1, v{r+2}, v{r+3}']
            elif i == 0:
                chk = [f'v_max3_u32 v1, v{r}, v{r+1}, v{r+2}', f'v_max_u32 v1, v1, v{r+3}']
            else:
                chk = [f'v_max3_u32 v1, v1, v{r}, v{r+1}', f'v_max3_u32 v1, v1, v{r+2}, v{r+3}']
            w = list(work[i])
            A(w.pop(0))
            for c in chk:
                A(c)
            if i + 1 == len(loads):
                A('v_cmp_eq_u32 vcc, -1, v1')
            for x in w:
                A(x)
        if lanes:
            A(f's_and_b64 vcc, vcc, {lanes}')
        A(f's_cbranch_vccnz {top}')
        A(f'{done}:')

    def flags_addr(self, va, both):
        A = self.A
        A(f'v_and_b32 {va}, 7, v0')
        if both:
            A('v_cmp_gt_u32 vcc, 32, v0')
            A(f'v_cndmask_b32 {va}, v0, {va}, vcc')
        A(f'v_lshlrev_b32 {va}, 2, {va}')

    def flags_wait(self, va, vd, cnt='s9'):
        A = self.A
        top, done = self.lab('flag'), self.lab('fdone')
        A(f's_mov_b32 {cnt}, {SPIN}')
        A(f'{top}:')
        A(f'global_load_dword {vd}, {va}, {sp(sDBG)} sc1')
        A('s_waitcnt vmcnt(0)')
        A(f'v_cmp_eq_u32 vcc, 0, {vd}')
        A(f's_cbranch_vccz {done}')
        A('s_sleep 8')
        A(f's_sub_u32 {cnt}, {cnt}, 1')
        A(f's_cbranch_scc0 {top}')
        A(f'{done}:')

    def op_addr(self, dst, rd, rdbase):
        A = self.A
        A('s_and_b32 s44, s2, 7')
        A('s_lshr_b32 s45, s2, 3') if dst == 'v57' else A('s_lshr_b32 s8, s2, 3')
        A('s_lshl_b32 s44, s44, 5')
        A(f's_add_u32 s44, s44, {"s45" if dst == "v57" else "s8"}')
        A('s_mul_i32 s44, s44, 384')
        A(f's_add_u32 s44, s44, {H_OP}')
        A('v_and_b32 v1, 0x31, v0')
        if self.o['lin']:
            A('v_bfe_u32 v2, v0, 2, 2')
            A('v_lshl_add_u32 v1, v2, 1, v1')
            A('v_bfe_u32 v2, v0, 1, 1')
            A('v_lshl_add_u32 v1, v2, 3, v1')
            A(f'v_lshl_add_u32 {dst}, v0, 3, s44')
        else:
            A('v_bfe_u32 v2, v0, 1, 2')
            A('v_lshl_add_u32 v1, v2, 2, v1')
            A('v_bfe_u32 v2, v0, 3, 1')
            A('v_lshl_add_u32 v1, v2, 1, v1')
            A(f'v_lshl_add_u32 {dst}, v1, 3, s44')
            A('v_mov_b32 v1, v0')
        A('v_min_u32 v1, 47, v1')
        A('v_lshlrev_b32 v1, 4, v1')
        A(f'v_add_u32 {rd}, {rdbase}, v1')

    def mode_store(self, text, mode):
        A = self.A
        thru, done = self.lab('thru'), self.lab('stored')
        A(f's_cmp_lg_u32 {mode}, 2')
        A(f's_cbranch_scc1 {thru}')
        A(text + ' ' + self.o['pol'])
        A(f's_branch {done}')
        A(f'{thru}:')
        A(text + ' sc1')
        A(f'{done}:')

    def lwait(self, off, test, sleep):
        A = self.A
        top, done = self.lab('lw'), self.lab('lwd')
        A(f'v_mov_b32 v1, {L_CNT}')
        A(f's_mov_b32 s9, {SPIN*8}')
        A(f'{top}:')
        A(f'ds_read_b32 v2, v1 offset:{off}')
        A('s_waitcnt lgkmcnt(0)')
        A('v_readfirstlane_b32 s8, v2')
        test()
        A(f's_cbranch_scc1 {done}')
        A(f's_sleep {sleep}')
        A('s_sub_u32 s9, s9, 1')
        A(f's_cbranch_scc0 {top}')
        A(f'{done}:')

    def item_wait(self, bit):
        self.lwait(C_IC, lambda: self.A(f's_bitcmp1_b32 s8, {bit}'), self.o['iws'])

    def ws_srd(self):
        A = self.A
        A(f's_mov_b32 s4, s{sWS}')
        A(f's_mov_b32 s5, s{sWS+1}')
        A(f's_mov_b32 s6, {H_END}')
        A('s_mov_b32 s7, 0x20000')

    RING, Q, S = 64, 16, 28

    def entry(self):
        A = self.A
        n = KN + '_kernel'
        A('.amdgcn_target "amdgcn-amd-amdhsa--gfx950"')
        A('.text')
        A(f'.globl {n}')
        A('.p2align 8')
        A(f'.type {n},@function')
        A(f'{n}:')
        A('s_cmp_ge_u32 s2, 256')
        A('s_cbranch_scc1 L_end')
        self.stamp(0)
        A('s_load_dwordx16 s[64:79], s[0:1], 0')
        A('v_lshrrev_b32 v1, 6, v0')
        A('s_load_dwordx8 s[80:87], s[0:1], 64')
        A('v_readfirstlane_b32 s3, v1')
        A('s_load_dwordx4 s[88:91], s[0:1], 96')
        A('v_and_b32 v0, 63, v0')
        A('s_cmp_ge_u32 s3, 4')
        A('s_cbranch_scc1 L_helper')
        A('s_and_b32 s13, s2, 7')
        A('s_lshr_b32 s14, s2, 4')
        A('s_lshl4_add_u32 s34, s13, s14')
        A(f's_mul_i32 s34, s34, {PER}')
        A('s_bfe_u32 s12, s2, 0x10003')
        A('s_lshl2_add_u32 s12, s12, s3')
        A('s_mul_i32 s36, s12, 392')
        A('s_lshr_b32 s36, s36, 10')
        A('s_mul_i32 s36, s36, 22')
        A('s_lshl3_add_u32 s36, s12, s36')
        A('s_mul_i32 s36, s36, 1536')
        A('v_and_b32 v1, 1, v0')
        A('v_lshrrev_b32 v2, 4, v0')
        A('v_lshl_add_u32 v1, v1, 2, v2')
        A('v_lshlrev_b32 v51, 4, v1')
        A('v_bfe_u32 v1, v0, 1, 2')
        A('v_bfe_u32 v2, v0, 3, 1')
        A('v_mul_u32_u24 v2, 84, v2')
        A('v_add_u32 v1, v1, v2')
        A('v_mul_u32_u24 v1, 384, v1')
        A('v_add_u32 v40, v1, v51')
        A(f's_mov_b32 s10, {PER}')
        A('s_mov_b32 s11, 0x20000')
        self.stamp(5, 1)
        A('s_waitcnt lgkmcnt(0)')
        self.stamp(1, 1)
        A(f's_add_u32 s8, s{sK}, s34')
        A(f's_addc_u32 s9, s{sK+1}, 0')
        for n in range(self.o['N1']):
            A(f'buffer_load_dwordx4 {vr(self.RING+4*n,4)}, v40, s[8:11], s36 offen offset:{1536*(n//3) + 128*(n%3)} nt')
        A('s_barrier')
        A('s_branch L_stream')

    def stream(self):
        A = self.A
        o = self.o
        D, bal = o['D'], o['bal']
        DX = o['DX'] if bal else D
        RING, Q, S = self.RING, self.Q, self.S
        A('L_stream:')
        for t in range(1, 8):
            A(f's_lshl3_add_u32 s44, s12, {t}')
            A('s_mul_i32 s45, s44, 49')
            A('s_lshr_b32 s45, s45, 10')
            A('s_mul_i32 s45, s45, 22')
            A('s_add_u32 s45, s45, s44')
            A(f's_mul_i32 s{36+t}, s45, 1536')
        A('s_cmp_eq_u32 s12, 7')
        A(f's_cselect_b32 s43, {42*1536}, s43')
        A(f's_cselect_b32 s44, {22*1536}, 0')
        A('v_bfe_u32 v1, v0, 3, 1')
        A('v_mad_u32_u24 v41, v1, s44, v40')
        A('v_bfe_u32 v1, v0, 3, 2')
        A('v_lshrrev_b32 v2, 5, v0')
        A('v_mul_u32_u24 v3, 84, v2')
        A('v_add_u32 v1, v1, v3')
        A('v_mul_u32_u24 v1, 384, v1')
        A('v_and_b32 v3, 7, v0')
        A('v_lshl_add_u32 v38, v3, 4, v1')
        A('v_mad_u32_u24 v39, v2, s44, v38')

        A('s_mov_b64 s[14:15], s[8:9]')
        A('s_mov_b32 s97, 0x07654321')

        def nxt_slice():
            A('s_and_b32 s46, s97, 7')
            A('s_lshr_b32 s97, s97, 4')
            A(f's_mul_i32 s46, s46, {128*PER}')
            A('s_add_u32 s8, s14, s46')
            A('s_addc_u32 s9, s15, 0')

        def load(n):
            k = n % 24
            t = k // 3
            A(f'buffer_load_dwordx4 {vr(RING+4*n,4)}, v{41 if t == 7 else 40}, s[8:11], s{36+t} offen offset:{128*(k%3)} nt')
            if k == 23:
                nxt_slice()

        def setup():
            self.ws_srd()
            A('s_getpc_b64 s[98:99]')
            A('L_pc2:')
            A('s_add_u32 s98, s98, L_tab-L_pc2')
            A('s_addc_u32 s99, s99, 0')
            A('s_lshl_b32 s44, s2, 2')
            A('s_load_dword s93, s[98:99], s44')
            A('s_mov_b32 s16, 0xff00ff00')
            A('s_mov_b32 s17, 0xff00ff00')
            for t in range(8):
                A(f's_mov_b32 s{18+2*t}, {0x01010101 << t}')
                A(f's_mov_b32 s{19+2*t}, {0x01010101 << t}')
            yield
            A('v_and_b32 v1, 1, v0')
            A('v_lshlrev_b32 v1, 4, v1')
            A('v_mov_b32 v2, 0xffff')
            A('v_lshlrev_b32 v1, v1, v2')
            A('v_bfe_u32 v2, v0, 1, 2')
            for w in range(4):
                A(f'v_cmp_eq_u32 vcc, {w}, v2')
                A(f'v_cndmask_b32 v{42+w}, 0, v1, vcc')
            yield
            A('v_bfe_u32 v1, v0, 3, 2')
            A('v_mul_u32_u24 v1, 6144, v1')
            A('v_lshrrev_b32 v2, 5, v0')
            A('v_lshl_add_u32 v1, v2, 7, v1')
            A('v_and_b32 v2, 7, v0')
            A('v_lshl_add_u32 v1, v2, 4, v1')
            A('s_mul_i32 s44, s13, 768')
            A(f's_add_u32 s44, s44, {H_Q}')
            A('v_add_u32 v50, s44, v1')
            A('s_mul_i32 s35, s3, 12288')
            A(f's_add_u32 s35, s35, {L_PART}')
            A('v_add_u32 v51, s35, v51')
            A('v_lshrrev_b32 v1, 4, v0')
            A('v_lshlrev_b32 v1, 5, v1')
            A(f's_lshl3_add_u32 s44, s3, {L_MLL}')
            A('v_add_u32 v52, s44, v1')
            self.flags_addr('v54', True)
            yield
            if bal:
                sh = 4 if o['NSM'] == 16 else 5
                A(f's_lshr_b32 s45, s2, {sh}')
                A(f's_and_b32 s44, s2, {(1 << sh) - 1}')
                A('s_xor_b32 s44, s44, s45')
                A('s_bfe_u32 s46, s2, 0x20001')
                A('s_xor_b32 s46, s46, s3')
                A('s_or_b32 s92, s44, s46')
                A('s_lshl_b32 s45, s45, 7')
                A(f's_add_u32 s45, s45, {H_TS}')
                A('v_mov_b32 v58, s45')
                A(f's_mov_b32 s100, {o["BI"]}')
                A(f's_add_u32 s64, s{sWS}, {H_TS}')
                A(f's_addc_u32 s65, s{sWS+1}, 0')
            yield
            A('s_waitcnt lgkmcnt(0)')
            b0 = o['BO'] + o['BG'] // 2 if bal == 1 else -o['TH']
            A(f's_mov_b32 s101, {16*b0}')
            A('s_bitcmp1_b32 s93, 30')
            A(f's_cselect_b32 s101, {16*(b0 + o["BW"])}, s101')
            A('s_bitcmp1_b32 s93, 31')
            A(f's_cselect_b32 s101, {16*(b0 + o["BF"])}, s101')
            A('v_lshrrev_b32 v1, 5, v0')
            A('v_mul_u32_u24 v1, 768, v1')
            A('v_bfe_u32 v2, v0, 4, 1')
            A('v_lshl_add_u32 v1, v2, 7, v1')
            A('v_and_b32 v2, 7, v0')
            A('v_lshl_add_u32 v1, v2, 4, v1')
            A('v_add_u32 v62, s35, v1')
            self.op_addr('v57', 'v56', L_PART + 7 * 1536)
            A('s_mov_b32 s94, 0x00ff00ff')
            A('s_mov_b32 s95, 0xff00ff00')
            A('v_mov_b32 v55, 1')
            A('v_mov_b32 v60, 1')
            A(f'v_mov_b32 v63, {L_CNT}')
            yield

        def qloads():
            for j in range(3):
                A(f'buffer_load_dwordx4 {vr(Q+4*j,4)}, v50, s[4:7], 0 offen offset:{256*j} sc1')
        DP = o['DP']
        NST = o['NST']
        NF, NQ = o['NF'], o['NQ'] or NST - DP
        assert NQ - NF > DP + 1 and NF >= 13 and o['EF'] >= 1 and o['ED'] >= 1 and o['N1'] <= 6
        su = setup()
        for n in range(o['N1'], 48):
            ex = (1 if NF < n <= NF + DP else 0) + (3 if NQ < n <= NQ + DP else 0)
            if o['hv'] and n >= 18:
                if n in (18, NQ + 1, NST + 1):
                    A('s_bitcmp1_b32 s93, 29')
                    A('s_cselect_b64 vcc, -1, 0')
                l = self.lab('y')
                A(f's_waitcnt vmcnt({DX-1+ex})')
                A(f's_cbranch_vccnz {l}')
                A(f's_waitcnt vmcnt({DP-1+ex})')
                A(f'{l}:')
            else:
                A(f's_waitcnt vmcnt({DP-1+ex})')
            if n in (6, 10, 16):
                self.stamp({6: 2, 10: 3, 16: 4}[n], 1)
            load(n)
            if n >= 8 and n % 2 == 0:
                next(su, None)
            if n == o['NG']:
                assert n > 16
                A('s_mov_b64 exec, 1')
                A('ds_add_u32 v63, v55 offset:20')
                A('s_mov_b64 exec, -1')
            if n == NF:
                A(f'global_load_dword v53, v54, {sp(sDBG)} sc1')
            if n == NQ:
                ok = self.lab('fok')
                A('v_cmp_eq_u32 vcc, 0, v53')
                A(f's_cbranch_vccz {ok}')
                self.flags_wait('v54', 'v53', 's99')
                A(f'{ok}:')
                qloads()
            if n == NST:
                self.stamp(1)
                A(f's_waitcnt vmcnt({NST-NQ})')
                ok = self.lab('qok')
                self.invalid(range(Q, Q + 12), 'v1')
                A(f's_cbranch_vccz {ok}')
                if o['sq'] >= 0:
                    A('s_mov_b64 exec, vcc')
                self.poll(qloads, range(Q, Q + 12), 'v1', cnt='s99', mask=o['sq'] >= 0, sleep=max(o['sq'], 0))
                A(f'{ok}:')
                A('v_lshl_add_u32 v1, v0, 4, s35')
                for j in range(3):
                    A(f'ds_write_b128 v1, {vr(Q+4*j,4)} offset:{1024*j}')
                for j in range(3):
                    A(f'ds_read_b128 {vr(Q+4*j,4)}, v51 offset:{1024*j}')
                if bal == 2:
                    A('s_memrealtime s[0:1]')
        self.stamp(2)
        NR, PB, ND, U = o['NR'], o['PB'], o['ND'], o['U']
        NB = PB // U
        assert ND % U == 0 and ND <= PB and NR + 3 < ND

        def wait(n, extra=-100):
            ex = lambda d: 1 if extra < n <= extra + d else 0
            if not bal:
                A(f's_waitcnt vmcnt({D-1+ex(D)})')
                return
            if n % U == 0 and bal == 1:
                A(f's_bitcmp1_b32 s100, {((n - ND) // U) % NB}')
                A('s_cselect_b64 vcc, -1, 0')
            l = self.lab('x')
            A(f's_waitcnt vmcnt({DX-1+ex(DX)})')
            A(f's_cbranch_vccnz {l}')
            A(f's_waitcnt vmcnt({D-1+ex(D)})')
            A(f'{l}:')

        CP, RO, NSM = o['CP'], o['RO'], o['NSM']
        back = (U - 1 + RO) // CP
        if bal == 2:
            assert RO % U == 0 and CP % U == 0 and (U - 1 + RO) % CP + U < CP + (CP == 24) * 0 + 1
            assert (336 // CP + back) * NSM * 128 <= H_FLG - H_TS
            A(f's_mov_b32 s87, {16*o["NOM"]*U//24}')
            A('s_mov_b32 s86, 0')
            A(f's_mov_b32 s98, {1 + back}')
            A(f's_mov_b64 vcc, {o["BI"]}')
            A(f'v_add_u32 v58, {back*NSM*128}, v58')
            if o['kc'] >= 0:
                A('v_lshl_add_u32 v58, v0, 6, v58')
                A(f's_getreg_b32 s44, hwreg(HW_REG_HW_ID, {o["kc"]}, 1)')
                A('s_lshl_b32 s44, s44, 6')
                A('s_add_u32 s64, s64, s44')
                A('s_addc_u32 s65, s65, 0')
            A('s_waitcnt lgkmcnt(0)')
            A(f's_add_u32 s100, s0, {-100000 if o["BI"] else 100000}')
            if o['hv']:
                A('s_sub_u32 s44, s0, 60')
                A('s_bitcmp1_b32 s93, 29')
                A('s_cselect_b32 s100, s44, s100')
                A('s_cselect_b64 vcc, -1, 0')
            A('s_lshl_b32 s100, s100, 4')

        def balance2(n):
            n = n % CP
            if n % U == U - 2:
                A('s_memrealtime s[0:1]')
            if n % U == U - 1:
                A('s_waitcnt lgkmcnt(0)')
                A('s_lshl4_add_u32 s44, s0, s101')
                A('s_sub_u32 s44, s44, s100')
                A('s_add_u32 s100, s100, s87')
                A('s_cmp_gt_i32 s44, 0')
                A('s_cselect_b64 vcc, -1, 0')
            if o['tp'] and n == 2 * U - 1:
                l = self.lab('notp')
                A(f's_and_b32 s46, s2, {o["tp"] - 1 << 3}')
                A('s_or_b32 s46, s46, s3')
                A(f's_cbranch_scc1 {l}')
                A('s_and_b32 s46, s97, 7')
                A(f's_mul_i32 s46, s46, {128*PER}')
                A('s_add_u32 s46, s14, s46')
                A('s_addc_u32 s47, s15, 0')
                A('s_load_dword s13, s[46:47], 0')
                A(f'{l}:')
            if n == U - 1:
                l = self.lab('nopub')
                A('s_cmp_lg_u32 s92, 0')
                A(f's_cbranch_scc1 {l}')
                A('v_mov_b32 v59, s0')
                A(f's_mov_b64 exec, {3 if o["kc"] >= 0 else 1}')
                A('buffer_store_dword v59, v58, s[4:7], 0 offen sc1')
                A('s_mov_b64 exec, -1')
                A(f'v_add_u32 v58, {NSM*128}, v58')
                A(f'{l}:')
            if n == (U - 1 + RO) % CP:
                for i in range(NSM):
                    A(f's_load_dword s{70+i}, s[64:65], {128*i}')
            if n == (U - 1 + RO) % CP + U:
                A(f's_add_u32 s64, s64, {NSM*128}')
                A('s_addc_u32 s65, s65, 0')
                A('s_mov_b32 s45, 0')
                st = 's0'
                if o['ms']:
                    A('s_sub_u32 s47, s44, s101')
                    A('s_max_i32 s47, s47, 0')
                    A('s_lshr_b32 s47, s47, 4')
                    A(f's_add_u32 s47, s47, {o["ms"]}')
                    A('s_sub_u32 s47, s0, s47')
                    st = 's47'
                for i in range(NSM):
                    A(f's_cmp_eq_u32 s{70+i}, -1')
                    A(f's_cselect_b32 s{70+i}, {st}, s{70+i}')
                    A(f's_add_u32 s45, s45, s{70+i}')
                if NSM == 8:
                    A('s_lshl_b32 s45, s45, 1')
                A('s_sub_u32 s44, s45, s86')
                A('s_mov_b32 s86, s45')
                A(f's_mul_i32 s1, s87, {CP // U}')
                A('s_sub_u32 s44, s44, s1')
                A(f's_min_i32 s44, s44, {16*o["CL"]}')
                A(f's_max_i32 s44, s44, {-16*o["CL"]}')
                A(f's_mul_hi_i32 s44, s44, {(2**32 * U // CP) >> o["sm"]}')
                A('s_add_u32 s44, s44, s87')
                A('s_sub_u32 s98, s98, 1')
                A('s_cselect_b32 s87, s44, s87')
                A('s_cselect_b32 s98, 0, s98')
                A(f's_mul_i32 s44, s87, {RO//U + 2}')
                A('s_add_u32 s100, s45, s44')

        def balance(n, last=False):
            if not bal:
                return
            if bal == 2:
                return balance2(n)
            if last and n - n % PB + ND >= 48:
                return
            n = n % PB
            if n == 0:
                A('s_memrealtime s[0:1]')
            if n == 1:
                l = self.lab('nopub')
                A('s_cmp_lg_u32 s92, 0')
                A(f's_cbranch_scc1 {l}')
                A('s_waitcnt lgkmcnt(0)')
                A('v_mov_b32 v59, s0')
                A('s_mov_b64 exec, 1')
                A('buffer_store_dword v59, v58, s[4:7], 0 offen sc1')
                A('s_mov_b64 exec, -1')
                A('v_add_u32 v58, 2048, v58')
                A(f'{l}:')
            if n == NR:
                for i in range(16):
                    A(f's_load_dword s{70+i}, s[64:65], {128*i}')
            if n == ND - 2:
                A('s_waitcnt lgkmcnt(0)')
                A('s_add_u32 s64, s64, 2048')
                A('s_addc_u32 s65, s65, 0')
                A(f's_add_u32 s1, s0, {int(NR*13.8)+40}')
                A('s_lshl_b32 s86, s0, 4')
            if n in (ND - 2, ND - 1):
                for i in range(8 * (n - ND + 2), 8 * (n - ND + 3)):
                    A(f's_cmp_eq_u32 s{70+i}, -1')
                    A(f's_cselect_b32 s{70+i}, s1, s{70+i}')
                    A(f's_sub_u32 s86, s86, s{70+i}')
            if n == ND - 1:
                A('s_add_i32 s44, s86, s101')
                A('s_max_i32 s44, s44, 0')
                A(f's_mul_hi_u32 s44, s44, {2**32 // (16*o["BG"])}')
                A(f's_lshr_b32 s45, s100, {NB - ND // U}')
                A('s_bcnt1_i32_b32 s45, s45')
                A('s_sub_i32 s44, s44, s45')
                A('s_max_i32 s44, s44, 0')
                A(f's_min_i32 s44, s44, {NB}')
                A('s_bfm_b32 s100, s44, 0')

        def ldsadd(v):
            A(f'v_mov_b32 v7, {v}')
            A('s_mov_b64 exec, 1')
            A(f'ds_add_u32 v63, v7 offset:{C_WK}')
            A('s_mov_b64 exec, -1')
        A('s_mov_b32 s99, 0')
        A('L_kloop:')
        A('s_cmp_lg_u32 s99, 3')
        A('s_cbranch_scc1 L_knosw')
        A(f's_add_u32 s14, s{sV}, s34')
        A(f's_addc_u32 s15, s{sV+1}, 0')
        A(f's_mov_b32 s97, {sum(x << (4*i) for i, x in enumerate(VORD if not o["xo"] else range(8)))}')
        nxt_slice()
        A('v_mov_b32 v40, v38')
        A('v_mov_b32 v41, v39')
        ldsadd(1)
        if o['p2']:
            A('s_setprio 2')
        A('L_knosw:')

        def extract(t):
            d = 8 + 4 * (t & 1)
            A(f'v_cndmask_b32 v2, v{d}, v{d+2}, s[16:17]')
            A(f'v_cndmask_b32 v3, v{d+1}, v{d+3}, s[16:17]')
            if t & 1:
                A(f'v_add_f32_dpp v2, v2, v3 quad_perm:[1,0,3,2] {DPPM}')
            else:
                A(f'v_add_f32_dpp v2, v3, v2 quad_perm:[1,0,3,2] {DPPM}')
            A(f'v_cndmask_b32 v36, v36, v2, {sp(18+2*t)}')

        def score(i):
            self.rbf('v36')
            A(f'v_mul_f32 v36, {SCALE}, v36')
            A('v_cvt_pk_bf16_f32 v36, v36, v36')
            if i == 0:
                for x in range(6):
                    A(f'v_mov_b32 v{S+x}, v{S+x+2}')
            A(f'v_lshlrev_b32 v{S+6+i}, 16, v36')
        for n in range(48):
            k = n % 24
            t, j = k // 3, k % 3
            d = 8 + 4 * (t & 1)
            if k == 0:
                A('s_waitcnt lgkmcnt(0)')
            A(f'v_mfma_f32_16x16x32_bf16 {vr(d,4)}, {vr(RING+4*n,4)}, {vr(Q+4*j,4)}, {"0" if j == 0 else vr(d,4)}')
            if t == 7:
                A(f'ds_read_b128 {vr(Q+4*j,4)}, v51 offset:{1024*j + 128*(n//24 + 1)}')
            wait(n)
            load(n)
            balance(n)
            if o['TB'] and n == 24 + ND - 1:
                A('s_cmp_eq_u32 s99, 3')
                A(f's_cselect_b32 s44, {o["TB"]}, 0')
                A('s_or_b32 s100, s100, s44')
            if j == 0 and n > 0:
                extract((t - 1) & 7)
                if n == 24:
                    score(0)
        extract(7)
        score(1)
        A('v_add_u32 v51, 256, v51')
        A('s_add_u32 s99, s99, 1')
        A('s_cmp_lt_u32 s99, 4')
        A('s_cbranch_scc1 L_kloop')
        self.stamp(3)
        T = 8

        def tree(op, d0, d1):
            for a in (0, 1, 4, 5):
                A(f'v_permlane32_swap_b32 v{T+a}, v{T+a+2}')
            for a in (0, 1, 4, 5):
                A(f'{op} v{T+a}, v{T+a}, v{T+a+2}')
            for a in (0, 4):
                A(f'v_permlane16_swap_b32 v{T+a}, v{T+a+1}')
            A(f'{op} v{d0}, v{T}, v{T+1}')
            A(f'{op} v{d1}, v{T+4}, v{T+5}')
            for m in self.ROW16:
                for d in (d0, d1):
                    A(f'{op}_dpp v{d}, v{d}, v{d} {m} {DPPM}')
        for i in range(8):
            A(f'v_mov_b32 v{T+i}, v{S+VORD[i]}')
        tree('v_max_f32', 46, 48)
        for i in range(8):
            A(f'v_readlane_b32 s{70+i}, v{46+2*(i>>2)}, {16*(i&3)}')
        for i in range(8):
            A(f'v_subrev_f32 v{T+i}, s{70+i}, v{S+VORD[i]}')
        for i in range(8):
            A(f'v_mul_f32 v{T+i}, {LOG2E}, v{T+i}')
        for i in range(8):
            A(f'v_exp_f32 v{T+i}, v{T+i}')
        for i in range(8):
            A(f'v_cvt_pk_bf16_f32 v{S+i}, v{T+i}, v{T+i}')
        if o['t0'] >= 2:
            A(f'v_mov_b32 v61, v{T+7}')
        tree('v_add_f32', 47, 49)
        A('s_mov_b32 exec_lo, 0x00010001')
        A('s_mov_b32 exec_hi, 0x00010001')
        A('ds_write_b64 v52, v[46:47]')
        A('ds_write_b64 v52, v[48:49] offset:128')
        A('s_mov_b64 exec, 1')
        A(f'ds_add_u32 v63, v55 offset:{C_KC}')
        A('s_mov_b64 exec, -1')
        A('s_waitcnt lgkmcnt(0)')

        def pv(c):
            t = (c % 24) // 3
            b = 8 + 4 * (t & 1)
            A(f'v_mov_b32_dpp v6, v{S+c//24} row_newbcast:{t} row_mask:0xf bank_mask:0x3')
            A(f'v_mov_b32_dpp v37, v{S+c//24} row_newbcast:{8+t} row_mask:0xf bank_mask:0xc')
            A('v_or_b32 v5, v6, v37')
            for w in range(4):
                A(f'v_and_b32 v{b+w}, v5, v{42+w}')

        def pm(c):
            t, j = (c % 24) // 3, c % 3
            b = 8 + 4 * (t & 1)
            A(f'v_mfma_f32_16x16x32_bf16 {vr(Q+4*j,4)}, {vr(RING+4*(c%48),4)}, {vr(b,4)}, {"0" if t == 0 else vr(Q+4*j,4)}')

        def flush():
            A('s_mov_b64 exec, s[94:95]')
            for j in range(3):
                A(f'ds_write_b128 v62, {vr(Q+4*j,4)} offset:{256*j}')
            A('s_mov_b64 exec, 1')
            A(f'ds_add_u32 v63, v60 offset:{C_IC}')
            A('s_mov_b64 exec, -1')
            A('v_add_u32 v62, 1536, v62')
            A('v_lshlrev_b32 v60, 4, v60')

        def factor(cnt='s99'):
            top, done = self.lab('rdy'), self.lab('rdyd')
            A(f's_lshl2_add_u32 s44, s3, {L_FL + 7*16}')
            A('v_mov_b32 v2, s44')
            A(f's_mov_b32 {cnt}, {SPIN*8}')
            A(f'{top}:')
            A(f'ds_read_b32 v1, v63 offset:{C_RDY}')
            A('ds_read_b32 v46, v2')
            A('s_waitcnt lgkmcnt(0)')
            A('v_readfirstlane_b32 s96, v1')
            A('s_cmp_lg_u32 s96, 0')
            A(f's_cbranch_scc1 {done}')
            A(f's_sub_u32 {cnt}, {cnt}, 1')
            A(f's_cbranch_scc0 {top}')
            A(f'{done}:')
        A('v_mov_b32 v6, 0')
        A('v_mov_b32 v37, 0')
        LAG = o['LAG']
        assert LAG > DX

        def consume(c):
            if c % 24 == 0 and c:
                flush()
            if c % 3 == 0:
                pv(c)
            pm(c)
        c = 0
        for n in range(48):
            while c < min(2 * n + 2, 49 + n - LAG):
                consume(c)
                c += 1
            wait(n)
            load(n)
            balance(n)
        assert c == 96 - LAG
        A('s_mov_b32 s99, 0')
        A('L_vloop:')
        for i in range(6):
            A(f'v_mov_b32 v{S+i}, v{S+i+2}')
        for n in range(48):
            consume(48 + n - LAG)
            wait(n)
            load(n)
            balance(n)
            if o['t0'] >= 2 and n == 24:
                A('s_cmp_eq_u32 s99, 0')
                A('s_cbranch_scc1 L_nofac')
                factor('s47')
                A('v_mul_f32 v61, v61, v46')
                A(f'v_cvt_pk_bf16_f32 v{S+3}, v61, v61')
                A('L_nofac:')
        if o['TV']:
            A(f's_sub_u32 s101, s101, {16*o["TV"]}')
        A('s_add_u32 s99, s99, 1')
        A('s_cmp_lt_u32 s99, 2')
        A('s_cbranch_scc1 L_vloop')
        ldsadd(16)
        if o['t0'] < 2:
            factor()
        self.stamp(4)
        nxt = (c + 2) // 3
        while c < 96:
            while nxt < 32 and nxt <= (c + 2) // 3:
                pv(3 * nxt)
                nxt += 1
            if 95 - c < DX:
                A(f's_waitcnt vmcnt({95-c})')
            pm(c)
            c += 1
        self.stamp(5)
        A('s_mov_b64 exec, s[94:95]')
        for j in range(3):
            for h in range(2 if o['t0'] < 2 else 0):
                A(f'v_pk_mul_f32 {vr(Q+4*j+2*h,2)}, {vr(Q+4*j+2*h,2)}, v[46:47] op_sel_hi:[1,0]')
            A(f'ds_write_b128 v62, {vr(Q+4*j,4)} offset:{256*j}')
        A('s_mov_b64 exec, 1')
        A('ds_add_rtn_u32 v1, v63, v55')
        A('s_mov_b32 exec_lo, -1')
        A('s_mov_b32 exec_hi, 0xffff')
        for w in range(4):
            for h in range(2):
                A(f'ds_read_b128 {vr(64+8*w+4*h,4)}, v56 offset:{12288*w + 768*h}')
        A('s_waitcnt lgkmcnt(0)' if o['stamps'] else 's_waitcnt lgkmcnt(8)')
        A('v_readfirstlane_b32 s44, v1')
        if not o['t0']:
            A('s_cmp_lg_u32 s44, 3')
            A('s_cbranch_scc1 L_end')
        for w in range(4):
            A(f's_waitcnt lgkmcnt({6-2*w})')
            self.pk('add', 64 + 8 * w, 64 + 8 * w, 68 + 8 * w, n=2)
            if w:
                self.pk('add', 64, 64, 64 + 8 * w, n=2)
            elif o['t0']:
                A('s_cmp_lg_u32 s44, 3')
                A('s_cbranch_scc1 L_end')
        self.pack(2, 64, 2)
        A('v_min_u32 v2, -2, v2')
        A('v_min_u32 v3, -2, v3')
        self.mode_store('buffer_store_dwordx2 v[2:3], v57, s[4:7], 0 offen', 's96')
        ldsadd(64)
        self.stamp(6)
        if o['diag']:
            dg = o['diag']
            A('s_waitcnt lgkmcnt(0)')
            A('s_cmp_lg_u32 s2, 200')
            A('s_cbranch_scc1 L_end')
            A(f's_sub_u32 s44, s{48+2*int(dg[1])}, s{48+2*int(dg[2])}')
            A(f's_mul_i32 s44, s44, {dg[3]}')
            A('s_add_u32 s44, s44, 10000')
            A('L_dg:')
            A('s_memrealtime s[46:47]')
            A('s_waitcnt lgkmcnt(0)')
            A('s_sub_u32 s46, s46, s48')
            A('s_cmp_lt_u32 s46, s44')
            A('s_cbranch_scc1 L_dg')
        self.dump_stamps(0)
        A('L_end:')
        A('s_endpgm')

    WR = 128

    def dma_addr(self, ptr, rowbase_s, stride, colb_s):
        A = self.A
        A(f's_mul_i32 s10, {rowbase_s}, {stride}')
        A(f's_add_u32 s10, s10, {colb_s}')
        A(f's_add_u32 s10, s{ptr}, s10')
        A(f's_addc_u32 s11, s{ptr+1}, 0')
        A(f'v_mul_u32_u24 v1, {stride}, v18')
        A('v_lshl_add_u32 v10, v19, 4, v1')
        A('v_xor_b32 v2, 4, v19')
        A('v_lshl_add_u32 v12, v2, 4, v1')
        A(f'v_add_u32 v12, {8*stride}, v12')
        A('v_mov_b32 v11, 0')
        A('v_mov_b32 v13, 0')
        A('v_lshl_add_u64 v[10:11], v[10:11], 0, s[10:11]')
        A('v_lshl_add_u64 v[12:13], v[12:13], 0, s[10:11]')

    def dma_issue(self, NS, stride, pol, DH, burst=0, cond=0, s0=0, jump=None, hold=0, mid=(0, None), nobar=None):
        A = self.A
        A(f's_mov_b32 s10, {16*stride}')
        A('s_mov_b32 s11, 0')
        self.stamp(4, 1)
        A(f's_add_u32 m0, s37, {4096*s0}')
        for i in range(4 * (NS - s0)):
            a = 10 + 2 * (i & 1)
            if i and i == mid[0]:
                mid[1]()
            if jump and i + 4 * s0 in (16, 17):
                A(f'v_lshl_add_u64 {vr(a,2)}, {vr(a,2)}, 0, {jump}')
            if i >= DH and i >= burst:
                if cond:
                    l = self.lab('np')
                    A(f's_cbranch_vccz {l}')
                A(f's_waitcnt vmcnt({DH-1})')
                if cond:
                    A(f'{l}:')
            A(f'global_load_lds_dwordx4 {vr(a,2)}, off {pol}')
            A('s_add_u32 m0, m0, 1024')
            A(f'v_lshl_add_u64 {vr(a,2)}, {vr(a,2)}, 0, s[10:11]')
            if self.o['hold'] and s0 == 0 and i + 1 == min(hold or self.o['hold'], 4 * NS):
                l = self.lab('nb')
                A(nobar or f's_cmp_lg_u32 s39, {L_RED}')
                A(f's_cbranch_scc1 {l}')
                A('s_barrier')
                A(f'{l}:')

    def tr_addr(self, worder):
        A = self.A
        A('v_bfe_u32 v1, v0, 2, 2')
        A('v_and_b32 v2, 3, v0')
        if worder == 2:
            A('v_lshl_add_u32 v3, v20, 2, v1')
            A('v_lshrrev_b32 v4, 1, v1')
            A('v_lshrrev_b32 v5, 1, v20')
        elif not worder:
            A('v_lshl_add_u32 v3, v20, 3, v1')
            A('v_lshrrev_b32 v4, 1, v1')
            A('v_and_b32 v5, 1, v20')
        else:
            A('v_lshlrev_b32 v3, 1, v20')
            A('v_lshl_add_u32 v3, v1, 3, v3')
            A('v_and_b32 v4, 1, v20')
            A('v_and_b32 v5, 1, v1')
        A('v_lshl_add_u32 v4, v5, 1, v4')
        A('v_lshlrev_b32 v3, 7, v3')
        A('v_lshl_add_u32 v3, v2, 3, v3')
        A('v_add_u32 v3, s37, v3')
        for ct in range(4):
            A(f'v_xor_b32 v5, {ct}, v4')
            A(f'v_lshl_add_u32 v{14+ct}, v5, 5, v3')

    def tr_read(self, NS, hfoff, extra=0, s0=0, WR=128):
        A = self.A
        self.stamp(1, 1)
        for s in range(s0, NS):
            A(f's_waitcnt vmcnt({4*(NS-1-s)+extra})')
            if s in (0, NS - 1):
                self.stamp(2 if s == 0 else 3, 1)
            for ct in range(4):
                for hf in range(2):
                    A(f'ds_read_b64_tr_b16 {vr(WR+16*s+4*ct+2*hf,2)}, v{14+ct} offset:{4096*s+hfoff*hf}')
        A('s_waitcnt lgkmcnt(0)')

    def dense_addr(self, dst, base, esz, k='v23'):
        A = self.A
        sh = 1 if esz == 2 else 2
        A(f'v_lshrrev_b32 v1, 6, {k}')
        A('v_lshl_add_u32 v1, v1, 1, v22')
        A('v_lshlrev_b32 v1, 6, v1')
        A(f'v_and_b32 v2, 63, {k}')
        A(f'v_add_lshl_u32 {dst}, v1, v2, {sh}')
        if base:
            A(f'v_add_u32 {dst}, {base}, {dst}')

    def mfma_std(self, act, NS=5, shadow=(), per=2, hook=(0, None)):
        A = self.A
        shadow = list(shadow)
        for s in range(NS):
            cur = act if s == 0 else 112 + 4 * (s & 1)
            for ct in range(4):
                d = vr(96 + 4 * ct, 4)
                A(f'v_mfma_f32_16x16x32_bf16 {d}, {vr(self.WR+16*s+4*ct,4)}, {vr(cur,4)}, {"0" if s == 0 else d}')
                if 4 * s + ct + 1 == hook[0]:
                    hook[1]()
                if s + 1 < NS and ct < 2:
                    for i in (2 * ct, 2 * ct + 1):
                        A(f'v_mov_b32_dpp v{112+4*((s+1)&1)+i}, v{act+i} row_shl:{2*(s+1)} {DPPM}')
                else:
                    for i in range(1 if s + 1 == NS and len(shadow) < 5 else per):
                        if shadow:
                            A(shadow.pop(0))
        for x in shadow:
            A(x)

    def red_addr(self):
        A = self.A
        A('s_lshl_b32 s10, s38, 9')
        A('s_add_u32 s10, s10, s39')
        A('v_lshlrev_b32 v1, 8, v22')
        A('v_lshl_add_u32 v1, v20, 4, v1')
        A('v_add_u32 v24, s10, v1')
        A('v_lshl_add_u32 v25, v0, 3, s39')
        A('s_lshr_b32 s10, s39, 9')
        A(f's_add_u32 s10, s10, {L_CNT + 4 - (L_RED >> 9)}')
        A('v_mov_b32 v26, s10')
        A('v_mov_b32 v27, 1')
        A('s_mov_b32 s45, 3')

    def arrive(self, notlast, reads=None, nreads=0, defer=False):
        A = self.A
        A('s_mov_b64 exec, 1')
        A('ds_add_rtn_u32 v1, v26, v27')
        A('s_mov_b64 exec, -1')
        if reads:
            reads()
        A(f's_waitcnt lgkmcnt({0 if self.o["stamps"] else nreads})')
        A('v_readfirstlane_b32 s8, v1')
        if not (defer and self.o['db']):
            self.lastonly(notlast)

    def lastonly(self, notlast, deferred=False):
        if deferred and not self.o['db']:
            return
        self.A('s_cmp_lg_u32 s8, s45')
        self.A(f's_cbranch_scc1 {notlast}')

    def probe(self):
        A = self.A
        if self.o['sel'] >= 0:
            return
        skip, top = self.lab('noprobe'), self.lab('probe')
        A('s_cmp_lg_u32 s38, 0')
        A(f's_cbranch_scc1 {skip}')
        A('s_lshr_b32 s10, s2, 6')
        A('s_lshl_b32 s10, s10, 14')
        A('s_and_b32 s11, s2, 63')
        A('s_lshl_b32 s11, s11, 7')
        A('s_add_u32 s10, s10, s11')
        A(f's_add_u32 s10, s10, {H_PRB}')
        A(f's_add_u32 s10, s{sWS}, s10')
        A(f's_addc_u32 s11, s{sWS+1}, 0')
        A('s_mov_b32 s12, -1')
        A('s_mov_b32 s13, -1')
        A(f's_mov_b32 s9, {self.o["NP"]}')
        A(f'{top}:')
        for c in range(2):
            A('s_memtime s[32:33]')
            A('s_waitcnt lgkmcnt(0)')
            A(f's_load_dword s8, s[10:11], {8192*c} glc')
            A('s_waitcnt lgkmcnt(0)')
            A('s_memtime s[34:35]')
            A('s_waitcnt lgkmcnt(0)')
            A('s_sub_u32 s8, s34, s32')
            A(f's_min_u32 s{12+c}, s{12+c}, s8')
        A('s_sub_u32 s9, s9, 1')
        A('s_cmp_lg_u32 s9, 0')
        A(f's_cbranch_scc1 {top}')
        A('s_cmp_lt_u32 s13, s12')
        A('s_cselect_b32 s8, 8192, 0')
        A(f'v_mov_b32 v1, {L_CNT+16}')
        A('v_mov_b32 v2, s8')
        A('ds_write_b32 v1, v2')
        A(f'{skip}:')

    def get_sel(self):
        A = self.A
        if self.o['sel'] >= 0:
            A(f's_mov_b32 s47, {8192*self.o["sel"]}')
            return
        A(f'v_mov_b32 v1, {L_CNT+16}')
        A('ds_read_b32 v1, v1')
        A('s_waitcnt lgkmcnt(0)')
        A('v_readfirstlane_b32 s47, v1')
        A('s_and_b32 s47, s47, 8192')
        if self.o['stamps']:
            A('s_mov_b32 s60, s47')

    def wake(self, level, add=True, both=True, sleep=None):
        A = self.A
        top, done = self.lab('wake'), self.lab('awake')
        A(f'v_mov_b32 v1, {L_CNT+24}')
        if add:
            A('v_mov_b32 v2, 1')
            A('s_mov_b64 exec, 1')
            A('ds_add_u32 v1, v2')
            A('s_mov_b64 exec, -1')
        A(f's_mov_b32 s9, {SPIN*8}')
        A(f'{top}:')
        A('ds_read_b64 v[2:3], v1')
        A('s_waitcnt lgkmcnt(0)')
        if both:
            A('v_lshrrev_b32 v2, 2, v2')
            A('v_mul_u32_u24 v3, v2, v3')
        A(f'v_cmp_gt_u32 vcc, {level}, v3')
        A(f's_cbranch_vccz {done}')
        A(f's_sleep {sleep or self.o["wks"]}')
        A('s_sub_u32 s9, s9, 1')
        A(f's_cbranch_scc0 {top}')
        A(f'{done}:')

    def midwait(self):
        if self.o['p2']:
            self.A('s_setprio 0')
        self.wake(1, add=False, both=False, sleep=16)
        self.flags_addr('v8', True)
        self.flags_wait('v8', 'v9')

    def tail_begin(self, name):
        A = self.A
        A('s_mov_b32 s46, 8192')
        self.stamp(1)
        A('s_mov_b32 s6, 0')
        A('s_mov_b32 s30, 0')
        A('s_mov_b32 s45, 0')
        A('v_mov_b32 v27, 0')
        A(f'{name}:')
        self.stamp(2)

    def hbar(self, sleep=0):
        A = self.A
        top, done = self.lab('hbar'), self.lab('hbard')
        A(f'v_mov_b32 v1, {L_CNT+12}')
        A('v_mov_b32 v2, 1')
        A('s_mov_b64 exec, 1')
        A('ds_add_u32 v1, v2')
        A('s_mov_b64 exec, -1')
        A(f's_mov_b32 s9, {SPIN*8}')
        A(f'{top}:')
        A('ds_read_b32 v2, v1')
        A('s_waitcnt lgkmcnt(0)')
        A('v_cmp_ne_u32 vcc, 4, v2')
        A(f's_cbranch_vccz {done}')
        if sleep:
            A(f's_sleep {sleep}')
        A('s_sub_u32 s9, s9, 1')
        A(f's_cbranch_scc0 {top}')
        A(f'{done}:')

    def merge_call(self, ty):
        A = self.A
        A(f's_mov_b32 s24, {ty}')
        A('s_cmp_eq_u32 s38, 3')
        A('s_cbranch_scc1 L_merge')
        A(f'L_back{ty}:')

    def tail_end(self, name, ty, level, late=None, llevel=128):
        A = self.A
        l = self.lab('real')
        A('s_cmp_lg_u32 s45, 0')
        A(f's_cbranch_scc1 {l}')
        A('s_mov_b64 exec, -1')
        A(f's_mov_b32 s6, {H_END}')
        A('s_mov_b32 s30, 2560')
        A('s_mov_b32 s45, 3')
        A('v_mov_b32 v27, 1')
        A('s_waitcnt vmcnt(0)')
        self.merge_call(ty)
        if late:
            self.wake(llevel)
            self.stamp(1)
            late()
        else:
            self.wake(level)
        A(f's_branch {name}')
        A(f'{l}:')
        self.dump_stamps(0x20000)
        A('s_endpgm')

    def red_write_std(self, nt=4, off=0):
        A = self.A
        A('s_mov_b32 exec_lo, 0x00030003')
        A('s_mov_b32 exec_hi, 0x00030003')
        for ct in range(nt):
            A(f'ds_write_b128 v24, {vr(96+4*ct,4)} offset:{64*ct+off}')

    def red_read(self, dst, addr='v25', off=0):
        A = self.A
        for w in range(4):
            A(f'ds_read_b64 {vr(dst+2*w,2)}, {addr} offset:{512*w+off}')

    def red_sum(self, dst):
        self.pk('add', dst, dst, dst + 4, n=2)
        self.pk('add', dst, dst, dst + 2, n=1)

    def publish_bf16(self, base):
        A = self.A
        self.red_read(96)
        A('s_lshl_b32 s10, s40, 8')
        A(f's_add_u32 s10, s10, {base}')
        A('v_lshl_add_u32 v1, v0, 2, s10')
        A('s_waitcnt lgkmcnt(0)')
        self.red_sum(96)
        A('v_cvt_pk_bf16_f32 v2, v96, v97')
        A('v_min_u32 v2, -2, v2')
        A('buffer_store_dword v2, v1, s[4:7], 0 offen sc1')
        A('s_mov_b64 exec, 1')
        A('ds_add_u32 v26, v27')
        A('s_mov_b64 exec, -1')

    def ln_scalars(self, mean, var):
        A = self.A
        A(f'v_cvt_pk_bf16_f32 v1, {mean}, {var}')
        A(f'v_and_b32 {var}, 0xffff0000, v1')
        A(f'v_add_f32 {var}, {f2u(1e-5)}, {var}')
        self.rbf(var)
        A(f'v_sqrt_f32 {var}, {var}')
        A(f'v_lshlrev_b32 {mean}, 16, v1')
        self.rbf(var)
        A(f'v_rcp_f32 {var}, {var}')

    def helper(self):
        A = self.A
        A('L_helper:')
        if self.o['ec']:
            A(f's_setprio {self.o["prio"]}')
            A('s_lshl_b32 s10, s3, 8')
            A('s_add_u32 s10, s10, s2')
            A('s_sub_u32 s10, s10, 1024')
            A('s_cmp_lt_u32 s10, 40')
            A('s_cbranch_scc1 L_clear')
            A('L_help2:')
        A('s_getpc_b64 s[92:93]')
        A('L_pc:')
        A('s_lshr_b32 s8, s2, 3')
        A('s_lshl2_add_u32 s8, s8, s3')
        A(f's_lshl_b32 s8, s8, {6 if self.o["pf"] > 2 else 7}')
        for i in range(self.o['pf']):
            if i:
                A(f's_add_u32 s8, s8, {8192 if self.o["pf"] > 2 else 16384}')
                A('s_min_u32 s8, s8, L_tab-L_pc')
            A('s_load_dword s9, s[92:93], s8')
        A('s_add_u32 s92, s92, L_tab-L_pc')
        A('s_addc_u32 s93, s93, 0')
        A('s_lshl_b32 s8, s2, 2')
        A('s_load_dword s36, s[92:93], s8')
        A(f's_setprio {self.o["prio"]}')
        A('s_sub_u32 s38, s3, 4')
        A('s_mul_i32 s37, s38, 24576')
        A(f's_mov_b32 s39, {L_RED}')
        A(f'v_mov_b32 v1, {L_CNT}')
        A('v_mov_b32 v2, 0')
        A('v_mov_b32 v3, 0')
        A('ds_write_b64 v1, v[2:3]')
        for o in (8, 16, 24, 32, 40):
            A(f'ds_write_b64 v1, v[2:3] offset:{o}')
        A('v_lshrrev_b32 v18, 3, v0')
        A('v_lshrrev_b32 v20, 4, v0')
        A('v_and_b32 v1, 1, v20')
        A('v_lshlrev_b32 v1, 1, v1')
        A('v_and_b32 v2, 7, v0')
        A('v_xor_b32 v19, v1, v2')
        A('v_and_b32 v22, 1, v0')
        A('v_bfe_u32 v1, v0, 1, 3')
        A('v_min_u32 v1, 4, v1')
        A('v_lshlrev_b32 v1, 5, v1')
        A('v_lshl_add_u32 v21, v20, 3, v1')
        A('s_mul_i32 s41, s38, 160')
        A('v_add_u32 v23, s41, v21')
        A('s_mov_b32 s16, 0x03ff03ff')
        A('s_mov_b32 s17, 0x03ff03ff')
        A('s_waitcnt lgkmcnt(0)')
        if not self.o['hold']:
            A('s_barrier')
        self.ws_srd()
        if self.o['lc']:
            A('s_bfe_u32 s21, s36, 0x50018')
            A('s_mov_b32 s24, 0')
            A('s_lshr_b32 s10, s21, 1')
            A('s_cmp_eq_u32 s10, 8')
            A('s_cbranch_scc1 L_clear')
        elif not self.o['ec']:
            A('s_bitcmp1_b32 s36, 28')
            A('s_cbranch_scc1 L_clear')
        A('L_job:')
        A('s_and_b32 s10, s36, 15')
        A('s_bfe_u32 s40, s36, 0x80004')
        A('s_lshr_b32 s36, s36, 12')
        A('s_and_b32 s36, s36, 0xfff')
        for ty, l in ((T_M, 'L_M'), (T_Q, 'L_Q'), (T_W, 'L_W'), (T_F, 'L_F'), (T_D, 'L_D')):
            A(f's_cmp_eq_u32 s10, {ty}')
            A(f's_cbranch_scc1 {l}')
        A('s_branch L_idle')
        A('L_next:')
        if self.o['pw']:
            A('s_cmp_eq_u32 s36, 0')
            A('s_cbranch_scc1 L_idle')
            self.lwait(4, lambda: A('s_cmp_ge_u32 s8, 5'), 2)
        A('s_add_u32 s39, s39, 2048')
        A('s_branch L_job')
        A('L_clear:')
        if self.o['ec']:
            A('s_waitcnt lgkmcnt(0)')
            self.ws_srd()
        else:
            A('s_and_b32 s10, s21, 15' if self.o['lc'] else 's_bfe_u32 s10, s36, 0x40018')
            A('s_lshl2_add_u32 s10, s10, s38')
        for i in range(4):
            A(f'v_mov_b32 v{4+i}, -1')
        A('s_mov_b32 s11, 4096')
        A('s_cmp_ge_u32 s10, 8')
        A('s_cbranch_scc1 L_clrB')
        A('s_mul_i32 s12, s10, 5120')
        A('v_lshl_add_u32 v1, v0, 4, s12')
        for k in range(0 if self.o['xc'] & 1 else 5):
            A(f'buffer_store_dwordx4 v[4:7], v1, s[4:7], {"s11" if k >= 4 else "0"} offen offset:{1024*(k&3)} sc1')
        A('s_branch L_clrF')
        A('L_clrB:')
        assert H_TS == 8 * 5120 and H_CLR - H_TS <= 12 * 32768
        A('s_add_u32 s12, s10, 32')
        A('s_lshl_b32 s12, s12, 10')
        A('v_lshl_add_u32 v1, v0, 4, s12')
        A(f's_mov_b32 s6, {H_END if self.o["ca"] else H_CLR}')
        used = lambda kb: not (H_X2 <= kb * 1024 < H_OP) or (kb & 7) < (3 + bool(self.o['wt']) if kb * 1024 < H_ACT else 6 if kb * 1024 < H_Y else 5)
        for i in range(30 if self.o['ca'] else 1 if self.o['xc'] & 2 else 12):
            m = sum(used(40 + 32 * i + c) << c for c in range(32))
            if self.o['cs'] and m != 0xffffffff:
                l = self.lab('nc')
                A('s_sub_u32 s12, s10, 8')
                A(f's_bitcmp1_b32 {m}, s12')
                A(f's_cbranch_scc0 {l}')
                A('buffer_store_dwordx4 v[4:7], v1, s[4:7], 0 offen sc1')
                A(f'{l}:')
            else:
                A('buffer_store_dwordx4 v[4:7], v1, s[4:7], 0 offen sc1')
            A('v_add_u32 v1, 32768, v1')
        A('s_add_u32 s10, s10, 24')
        A(f's_mov_b32 s6, {H_END}')
        A('L_clrF:')
        A('s_lshl_b32 s10, s10, 2')
        A('v_mov_b32 v1, s10')
        A('s_waitcnt vmcnt(0)')
        A('s_mov_b64 exec, 1')
        A(f'global_store_dword v1, v4, {sp(sDBG)} sc1')
        A('s_mov_b64 exec, -1')
        if self.o['lc']:
            A('s_cmp_eq_u32 s24, 9')
            A('s_cbranch_scc1 L_Wclr')
        A('s_branch L_help2' if self.o['ec'] else 's_branch L_job')

        A('L_M:')
        A('v_mul_u32_u24 v1, 640, v22')
        A('v_add_lshl_u32 v1, v1, v23, 1')
        A(f'global_load_dwordx4 v[28:31], v1, {sp(sC)}')
        A('s_lshl_b32 s12, s40, 7')
        self.dma_addr(sWM, 's41', 7680, 's12')
        A(f's_cmp_lg_u32 s39, {L_RED}')
        A('s_cselect_b64 vcc, -1, 0')
        self.dma_issue(5, 7680, 'nt', self.o['DM2'], cond=1, nobar='s_cmp_lt_u32 s40, 20' if self.o['mh'] else None)
        self.tr_addr(False)
        self.red_addr()
        A('s_waitcnt vmcnt(20)')
        self.unpack(32, 28, 4)
        for i in range(8):
            self.silu(f'v{32+i}', 'v4', 'v5')
        self.pack(28, 32, 4)
        self.flags_addr('v8', False)
        A(f'global_load_dword v9, v8, {sp(sDBG)} sc1')
        self.tr_read(5, 512, extra=1)
        self.stamp(1)
        self.mfma_std(28)
        self.red_write_std()
        self.arrive('L_Mdone')
        ok = self.lab('fok')
        A('s_waitcnt vmcnt(0)')
        A('v_cmp_eq_u32 vcc, 0, v9')
        A(f's_cbranch_vccz {ok}')
        self.flags_wait('v8', 'v9')
        A(f'{ok}:')
        self.publish_bf16(H_MOD)
        if self.o['stamps']:
            self.stamp(2)
            A('s_cmp_lt_u32 s40, 20')
            A('s_cbranch_scc0 L_next')
            self.dump_stamps(0x10000)
            A('s_mov_b64 exec, -1')
        A('L_Mdone:')
        if self.o['mh']:
            assert JT == 5 and self.o['hold']
            A('s_cmp_lt_u32 s40, 20')
            A('s_cbranch_scc0 L_next')
            A('s_barrier')
        A('s_branch L_next')

        A('L_Q:')
        xl = self.o['xl']

        def xload():
            A('v_mul_u32_u24 v1, 640, v22')
            A('v_add_lshl_u32 v2, v1, v23, 1')
            A('v_add_lshl_u32 v1, v1, v21, 1')
            A(f'global_load_dwordx4 v[28:31], v2, {sp(sX)}')
            for w in range(4):
                A(f'global_load_dwordx4 {vr(32+4*w,4)}, v1, {sp(sX)} offset:{320*w}')
        if not xl:
            xload()
        A('s_lshl_b32 s12, s40, 7')
        self.dma_addr(sWQ, 's41', 12288, 's12')
        self.dma_issue(5, 12288, 'nt', self.o['DQ'], mid=(xl, xload))
        self.tr_addr(False)
        self.red_addr()
        A(f's_waitcnt vmcnt({20-xl})')
        self.unpack(48, 32, 16)
        self.unpack(32, 28, 4)
        self.pk('add', 80, 48, 64, n=8)
        self.pk('add', 80, 80, 88, n=4)
        self.pk('add', 80, 80, 84, n=2)
        self.pk('add', 80, 80, 82, n=1)
        A('v_add_f32 v6, v80, v81')
        A('v_cndmask_b32 v6, 0, v6, s[16:17]')
        self.rowred('v_add_f32', 'v6', self.ROWPAR)
        self.xrow('v_add_f32', 'v6', 'v1')
        A(f'v_mul_f32 v6, {f2u(1/640)}, v6')
        A('v_mov_b32 v8, 0')
        for i in range(32):
            A(f'v_sub_f32 v1, v{48+i}, v6')
            A('v_fmac_f32 v8, v1, v1')
        A('v_cndmask_b32 v8, 0, v8, s[16:17]')
        self.rowred('v_add_f32', 'v8', self.ROWPAR)
        self.xrow('v_add_f32', 'v8', 'v1')
        A(f'v_mul_f32 v8, {f2u(1/640)}, v8')
        self.ln_scalars('v6', 'v8')
        self.pk('add', 32, 32, 6, bstep=0, mods='op_sel_hi:[1,0] neg_lo:[0,1] neg_hi:[0,1]')
        self.rbf8(32, 28)
        self.pk('mul', 32, 32, 8, bstep=0, mods='op_sel_hi:[1,0]')
        self.rbf8(32, 28)
        self.flags_addr('v8', False)
        A(f'global_load_dword v9, v8, {sp(sDBG)} sc1')
        self.tr_read(5, 512, extra=1)
        ok = self.lab('fok')
        A('s_waitcnt vmcnt(0)')
        A('v_cmp_eq_u32 vcc, 0, v9')
        A(f's_cbranch_vccz {ok}')
        self.flags_wait('v8', 'v9')
        A(f'{ok}:')
        self.dense_addr('v8', H_MOD, 2)
        self.stamp(1)
        if self.o['NG']:
            if self.o['g3']:
                A('s_and_b32 s10, s40, 7')
                A('s_cmp_eq_u32 s10, 3')
                A('s_cbranch_scc1 L_Qgo')
            self.lwait(20, lambda: A(f's_cmp_ge_u32 s8, {self.o["gc"]}'), 4)
            A('L_Qgo:')

        def ld():
            A('buffer_load_dwordx4 v[40:43], v8, s[4:7], 0 offen sc1')
            A('buffer_load_dwordx4 v[44:47], v8, s[4:7], 0 offen offset:2560 sc1')
        if self.o['pp']:
            for r in range(40, 48):
                A(f'v_mov_b32 v{r}, -1')
            self.poll(ld, range(40, 48), 'v1', mask=True, sleep=self.o['psl'], fly=2 * self.o['pp'])
        else:
            self.poll(ld, range(40, 48), 'v1', mask=True, sleep=self.o['qsl'])
        self.stamp(2)
        self.unpack(56, 44, 4)
        for i in range(4):
            A(f'v_pk_add_f32 {vr(56+2*i,2)}, {vr(56+2*i,2)}, 1.0 op_sel_hi:[1,0]')
        self.rbf8(56, 28)
        self.pk('mul', 32, 32, 56)
        self.rbf8(32, 28)
        self.unpack(48, 40, 4)
        self.pk('add', 32, 32, 48)
        self.pack(28, 32, 4)
        self.mfma_std(28)
        self.red_write_std()
        self.arrive('L_next')
        self.publish_bf16(H_Q)
        if self.o['stamps']:
            self.stamp(3)
            self.dump_stamps(0x10000)
            A('s_mov_b64 exec, -1')
        A('s_branch L_next')

        A('L_W:')
        EF, ED = self.o['EF'], self.o['ED']
        WP, WS = 64, 160
        A('s_and_b32 s42, s40, 7')
        A('s_lshr_b32 s43, s40, 3')
        A('s_sub_u32 s13, 3, s38')
        A('s_lshl3_add_u32 s13, s13, s42')
        A('s_mul_i32 s13, s13, 192')
        A('s_lshl_b32 s12, s43, 7')
        self.dma_addr(sWO, 's13', 1280, 's12')
        A(f's_cmp_lg_u32 s39, {L_RED}')
        A('s_cselect_b64 vcc, -1, 0')
        self.dma_issue(6, 1280, 'nt', self.o['DW2'], cond=1)
        self.tr_addr(1)
        self.red_addr()
        A('s_mul_i32 s10, s42, 12288')
        A(f's_add_u32 s10, s10, {H_OP}')
        A('v_bfe_u32 v1, v0, 1, 3')
        A('v_mul_u32_u24 v1, 384, v1')
        A('v_lshl_add_u32 v1, v22, 4, v1')
        A('v_lshl_add_u32 v1, v20, 5, v1')
        A('v_add_u32 v28, s10, v1')
        A('s_lshl_b32 s10, s38, 9')
        A('s_add_u32 s10, s10, s39')
        A('v_lshl_add_u32 v24, v0, 2, s10')
        A('s_lshr_b32 s10, s42, 1')
        A('s_lshl_b32 s10, s10, 14')
        A('s_and_b32 s11, s42, 1')
        A('s_mul_i32 s11, s11, 2560')
        A('s_add_u32 s10, s10, s11')
        A('s_lshl_b32 s11, s43, 8')
        A('s_add_u32 s10, s10, s11')
        A(f's_add_u32 s10, s10, {H_Y}')
        A('v_bfe_u32 v1, v0, 2, 2')
        A('v_bfe_u32 v3, v0, 4, 1')
        A('v_lshl_add_u32 v1, v1, 1, v3')
        A('v_lshrrev_b32 v3, 5, v0')
        A('v_lshl_add_u32 v1, v1, 1, v3')
        A('v_and_b32 v3, 3, v0')
        A('v_lshl_add_u32 v1, v1, 2, v3')
        A('v_lshl_add_u32 v29, v1, 2, s10')
        A('s_lshl_b32 s10, s42, 10')
        A(f's_add_u32 s10, s10, {H_FLG}')
        A('v_and_b32 v1, 31, v0')
        A('v_lshl_add_u32 v30, v1, 2, s10')
        if self.o['lc'] == 2:
            A('s_mov_b32 s24, 9')
            A('s_cmp_ge_u32 s21, 18')
            A('s_cbranch_scc1 L_clear')
            A('L_Wclr:')
        self.tr_read(6, 128, WR=WP)
        if self.o['lc'] == 1:
            A('s_mov_b32 s24, 9')
            A('s_cmp_ge_u32 s21, 18')
            A('s_cbranch_scc1 L_clear')
            A('L_Wclr:')
        self.hbar(sleep=8)
        hs = self.o['hs']
        if hs:
            A(f's_mov_b32 s37, {3*24576}')
            self.tr_addr(1)
            self.tr_read(6, 128, WR=WS, s0=3)
        AF = 8
        dq = lambda ct, p: 32 + 8 * ct + 4 * p

        def post(ct):
            d = 32 + 8 * ct
            r = [f'v_add_f32 v{d}, v{d}, v{d+2}', f'v_add_f32 v{d+5}, v{d+5}, v{d+7}', f'v_add_f32 v{d}, v{d}, v{d+5}']
            if ct & 1:
                r += [f'v_permlane16_swap_b32 v{d-8}, v{d}', f'v_add_f32 v{d}, v{d-8}, v{d}']
            return r
        A('s_mov_b32 s46, 8192')
        A('s_mov_b32 s6, 0')
        A('s_mov_b32 s45, 0')
        A('s_mov_b32 s44, 0')
        A('s_mov_b32 s47, 0')
        A('v_mov_b32 v27, 0')
        wt = self.o['wt']
        if wt:
            A('s_mov_b32 s25, 1')
            A('s_lshl_b32 s10, s42, 7')
            A(f's_add_u32 s10, s10, {H_X2 + 3072}')
            A('v_mov_b32 v31, s10')
            A(f'v_mov_b32 v21, {L_CNT}')
        A('L_Wt:')
        self.stamp(2)

        def mf(ct, s):
            d = vr(dq(ct, s & 1), 4)
            return f'v_mfma_f32_16x16x32_bf16 {d}, {vr(AF+4*(s>>1),4)}, {vr(WS+16*s+4*ct,4)}, {"0" if s < 2 else d}'
        self.spoll([(f'buffer_load_dwordx4 {vr(AF+4*u,4)}, v28, s[4:7], s47 offen offset:{128*u} sc1', AF + 4 * u) for u in range(3)],
                   [[mf(0, 2 * u), mf(0, 2 * u + 1)] for u in range(3)])
        self.stamp(3)
        sh = []
        for ct in range(1, 4):
            for s in range(6):
                A(mf(ct, s))
                k = 6 * (ct - 1) + s
                if wt and k == 0:
                    A('s_cmp_lg_u32 s25, 0')
                    A('s_cbranch_scc1 L_Wn1')
                    A('s_mov_b64 exec, 1')
                    A('ds_add_rtn_u32 v22, v21, v27 offset:44')
                    A('s_mov_b64 exec, -1')
                    A('L_Wn1:')
                if wt and k == wt:
                    A('s_cbranch_scc1 L_Wn2')
                    A('s_waitcnt lgkmcnt(0)')
                    A('v_readfirstlane_b32 s10, v22')
                    A('s_cmp_lg_u32 s10, 3')
                    A('s_cbranch_scc1 L_Wn2')
                    A('s_mov_b64 exec, 1')
                    A('buffer_store_dword v27, v31, s[4:7], 0 offen sc1')
                    A('buffer_store_dword v27, v31, s[4:7], s46 offen sc1')
                    A('s_mov_b64 exec, -1')
                    A('L_Wn2:')
                if s == 1 and ct >= 2:
                    sh += post(ct - 2)
                if sh:
                    A(sh.pop(0))
        for x in sh + post(2) + post(3):
            A(x)
        A(f's_sub_u32 s47, s47, {OPI}')
        A('s_sub_u32 s44, s44, 1')
        A('v_permlane32_swap_b32 v40, v56')
        A('v_add_f32 v40, v40, v56')
        A('v_add_f32 v40, v40, v4')
        A('ds_write_b32 v24, v40')
        A('v_mov_b32 v4, v5')
        A('v_subrev_u32 v24, 256, v24')
        A('s_cbranch_scc0 L_Wt2')
        self.arrive('L_end', lambda: self.red_read(AF), 4, True)
        A('s_waitcnt lgkmcnt(0)')
        self.red_sum(AF)
        self.lastonly('L_end', True)
        A(f'v_cvt_pk_bf16_f32 v2, v{AF}, v{AF+1}')
        A('v_min_u32 v2, -2, v2')
        A('buffer_store_dword v2, v29, s[4:7], 0 offen sc1')
        A('buffer_store_dword v2, v29, s[4:7], s46 offen sc1')
        self.stamp(4)
        A('s_cmp_lg_u32 s45, 0')
        A('s_cbranch_scc1 L_Wend')
        A(f's_mov_b32 s6, {H_END}')
        A('s_mov_b32 s45, 3')
        A('v_mov_b32 v27, 1')
        A('v_add_u32 v24, 512, v24')
        A('v_mov_b32 v4, 0')
        A('v_mov_b32 v5, 0')
        self.midwait()
        self.merge_call(T_W)
        A('s_cmp_eq_u32 s38, 3')
        A('s_cbranch_scc1 L_Wsh')
        if self.o['xg']:
            A('s_branch L_Wsh')
        A('s_mov_b32 s44, s38')
        A('L_Wp:')
        A('s_lshl2_add_u32 s12, s44, 2')
        self.item_wait('s12')
        self.stamp(1, 3)
        if self.o['fs0']:
            A(f's_sleep {self.o["fs0"]}')
        A('s_lshl_b32 s12, s44, 7')
        if self.o['xf'] != 1:
            self.poll(lambda: A('buffer_load_dword v2, v30, s[4:7], s12 offen sc1'), [2], 'v1', sleep=self.o['fsl'])
        self.stamp(2, 3)
        if self.o['xf'] == 2:
            A('s_mov_b32 s6, 0')
        A('s_sub_u32 s47, 7, s44')
        if self.o['ru']:
            self.lwait(C_RDY, lambda: A('s_cmp_lg_u32 s8, 0'), 8)
            A('s_mov_b32 s26, s8')
            A('s_sub_u32 s10, 7, s38')
            A('s_cmp_eq_u32 s26, 2')
            A('s_cselect_b32 s47, s10, s47')
        A(f's_mul_i32 s20, s47, {OPI}')
        for r in range(1, 4):
            A(f's_add_u32 s{20+r}, s20, {3072*r}')
        NB = 12
        pl = lambda i: A(f'buffer_load_dwordx4 {vr(WS+4*(i%NB),4)}, v28, s[4:7], s{20+i//3} offen offset:{128*(i%3)} sc1')
        for i in range(NB):
            pl(i)
        for i in range(12):
            A(f's_waitcnt vmcnt({min(NB-1, 11-i)})')
            for ct in range(4):
                for p in range(2):
                    d = vr(dq(ct, p), 4)
                    A(f'v_mfma_f32_16x16x32_bf16 {d}, {vr(WS+4*(i%NB),4)}, {vr(WP+16*(2*(i%3)+p)+4*ct,4)}, {"0" if i == 0 else d}')
            if i + NB < 12:
                pl(i + NB)
        if self.o['ru']:
            A('s_cmp_lg_u32 s26, 2')
            A('s_cbranch_scc1 L_Wnd')
            A('s_mul_i32 s10, s38, 10')
            A('s_add_u32 s10, s10, s43')
            A('s_lshl2_add_u32 s10, s10, 896')
            A('s_mov_b64 exec, 1')
            A('buffer_store_dword v0, v30, s[4:7], s10 offen')
            A('s_mov_b64 exec, -1')
            A('L_Wnd:')
        for ct in range(4):
            for x in post(ct):
                A(x)
        A('v_permlane32_swap_b32 v40, v56')
        A('v_mov_b32 v4, v5')
        A('v_add_f32 v5, v40, v56')
        A(f's_mov_b32 s6, {H_END}')
        A('s_add_u32 s44, s44, 3')
        A('s_cmp_lt_u32 s44, 6')
        A('s_cbranch_scc1 L_Wp')
        if self.o['stamps'] == 3:
            self.stamp(3, 3)
            A('s_cmp_lg_u32 s38, 2')
            A('s_cbranch_scc1 L_Wsh')
            self.dump_stamps(0x10000)
            A('s_mov_b64 exec, -1')
        A('L_Wsh:')
        A('v_mov_b32 v6, v4')
        A('v_mov_b32 v7, v5')
        A(f's_mov_b32 s37, {3*24576}')
        self.tr_addr(1)
        self.tr_read(3 if hs else 6, 128, WR=WS)
        A('v_mov_b32 v4, v6')
        A('v_mov_b32 v5, v7')
        self.stamp(1)
        self.wake(self.o['WL'])
        A('s_mul_i32 s47, s38, 3072')
        A(f's_add_u32 s47, s47, {OPI}')
        A('s_mov_b32 s44, 1')
        A('s_branch L_Wt')
        A('L_Wt2:')
        if wt:
            A('s_mov_b32 s25, s43')
        if self.o['w2']:
            self.wake(128, add=False, both=False, sleep=self.o['w2'])
        A('s_branch L_Wt')
        A('L_Wend:')
        self.dump_stamps(0x20000)
        A('s_endpgm')

        A('L_idle:')
        A('s_cmp_lg_u32 s38, 3')
        A('s_cbranch_scc1 L_end')
        self.midwait()
        A('s_mov_b32 s24, 0')
        A('L_merge:')

        def repf(lo, n):
            A('s_lshr_b32 s10, s2, 3')
            A('s_lshl_b32 s10, s10, 6')
            A(f's_sub_u32 s22, s92, {lo}')
            A('s_subb_u32 s23, s93, 0')
            for i in range(n):
                A('s_load_dword s11, s[22:23], s10')
                A('s_add_u32 s10, s10, 2048')
            A('s_waitcnt lgkmcnt(0)')
        if self.o['pf2'] & 1:
            repf(5 * 2048, 5)
        if self.o['pf2'] & 4:
            repf(14 * 2048, 7)
        if self.o['pt'] == 1:
            A('s_and_b32 s10, s2, 7')
            A('s_lshr_b32 s11, s2, 3')
            A('s_lshl_b32 s10, s10, 5')
            A('s_add_u32 s10, s10, s11')
            A('s_mul_i32 s10, s10, 384')
            A(f's_add_u32 s10, s{sWS}, s10')
            A(f's_addc_u32 s11, s{sWS+1}, 0')
            for j in range(2, 8):
                for k in range(3):
                    A(f's_load_dword s8, s[10:11], {H_OP + j*OPI + 128*k}')
                A('s_waitcnt lgkmcnt(0)')
        self.lwait(C_KC, lambda: A('s_cmp_eq_u32 s8, 4'), 8)
        A('v_and_b32 v96, 31, v0')
        A('v_lshlrev_b32 v1, 3, v96')
        A(f'v_add_u32 v1, {L_MLL}, v1')
        A('ds_read_b64 v[98:99], v1')
        A('s_and_b32 s34, s2, 7')
        A('s_lshr_b32 s35, s2, 3')
        A('s_lshl_b32 s10, s34, 12')
        A(f's_add_u32 s10, s10, {H_ML}')
        A('v_lshrrev_b32 v1, 1, v0')
        A('v_lshlrev_b32 v1, 7, v1')
        A('v_add_u32 v97, s10, v1')
        A('s_lshl_b32 s11, s35, 7')
        A('s_add_u32 s10, s10, s11')
        A('v_lshl_add_u32 v1, v0, 1, s10')
        A('s_getreg_b32 s32, hwreg(HW_REG_XCC_ID, 0, 4)')
        A('s_waitcnt lgkmcnt(0)')
        A('v_mov_b32 v100, v98')
        self.rowred('v_max_f32', 'v100', self.ROW16[:2])
        A('v_sub_f32 v101, v98, v100')
        A(f'v_mul_f32 v101, {LOG2E}, v101')
        A('v_exp_f32 v101, v101')
        A('v_mul_f32 v101, v101, v99')
        self.rowred('v_add_f32', 'v101', self.ROW16[:2])
        A('v_min_u32 v100, -2, v100')
        A('v_min_u32 v101, -2, v101')
        A('v_writelane_b32 v100, s32, 32')
        A('s_mov_b32 exec_lo, 0x11111111')
        A('s_mov_b32 exec_hi, 1')
        A('buffer_store_dwordx2 v[100:101], v1, s[4:7], 0 offen sc1')
        A('s_mov_b64 exec, -1')
        self.item_wait(2 + 4 * self.o['gw'])
        A('v_and_b32 v1, 1, v0')
        A('v_lshl_add_u32 v3, v1, 5, v97')

        def ld():
            A('buffer_load_dwordx4 v[48:51], v3, s[4:7], 0 offen sc1')
            A('buffer_load_dwordx4 v[52:55], v3, s[4:7], 0 offen offset:16 sc1')
            A('buffer_load_dword v56, v97, s[4:7], 0 offen offset:64 sc1')
        self.poll(ld, range(48, 57), 'v1', sleep=self.o['fsl'], mask=True)
        A('v_cmp_ne_u32 vcc, s32, v56')
        A('s_cmp_eq_u64 vcc, 0')
        A(f's_cselect_b32 s32, {2 if self.o["fast"] else 1}, 1')
        for i in range(4):
            A(f'v_mov_b32 v{64+2*i}, v{48+2*i}')

        def par(op, off):
            for m in self.ROWPAR:
                for i in range(4):
                    A(f'{op}_dpp v{off+2*i}, v{off+2*i}, v{off+2*i} {m} {DPPM}')
            for sw in ('v_permlane16_swap_b32', 'v_permlane32_swap_b32'):
                for i in range(4):
                    A(f'v_mov_b32 v{72+i}, v{off+2*i}')
                for i in range(4):
                    A(f'{sw} v{off+2*i}, v{72+i}')
                for i in range(4):
                    A(f'{op} v{off+2*i}, v{off+2*i}, v{72+i}')
        par('v_max_f32', 64)
        for i in range(4):
            A(f'v_sub_f32 v{48+2*i}, v{48+2*i}, v{64+2*i}')
            A(f'v_mul_f32 v{48+2*i}, {LOG2E}, v{48+2*i}')
            A(f'v_exp_f32 v{48+2*i}, v{48+2*i}')
            A(f'v_mul_f32 v{65+2*i}, v{48+2*i}, v{49+2*i}')
        par('v_add_f32', 65)
        A('v_lshlrev_b32 v1, 5, v0')
        A(f'v_add_u32 v1, {L_GL}, v1')
        A('s_mov_b64 exec, 3')
        A('ds_write_b128 v1, v[64:67]')
        A('ds_write_b128 v1, v[68:71] offset:16')
        A('s_mov_b64 exec, -1')
        A('v_lshrrev_b32 v1, 2, v96')
        A('v_lshlrev_b32 v1, 3, v1')
        A(f'v_add_u32 v1, {L_GL}, v1')
        A('ds_read_b64 v[100:101], v1')
        A('v_lshlrev_b32 v1, 2, v96')
        A(f'v_add_u32 v1, {L_FL}, v1')
        A(f'v_mov_b32 v2, {L_CNT}')
        A('v_mov_b32 v3, s32')
        A('s_waitcnt lgkmcnt(0)')
        A('v_sub_f32 v98, v98, v100')
        A(f'v_mul_f32 v98, {LOG2E}, v98')
        A('v_exp_f32 v98, v98')
        A('v_rcp_f32 v101, v101')
        A('v_mul_f32 v98, v98, v101')
        A('ds_write_b32 v1, v98')
        A(f'ds_write_b32 v2, v3 offset:{C_RDY}')
        self.op_addr('v102', 'v103', L_PART)
        if True:
            A(f's_add_u32 s12, s{sWS}, s44')
            A(f's_addc_u32 s13, s{sWS+1}, 0')
        A(f'v_mov_b32 v104, {L_FL}')
        A('s_lshl_b32 s10, s34, 10')
        A('s_lshl2_add_u32 s10, s35, s10')
        A(f's_add_u32 s10, s10, {H_FLG}')
        A('v_mov_b32 v105, s10')
        if self.o['ru']:
            A('s_lshl_b32 s10, s34, 10')
            A(f's_add_u32 s10, s10, {H_FLG + 896}')
            A('v_min_u32 v1, 29, v0')
            A('v_lshl_add_u32 v107, v1, 2, s10')
        A('s_mov_b32 s34, 2')
        A(f's_mov_b32 s35, {7*OPI}')
        A('L_mitem:')
        def touch():
            for k in range(6):
                A(f's_add_u32 s10, s35, {64*k}')
                A('s_load_dword s11, s[12:13], s10')
        if self.o['ad']:
            A('s_memtime s[26:27]')
            A('s_waitcnt lgkmcnt(0)')
            for k in range(self.o['NM']):
                A(f's_add_u32 s10, s35, {128*k}')
                A('s_load_dword s11, s[12:13], s10')
            A('s_waitcnt lgkmcnt(0)')
            A('s_memtime s[22:23]')
            A('s_waitcnt lgkmcnt(0)')
            A('s_sub_u32 s27, s22, s26')
            if self.o['stamps'] == 4:
                A('s_lshr_b32 s10, s34, 2')
                A('s_mov_b32 m0, s10')
                A('v_writelane_b32 v106, s27, m0')
            A('s_mov_b32 s26, s32')
            A(f's_cmp_gt_u32 s27, {self.o["ad"]}')
            A('s_cselect_b32 s26, 1, s26')
            A(f's_cmp_eq_u32 s35, {OPI}')
            A('s_cselect_b32 s26, s32, s26')
        if self.o['pt'] == 2:
            A(f's_cmp_gt_u32 s35, {self.o["ptm"]*OPI}')
            A('s_cbranch_scc1 L_notouch')
            touch()
            A('L_notouch:')
        if self.o['pt'] == 4:
            A('s_sub_u32 s44, s34, 2')
            self.lwait(C_IC, lambda: (A('s_lshr_b32 s8, s8, s44'), A('s_and_b32 s8, s8, 7')), 8)
            touch()
        self.item_wait('s34')
        if self.o['ru']:
            A('s_mov_b32 s27, s35')
            A('s_cmp_lg_u32 s32, 2')
            A('s_cbranch_scc1 L_mown')
            A(f's_sub_u32 s10, s35, {2*OPI}')
            A(f's_cmp_gt_u32 s10, {2*OPI}')
            A('s_cbranch_scc1 L_mown')
            A(f's_add_u32 s27, s35, {3*OPI}')
            A(f's_cmp_eq_u32 s35, {2*OPI}')
            A('s_cbranch_scc1 L_mown')
            A(f's_cmp_eq_u32 s35, {4*OPI}')
            A('s_cselect_b64 exec, 0x3ff, -1')
            self.poll(lambda: A('buffer_load_dword v2, v107, s[4:7], 0 offen sc1'), [2], 'v1', sleep=self.o['fsl'], mask=True)
            A('L_mown:')
        A('ds_read_b128 v[108:111], v104')
        for w in range(4):
            for h in range(2):
                A(f'ds_read_b128 {vr(48+8*w+4*h,4)}, v103 offset:{12288*w + 768*h}')
        A('s_waitcnt lgkmcnt(0)')
        for w in range(4):
            self.pk('add', 48 + 8 * w, 48 + 8 * w, 52 + 8 * w, n=2)
            f = vr(108 + (w & 2), 2)
            for h in range(2):
                if w == 0:
                    A(f'v_pk_mul_f32 {vr(48+2*h,2)}, {vr(48+2*h,2)}, {f} op_sel_hi:[1,0]')
                else:
                    m = 'op_sel:[0,1,0] op_sel_hi:[1,1,1]' if w & 1 else 'op_sel_hi:[1,0,1]'
                    A(f'v_pk_fma_f32 {vr(48+2*h,2)}, {vr(48+8*w+2*h,2)}, {f}, {vr(48+2*h,2)} {m}')
        self.pack(2, 48, 2)
        A('v_min_u32 v2, -2, v2')
        A('v_min_u32 v3, -2, v3')
        A('s_mov_b32 exec_hi, 0xffff')
        if self.o['xs']:
            A(f's_mov_b32 s6, {H_CLR}')
        if self.o['dt']:
            A('buffer_store_dwordx2 v[2:3], v102, s[4:7], s35 offen sc1')
        else:
            self.mode_store(f'buffer_store_dwordx2 v[2:3], v102, s[4:7], {"s27" if self.o["ru"] else "s35"} offen', 's26' if self.o['ad'] else 's32')
        A(f's_mov_b32 s6, {H_END}')
        A('s_mov_b64 exec, 1')
        if self.o['pt'] == 3:
            touch()
        A('s_waitcnt vmcnt(0) lgkmcnt(0)')
        self.mode_store('buffer_store_dword v0, v105, s[4:7], 0 offen', 's32')
        A('s_mov_b64 exec, -1')
        A('v_add_u32 v103, 1536, v103')
        A('v_add_u32 v104, 16, v104')
        A('v_add_u32 v105, 128, v105')
        A('s_add_u32 s34, s34, 4')
        A(f's_sub_u32 s35, s35, {OPI}')
        A('s_cmp_lg_u32 s35, 0')
        A('s_cbranch_scc1 L_mitem')
        if self.o['stamps'] == 4:
            A('s_lshl_b32 s10, s2, 7')
            A(f's_add_u32 s10, s10, {STAMP0 + 0x30000}')
            A('v_lshl_add_u32 v1, v0, 2, s10')
            A('s_mov_b64 exec, 0xff')
            A(f'global_store_dword v1, v106, {sp(sWS)}')
            A('s_mov_b64 exec, -1')
        if self.o['pf2'] & 2:
            repf(2048, 1)
        if self.o['pf2'] & 8:
            repf(11 * 2048, 4)
        if self.o['t7']:
            touch()
            A('s_waitcnt lgkmcnt(0)')
        for ty in (T_W, T_F, T_D):
            A(f's_cmp_eq_u32 s24, {ty}')
            A(f's_cbranch_scc1 L_back{ty}')
        A('s_endpgm')

        A('L_F:')
        XF, GA, C1, PV, SEL = 224, 232, 240, 248, 88
        ly = 1
        A('v_lshlrev_b32 v1, 2, v20')
        if ly:
            A('s_lshl_b32 s41, s38, 7')
            A('s_mul_i32 s14, s38, -96')
            A('s_add_u32 s14, s14, 384')
            A('v_lshrrev_b32 v2, 7, v21')
            A('v_mad_u32_u24 v23, v2, s14, v21')
            A('v_add_u32 v23, s41, v23')
            A('s_mul_i32 s14, s14, 3072')
            A('s_mov_b32 s15, 0')
        A('v_sub_u32 v23, v23, v1')

        def xload():
            A('v_mul_u32_u24 v1, 640, v22')
            A('v_add_lshl_u32 v2, v1, v23, 1')
            A('v_add_lshl_u32 v1, v1, v21, 1')
            A(f'global_load_dwordx2 v[28:29], v2, {sp(sX)}')
            A(f'global_load_dwordx2 v[30:31], v2, {sp(sX)} offset:32')
            for w in range(4):
                A(f'global_load_dwordx4 {vr(32+4*w,4)}, v1, {sp(sX)} offset:{320*w}')
        if not xl:
            xload()
        A('s_mul_i32 s10, s41, 3072')
        A('s_lshl_b32 s11, s40, 6')
        A('s_add_u32 s10, s10, s11')
        A('v_mul_u32_u24 v1, 3072, v18')
        A('v_and_b32 v2, 3, v19')
        A('v_lshl_add_u32 v1, v2, 4, v1')
        A('v_add_u32 v1, s10, v1')
        A(f'v_add_u32 v2, {8*3072}, v1')
        A(f'v_mov_b32 v4, s{sWG}')
        A(f'v_mov_b32 v5, s{sWG+1}')
        A(f'v_mov_b32 v6, s{sWU}')
        A(f'v_mov_b32 v7, s{sWU+1}')
        A('v_cmp_gt_u32 vcc, 4, v19')
        A('v_cndmask_b32 v10, v6, v4, vcc')
        A('v_cndmask_b32 v11, v7, v5, vcc')
        A('v_cndmask_b32 v12, v4, v6, vcc')
        A('v_cndmask_b32 v13, v5, v7, vcc')
        A('v_add_co_u32 v10, vcc, v10, v1')
        A('v_addc_co_u32 v11, vcc, 0, v11, vcc')
        A('v_add_co_u32 v12, vcc, v12, v2')
        A('v_addc_co_u32 v13, vcc, 0, v13, vcc')
        self.dma_issue(EF, 3072, '', self.o['DF'], burst=self.o['FB'], jump='s[14:15]' if ly else None, hold=(self.o['hold'] + 1) // 2)
        self.tr_addr(2)
        self.red_addr()
        self.tr_read(EF, 2048)
        if xl:
            xload()
        A('s_waitcnt vmcnt(0)')
        self.unpack(48, 32, 16)
        self.unpack(XF, 28, 4)
        self.pk('add', 80, 48, 64, n=8)
        self.pk('add', 80, 80, 88, n=4)
        self.pk('add', 80, 80, 84, n=2)
        self.pk('add', 80, 80, 82, n=1)
        A('v_add_f32 v6, v80, v81')
        A('v_cndmask_b32 v6, 0, v6, s[16:17]')
        self.rowred('v_add_f32', 'v6', self.ROWPAR)
        self.xrow('v_add_f32', 'v6', 'v1')
        A(f'v_mul_f32 v{PV}, {f2u(1/640)}, v6')
        A(f'v_readlane_b32 s10, v{PV}, 0')
        A(f'v_readlane_b32 s11, v{PV}, 1')
        A('s_mov_b32 s18, 0')
        A('s_mov_b32 s19, -1')
        A('v_mov_b32 v1, s10')
        A('v_mov_b32 v2, s11')
        A(f'v_cndmask_b32 v{PV+2}, v1, v2, s[18:19]')
        self.probe()
        self.midwait()
        self.dense_addr('v8', H_MOD + 20 * 256, 2)
        A('v_add_u32 v9, 5120, v8')

        def ld():
            for h in range(2):
                A(f'buffer_load_dwordx2 {vr(40+2*h,2)}, v8, s[4:7], 0 offen offset:{32*h} sc1')
                A(f'buffer_load_dwordx2 {vr(44+2*h,2)}, v8, s[4:7], 0 offen offset:{2560+32*h} sc1')
                A(f'buffer_load_dwordx2 {vr(48+2*h,2)}, v9, s[4:7], 0 offen offset:{32*h} sc1')
        self.poll(ld, range(40, 52), 'v1', sleep=self.o['slp'])
        self.unpack(GA, 40, 4)
        self.unpack(C1, 48, 4)
        for i in range(4):
            A(f'v_pk_add_f32 {vr(C1+2*i,2)}, {vr(C1+2*i,2)}, 1.0 op_sel_hi:[1,0]')
        self.rbf8(C1, 80)
        X1 = 120
        self.pk('add', XF, XF, PV, bstep=0, mods='op_sel_hi:[1,0] neg_lo:[0,1] neg_hi:[0,1]')
        self.pk('mul', X1, XF, C1)
        self.pk('mul', C1, C1, GA)
        for i in range(4):
            A(f'v_mov_b32 v{84+i}, v{44+i}')

        def consts():
            for act, off in ((80, 2048), (84, 4096)):
                self.mfma_std(act)
                self.red_write_std(off=off)
                A('s_mov_b64 exec, -1')
                A('s_waitcnt lgkmcnt(0)')
        if EF == 5:
            consts()
        if ly:
            A('v_lshrrev_b32 v1, 6, v23')
            A('v_lshlrev_b32 v1, 8, v1')
            A('v_and_b32 v2, 32, v23')
            A('v_lshl_add_u32 v2, v22, 4, v2')
            A(f'v_add_u32 v1, {H_Y}, v1')
            A('v_add_u32 v208, v1, v2')
        else:
            A('v_and_b32 v3, 0xffe0, v23')
            self.dense_addr('v208', H_Y, 2, k='v3')
        A('v_lshrrev_b32 v1, 1, v20')
        A('v_lshl_add_u32 v208, v1, 14, v208')
        A('v_and_b32 v1, 1, v20')
        A('v_mul_u32_u24 v1, 2560, v1')
        A('v_add_u32 v208, v1, v208')
        A('v_lshlrev_b32 v1, 4, v22')
        A('v_mov_b32 v2, 0x3f80')
        A('v_lshlrev_b32 v1, v1, v2')
        A('v_bfe_u32 v2, v0, 1, 3')
        for w in range(8):
            A(f'v_cmp_eq_u32 vcc, {w}, v2')
            A(f'v_cndmask_b32 v{SEL+w}, 0, v1, vcc')
        self.dense_addr('v209', H_X2, 2)
        A('v_lshrrev_b32 v1, 5, v0')
        A('v_lshl_add_u32 v2, v22, 3, v1')
        A('v_lshlrev_b32 v2, 2, v2')
        A(f's_lshl3_add_u32 s10, s38, {L_ST}')
        A('v_add_u32 v210, s10, v2')
        A('v_lshlrev_b32 v2, 5, v1')
        A(f'v_add_u32 v211, {L_ST}, v2')
        A('v_and_b32 v2, 31, v0')
        A('v_lshlrev_b32 v3, 8, v1')
        A('v_lshl_add_u32 v3, v2, 2, v3')
        A('v_add_u32 v25, s39, v3')
        A('v_add_u32 v213, 1024, v25')
        A('s_lshl_b32 s10, s40, 7')
        A(f's_add_u32 s10, s10, {H_ACT}')
        A('v_lshrrev_b32 v3, 3, v2')
        A('v_lshl_add_u32 v3, v3, 1, v1')
        A('v_and_b32 v2, 7, v2')
        A('v_lshl_add_u32 v3, v3, 3, v2')
        A('v_lshl_add_u32 v212, v3, 1, s10')
        self.tail_begin('L_Ft')
        self.get_sel()
        A('s_add_u32 s20, s47, 32768')
        AC = 214

        def rd2(dst, a0, a1):
            for w in range(4):
                A(f'ds_read2_b32 {vr(dst+2*w,2)}, {a1 if w >> 1 else a0} offset0:{128*(w&1)} offset1:{128*(w&1)+32}')
        for n in range(2):
            A(f'v_add_u32 v2, {2048*(n+1)}, v25')
            A(f'v_add_u32 v3, {2048*(n+1)}, v213')
            rd2(96, 'v2', 'v3')
            A('s_waitcnt lgkmcnt(0)')
            self.pk('add', 96, 96, 100, n=2)
            A(f'v_pk_add_f32 {vr(AC+2*n,2)}, v[96:97], v[98:99]')
        Y, YL = 32, 48
        order = (0, 2, 1, 3, 4, 6, 5, 7)
        lds, work = [], []
        for n in order:
            lds.append((f'buffer_load_dwordx4 {vr(YL+4*n,4)}, v208, s[4:7], {"s20" if n >= 4 else "s47"} offen offset:{64*(n&3)} sc1', YL + 4 * n))
            d = vr(Y + 4 * ((n >> 1) & 1), 4)
            work.append([f'v_mfma_f32_16x16x32_bf16 {d}, {vr(SEL+4*(n&1),4)}, {vr(YL+4*n,4)}, {"0" if n in (0, 2) else d}'])
        if self.o['wt']:
            A('v_and_b32 v3, 7, v0')
            A('v_lshlrev_b32 v3, 7, v3')
            A(f'v_add_u32 v3, {H_X2 + 3072}, v3')
            A('s_mov_b64 exec, 0xff')
            self.poll(lambda: A('buffer_load_dword v2, v3, s[4:7], s47 offen sc1'), [2], 'v1', mask=True)
        if self.o['ft']:
            A(f'v_mov_b32 v3, {H_X2 + 2560}')
            A('s_or_b32 s25, s40, s38')
        self.spoll(lds, work, 's[16:17]', sleep=self.o['fsp'])
        self.stamp(3)
        for i in range(4):
            A(f'v_pk_fma_f32 {vr(40+2*i,2)}, {vr(Y+2*i,2)}, {vr(C1+2*i,2)}, {vr(X1+2*i,2)}')
        self.pack(28, 40, 4)
        self.stamp(4)
        sh = [f'v_pk_fma_f32 {vr(Y+2*i,2)}, {vr(Y+2*i,2)}, {vr(GA+2*i,2)}, {vr(XF+2*i,2)}' for i in range(4)]
        sh += [f'v_pk_mul_f32 v[56:57], {vr(Y,2)}, {vr(Y,2)}', f'v_pk_add_f32 v[58:59], {vr(Y,2)}, {vr(Y+2,2)}']
        for i in range(1, 4):
            sh.append(f'v_pk_fma_f32 v[56:57], {vr(Y+2*i,2)}, {vr(Y+2*i,2)}, v[56:57]')
            if i > 1:
                sh.append(f'v_pk_add_f32 v[58:59], v[58:59], {vr(Y+2*i,2)}')
        if self.o['ssh']:
            sh = []
            for i in range(8):
                sh.append(f'v_fma_f32 v{Y+i}, v{Y+i}, v{GA+i}, v{XF+i}')
                sh.append(f'v_mul_f32 v56, v{Y}, v{Y}' if i == 0 else f'v_fmac_f32 v56, v{Y+i}, v{Y+i}')
                if i:
                    sh.append(f'v_add_f32 v58, v{Y+i}, {"v58" if i > 1 else f"v{Y}"}')
        else:
            sh += ['v_add_f32 v56, v56, v57', 'v_add_f32 v58, v58, v59']
        sh += ['s_nop 0',
               'v_permlane32_swap_b32 v58, v56', 'v_add_f32 v56, v56, v58', 'v_cndmask_b32 v56, 0, v56, s[16:17]']
        sh += [f'v_add_f32_dpp v56, v56, v56 {m} {DPPM}' for m in self.ROWPAR]
        def notice():
            A('s_cmp_lg_u32 s25, 0')
            A('s_cbranch_scc1 L_Fn')
            A('s_mov_b64 exec, 1')
            A('buffer_store_dword v27, v3, s[4:7], 0 offen sc1')
            A('buffer_store_dword v27, v3, s[4:7], s46 offen sc1')
            A('s_mov_b64 exec, -1')
            A('L_Fn:')
        self.mfma_std(28, shadow=sh, per=self.o['ssh'] or 2, hook=(self.o['ft'], notice))
        if self.o['clk']:
            self.stamp(1)
        A('v_mov_b32 v57, v56')
        A('v_permlane16_swap_b32 v56, v57')
        A('v_add_f32 v56, v56, v57')
        self.red_write_std()
        A('ds_write_b32 v210, v56')

        def rd():
            A('ds_read_b128 v[56:59], v211')
            A('ds_read_b128 v[60:63], v211 offset:16')
            rd2(64, 'v25', 'v213')
            A('s_cmp_lg_u32 s40, 0')
            A('s_cbranch_scc1 L_Fnox')
            self.pk('add', 40, Y, PV, bstep=0, mods='op_sel_hi:[1,0]')
            self.pack(48, 40, 4)
            for i in range(4):
                A(f'v_min_u32 v{48+i}, -2, v{48+i}')
            A('s_mov_b64 exec, s[16:17]')
            for so in ('0', 's46'):
                A(f'buffer_store_dwordx2 v[48:49], v209, s[4:7], {so} offen sc1')
                A(f'buffer_store_dwordx2 v[50:51], v209, s[4:7], {so} offen offset:32 sc1')
            A('s_mov_b64 exec, -1')
            A('L_Fnox:')
        self.arrive('L_end', rd, 4, True)
        if self.o['clk']:
            self.stamp(2)
        A('v_pk_add_f32 v[56:57], v[56:57], v[58:59]')
        A('v_pk_add_f32 v[60:61], v[60:61], v[62:63]')
        A('v_pk_add_f32 v[56:57], v[56:57], v[60:61]')
        A(f'v_mul_f32 v56, {f2u(1/640)}, v56')
        A(f'v_mul_f32 v8, {f2u(1/640)}, v57')
        A(f'v_add_f32 v6, v{PV+2}, v56')
        A('v_fma_f32 v8, -v56, v56, v8')
        A('v_max_f32 v8, 0, v8')
        self.ln_scalars('v6', 'v8')
        A(f'v_sub_f32 v6, v{PV+2}, v6')
        A('s_waitcnt lgkmcnt(0)')
        self.red_sum(64)
        A(f'v_pk_fma_f32 v[96:97], {vr(AC,2)}, v[6:7], v[64:65] op_sel_hi:[1,0,1]')
        A(f'v_pk_fma_f32 v[96:97], v[96:97], v[8:9], {vr(AC+2,2)} op_sel_hi:[1,0,1]')
        A('v_cvt_pk_bf16_f32 v98, v96, v97')
        A('v_lshlrev_b32 v100, 16, v98')
        A(f'v_mul_f32 v4, {LOG2E}, v100')
        A('v_exp_f32 v4, -v4')
        self.lastonly('L_end', True)
        A('v_and_b32 v101, 0xffff0000, v98')
        A('v_add_f32 v4, 1.0, v4')
        A('v_rcp_f32 v4, v4')
        A('s_mov_b32 s10, 0x55555555')
        A('v_mul_f32 v2, v100, v4')
        self.rbf('v2')
        A('v_mul_f32 v2, v2, v101')
        A('s_mov_b32 s11, 0x55555555')
        A(f'v_mov_b32_dpp v3, v2 quad_perm:[1,0,3,2] {DPPM}')
        A('s_mov_b64 exec, s[10:11]')
        A('v_cvt_pk_bf16_f32 v2, v2, v3')
        A('v_min_u32 v2, -2, v2')
        A('buffer_store_dword v2, v212, s[4:7], 0 offen sc1')
        A('buffer_store_dword v2, v212, s[4:7], s46 offen sc1')
        self.stamp(5)

        def late():
            self.dma_issue(5, 3072, '', 24, s0=EF, jump='s[14:15]' if ly else None)
            self.tr_read(5, 2048, s0=EF)
            consts()
            self.hbar()
        self.tail_end('L_Ft', T_F, self.o['WF'], late if EF < 5 else None, self.o['WLF'])

        A('L_D:')
        A(f's_mul_i32 s10, s38, {384*1280}')
        A('s_lshl_b32 s11, s40, 5')
        A('s_add_u32 s10, s10, s11')
        A(f's_add_u32 s10, s{sWD}, s10')
        A(f's_addc_u32 s11, s{sWD+1}, 0')
        for a, x in ((10, 0), (12, 4)):
            A(f'v_xor_b32 v1, {x}, v19')
            A('v_lshrrev_b32 v2, 1, v1')
            A('v_mul_u32_u24 v2, 96, v2')
            A('v_add_u32 v2, v2, v18')
            if x:
                A('v_add_u32 v2, 8, v2')
            A('v_mul_u32_u24 v2, 1280, v2')
            A('v_and_b32 v1, 1, v1')
            A(f'v_lshl_add_u32 v{a}, v1, 4, v2')
            A(f'v_mov_b32 v{a+1}, 0')
            A(f'v_lshl_add_u64 {vr(a,2)}, {vr(a,2)}, 0, s[10:11]')
        self.dma_issue(ED, 1280, '', self.o['DD'], burst=self.o['DB'])
        self.tr_addr(False)
        self.red_addr()
        self.tr_read(ED, 512)
        self.probe()
        self.midwait()
        A('v_bfe_u32 v30, v0, 3, 1')
        A('v_and_b32 v1, 7, v0')
        A('v_lshlrev_b32 v2, 8, v30')
        A('v_lshl_add_u32 v2, v1, 3, v2')
        A('v_add_u32 v25, s39, v2')
        A('s_lshl_b32 s10, s40, 4')
        A('v_lshl_add_u32 v31, v1, 1, s10')
        A('v_mul_u32_u24 v3, 640, v30')
        A('v_add_lshl_u32 v29, v3, v31, 1')
        A('v_mov_b32 v4, v22')
        A('v_mov_b32 v22, v30')
        self.dense_addr('v28', H_X2, 2, k='v31')
        A('v_mov_b32 v22, v4')
        A(f'v_add_u32 v8, {H_MOD + 50*256 - H_X2}, v28')

        def ld():
            A('buffer_load_dword v44, v8, s[4:7], 0 offen sc1')
        self.poll(ld, [44], 'v1', sleep=self.o['slp'])
        A(f's_mov_b32 s28, s{sOUT}')
        A(f's_mov_b32 s29, s{sOUT+1}')
        A('s_mov_b32 s30, 2560')
        A('s_mov_b32 s31, 0x20000')
        self.unpack(46, 44, 1)
        A('v_bfe_u32 v1, v0, 1, 3')
        A(f'v_lshlrev_b32 v2, 4, v22')
        A(f'v_lshl_add_u32 v2, v20, 5, v2')
        A('s_mul_i32 s10, s38, 1536')
        A(f's_add_u32 s10, s10, {H_ACT}')
        A('v_add_u32 v2, s10, v2')
        A('v_lshl_add_u32 v8, v1, 7, v2')
        A('v_and_b32 v1, 3, v1')
        A('v_lshl_add_u32 v9, v1, 7, v2')
        self.tail_begin('L_Dt')
        self.get_sel()

        def ld0():
            A('buffer_load_dword v40, v28, s[4:7], s47 offen sc1')

        if self.o['ft']:
            A(f'v_mov_b32 v3, {H_X2 + 2560}')
            A('s_mov_b64 exec, 1')
            self.poll(lambda: A('buffer_load_dword v2, v3, s[4:7], s47 offen sc1'), [2], 'v1', mask=True)
        elif self.o['dg']:
            self.poll(ld0, [40], 'v1')
        pairs = [(0, 32), (8, 36), (2, 48), (4, 52), (6, 56), (10, 60)]
        sh = [f'v_mov_b32_dpp v{r+i}, v{32+4*(ks//8)+i} row_shl:{2*(ks%8)} {DPPM}' for ks, r in pairs[2:] for i in range(4)]

        def mf(n, e):
            ks, r = pairs[n]
            d = vr(96 + 4 * e, 4)
            return f'v_mfma_f32_16x16x32_bf16 {d}, {vr(self.WR+16*((ks+e)%3)+4*((ks+e)//3),4)}, {vr(r,4)}, {"0" if n == 0 else d}'
        self.spoll([('buffer_load_dwordx4 v[32:35], v8, s[4:7], s47 offen sc1', 32),
                    ('buffer_load_dwordx4 v[36:39], v9, s[4:7], s47 offen offset:1024 sc1', 36)],
                   [[mf(n, 0), mf(n, 1), sh[2 * n], sh[2 * n + 1]] for n in range(2)],
                   one=None if self.o['dg'] and not self.o['ft'] else ('buffer_load_dword v40, v28, s[4:7], s47 offen sc1', 40), sleep=self.o['dsp'])
        self.stamp(3)
        sh = sh[4:]
        for n in range(2, 6):
            for e in range(2):
                A(mf(n, e))
                for i in range(2 if n > 2 or e else 4):
                    if sh:
                        A(sh.pop(0))
        self.unpack(42, 40, 1)
        for i in range(4):
            A(f'v_add_f32_dpp v{96+i}, v{100+i}, v{96+i} quad_perm:[2,3,0,1] {DPPM}')
        self.red_write_std(1)
        self.arrive('L_end', lambda: self.red_read(104), 4, True)
        A('s_waitcnt lgkmcnt(0)')
        self.red_sum(104)
        self.lastonly('L_end', True)
        self.pack(98, 104, 1)
        self.unpack(96, 98, 1)
        A('v_pk_mul_f32 v[96:97], v[96:97], v[46:47]')
        self.pack(98, 96, 1)
        self.unpack(96, 98, 1)
        A('v_pk_add_f32 v[96:97], v[96:97], v[42:43]')
        A('v_cvt_pk_bf16_f32 v2, v96, v97')
        A('s_mov_b64 exec, 0xffff')
        A(f'buffer_store_dword v2, v29, s[28:31], 0 offen')
        self.stamp(4)

        def late():
            if self.o['xd']:
                return
            self.dma_issue(3, 1280, '', 24, s0=ED, mid=(self.o['DL'], lambda: self.wake(128, add=False, both=False)))
            self.tr_read(3, 512, s0=ED)
        self.tail_end('L_Dt', T_D, self.o['WD'], late if ED < 3 else None, 64 if self.o['DL'] else self.o['WLD'])

    def build(self):
        self.entry()
        self.helper()
        self.stream()
        t = HEADER + f'; @launch grid=(256,1,1) block=(512,1,1) lds={L_END}\n' + self.A.text()
        t += '.p2align 8\n.type L_tab,@object\nL_tab:\n'
        w = job_table()
        for i in range(0, len(w), 8):
            t += '.long ' + ','.join('0x%08x' % x for x in w[i:i + 8]) + '\n'
        t += '.section .rodata,"a"\n.p2align 6\n' + kd(KN + '_kernel', 256, sgpr=102)
        return t


if __name__ == '__main__':
    import os
    os.makedirs('gen', exist_ok=True)
    names = []
    for spec in sys.argv[1:]:
        kw = {}
        for kv in spec.split(','):
            if not kv:
                continue
            k, v = kv.split('=')
            try:
                v = int(v, 0)
            except ValueError:
                v = v.replace('+', ' ')
            kw[k] = v
        nm = 'work/gen/v13_' + spec.replace('=', '').replace(',', '_') + '.s'
        open('code/' + nm, 'w').write(G(**kw).build())
        names.append(nm)
    print(' '.join(names))
```
